```python
import torch

def _softmax(x, axis=-1):
    return torch.softmax(x, dim=axis)
def _gelu(x):
    return torch.nn.functional.gelu(x, approximate="tanh")
def _silu(x):
    return torch.nn.functional.silu(x)
def _sigmoid(x):
    return torch.sigmoid(x)
def _layernorm(x, axis=-1, eps=1e-5):
    m = x.mean(dim=axis, keepdim=True)
    v = x.var(dim=axis, keepdim=True, unbiased=False)
    return (x - m) / torch.sqrt(v + eps)
def _scatter_add(tgt, idx, src, axis=0):
    return tgt.clone().index_add_(axis, idx, src)
def _segment_sum(src, seg, n):
    out = torch.zeros((n,) + src.shape[1:], dtype=src.dtype)
    return out.index_add_(0, seg, src)
def _pad(x, pw):
    flat = tuple(v for pair in reversed(pw) for v in pair)
    return torch.nn.functional.pad(x, flat)

kernel_name = 'concat_heads__spectral_fnet__linear_kernel_hedgehog__prompt'

def setup_inputs():

    _w = (lambda a: (lambda t: t.to(torch.bfloat16) if t.is_floating_point() else t)(torch.as_tensor(a)))
    def _A_setup():
        B, S, D = 1, 2048, 448
        ns = torch.arange(S)[:, None] * torch.arange(S)[None, :]
        nd = torch.arange(D)[:, None] * torch.arange(D)[None, :]
        Ws_re = torch.cos(-2.0 * torch.pi * ns / S).to(float)
        Ws_im = torch.sin(-2.0 * torch.pi * ns / S).to(float)
        Wd_re = torch.cos(-2.0 * torch.pi * nd / D).to(float)
        Wd_im = torch.sin(-2.0 * torch.pi * nd / D).to(float)
        return {
            "x": _w((lambda *s: torch.randn(*s, dtype=torch.bfloat16) * 0.05)(B, S, D)),
            "dft_seq_re": _w(Ws_re),
            "dft_seq_im": _w(Ws_im),
            "dft_hid_re": _w(Wd_re),
            "dft_hid_im": _w(Wd_im),
        }
    _A_in = _A_setup()

    def _B_setup():
        B, S, D, H = 1, 2048, 448, 16
        Dh = D // H
        return {
            "x": _w((lambda *s: torch.randn(*s, dtype=torch.bfloat16) * 0.2)(B, S, D)),
            "wqkv": _w((lambda *s: torch.randn(*s, dtype=torch.bfloat16) * 1.6)(D, 3 * D)),
            "w_phi": _w((lambda *s: torch.randn(*s, dtype=torch.bfloat16) * 1.6)(H, Dh, Dh) * (Dh ** -0.5)),
            "wo": _w((lambda *s: torch.randn(*s, dtype=torch.bfloat16) * 0.8)(D, D)),
        }
    _B_in = _B_setup()

    return {
        "A_x": _A_in["x"],
        "A_dft_seq_re": _A_in["dft_seq_re"],
        "A_dft_seq_im": _A_in["dft_seq_im"],
        "A_dft_hid_re": _A_in["dft_hid_re"],
        "A_dft_hid_im": _A_in["dft_hid_im"],
        "B_x": _B_in["x"],
        "B_wqkv": _B_in["wqkv"],
        "B_w_phi": _B_in["w_phi"],
        "B_wo": _B_in["wo"],
    }

def reference(A_x, A_dft_seq_re, A_dft_seq_im, A_dft_hid_re, A_dft_hid_im, B_x, B_wqkv, B_w_phi, B_wo):
    def _A_ref(x, dft_seq_re, dft_seq_im, dft_hid_re, dft_hid_im):
        a = torch.einsum("bsd,ed->bse", x, dft_hid_re)
        b = torch.einsum("bsd,ed->bse", x, dft_hid_im)
        y = torch.einsum("ts,bse->bte", dft_seq_re, a) - torch.einsum("ts,bse->bte", dft_seq_im, b)
        return y

    def _B_ref(x, wqkv, w_phi, wo):
        B, S, D = x.shape
        H = 16; Dh = D // H
        qkv = (lambda x, *d: x.permute(*d))((x @ wqkv).reshape(B, S, 3, H, Dh), 2, 0, 3, 1, 4)
        q, k, v = qkv[0], qkv[1], qkv[2]
        pq = torch.einsum("bhsd,hdf->bhsf", q, w_phi)
        pk = torch.einsum("bhsd,hdf->bhsf", k, w_phi)
        phi_q = torch.concatenate([_softmax(pq, axis=-1), _softmax(-pq, axis=-1)], axis=-1)
        phi_k = torch.concatenate([_softmax(pk, axis=-1), _softmax(-pk, axis=-1)], axis=-1)
        kv = torch.einsum("bhsf,bhsd->bhfd", phi_k, v)
        z  = torch.einsum("bhsf->bhf", phi_k)
        num = torch.einsum("bhqf,bhfd->bhqd", phi_q, kv)
        den = torch.einsum("bhqf,bhf->bhq", phi_q, z)[..., None] + 1e-6
        o = num / den
        return (lambda x, *d: x.permute(*d))(o, 0, 2, 1, 3).reshape(B, S, D) @ wo

    a = _A_ref(A_x, A_dft_seq_re, A_dft_seq_im, A_dft_hid_re, A_dft_hid_im)
    b = _B_ref(B_x, B_wqkv, B_w_phi, B_wo)
    return torch.concatenate([a, b], axis=-1)
```

```python
import re

TRANS = ('v_exp_f32','v_log_f32','v_rcp_f32','v_rsq_f32','v_sqrt_f32','v_sin_f32','v_cos_f32','v_rcp_iflag_f32')
REG_RE = re.compile(r'^(?:-|abs\(|\|)?\s*([vsa])(?:(\d+)|\[(\d+):(\d+)\])\)?\|?$')

def split_ops(s):
    out=[];cur='';depth=0
    for ch in s:
        if ch in '[(': depth+=1
        if ch in '])': depth-=1
        if ch==',' and depth==0:
            out.append(cur.strip());cur=''
        else: cur+=ch
    if cur.strip(): out.append(cur.strip())
    return out

def regs_of(tok):
    tok=tok.strip()
    if tok in('vcc','exec','m0','scc'): return {tok}
    if tok in('vcc_lo','vcc_hi'): return {'vcc'}
    if tok in('exec_lo','exec_hi'): return {'exec'}
    m=REG_RE.match(tok)
    if not m: return set()
    k=m.group(1)
    if m.group(2) is not None: return {(k,int(m.group(2)))}
    return {(k,i) for i in range(int(m.group(3)),int(m.group(4))+1)}

class Ins:
    def __init__(self,text):
        self.text=text
        t=text.split(';')[0].strip()
        self.is_label=t.endswith(':')
        self.is_dir=t.startswith('.') and not self.is_label
        self.op='';self.rd=set();self.wr=set();self.kind='other'
        self.srcc=set();self.srcab=set();self.sdata=set()
        if self.is_label or self.is_dir or not t:
            self.kind='none';return
        p=t.split(None,1)
        op=p[0];self.op=op
        rest=p[1] if len(p)>1 else ''
        ops=split_ops(rest)
        mods=''
        if ops:
            last=ops[-1].split()
            if len(last)>1:
                ops[-1]=last[0];mods=' '.join(last[1:])
        self.ops=ops;self.mods=mods
        R=[regs_of(o) for o in ops]
        base=op.replace('_e32','').replace('_e64','')
        self.base=base
        if base.startswith('v_mfma'):
            self.kind='mfma';self.wr=R[0];self.srcab=R[1]|R[2];self.srcc=R[3];self.rd=self.srcab|self.srcc
            self.passes=8 if '32x32' in base else 4
        elif base.startswith('v_'):
            self.kind='valu'
            if base.startswith('v_permlane'):
                self.wr=R[0]|R[1];self.rd=R[0]|R[1]
            elif base.startswith('v_cmpx'):
                self.wr=R[0]|{'exec'};self.rd=set().union(*R[1:])
            elif base in('v_add_co_u32','v_sub_co_u32','v_addc_co_u32','v_subb_co_u32','v_mad_u64_u32'):
                self.wr=R[0]|R[1];self.rd=set().union(*R[2:])
            elif base=='v_nop': pass
            else:
                self.wr=R[0];self.rd=set().union(*R[1:]) if len(R)>1 else set()
                if base in('v_fmac_f32','v_pk_fmac_f16','v_writelane_b32'): self.rd|=R[0]
                if base=='v_cndmask_b32' and len(ops)==3: self.rd|={'vcc'}
        elif base.startswith('ds_'):
            self.kind='ds'
            if base.startswith('ds_read') or base.startswith('ds_bpermute') or base.startswith('ds_swizzle'):
                self.wr=R[0];self.rd=set().union(*R[1:])
            else:
                self.rd=set().union(*R)
        elif base.startswith('buffer_') or base.startswith('global_'):
            self.kind='vmem'
            lds=' lds' in (' '+mods) or 'load_lds' in base
            self.lds=lds
            if 'load' in base and not lds:
                self.wr=R[0];self.rd=set().union(*R[1:])
            elif 'atomic' in base and 'sc0' in mods.split():
                self.wr=R[0];self.rd=set().union(*R)
            else:
                self.rd=set().union(*R)
                if 'store' in base and ('x3' in base or 'x4' in base):
                    self.sdata=R[0] if base.startswith('buffer_') else R[1]
            if lds: self.rd|={'m0'}
        elif base.startswith('s_'):
            self.kind='salu'
            if base.startswith('s_load') or base in('s_memtime','s_memrealtime'):
                self.kind='smem';self.wr=R[0];self.rd=set().union(*R[1:]) if len(R)>1 else set()
            elif base.startswith(('s_cmp','s_waitcnt','s_branch','s_cbranch','s_barrier','s_nop','s_endpgm','s_sleep','s_setprio','s_bitcmp')):
                self.rd=set().union(*R) if R else set()
            else:
                self.wr=R[0] if R else set();self.rd=set().union(*R[1:]) if len(R)>1 else set()
                if 'saveexec' in base: self.wr|={'exec'}
    def states(self):
        if self.kind=='none': return 0
        if self.op=='s_nop': return int(self.ops[0],0)+1
        return 1

def isv(r): return isinstance(r,tuple) and r[0] in 'va'
def iss(r): return (isinstance(r,tuple) and r[0]=='s') or r=='vcc'

def need(prev,cur):
    n=0
    pk,ck=prev.kind,cur.kind
    if pk=='valu':
        vw={r for r in prev.wr if isv(r)}
        sw={r for r in prev.wr if iss(r)}
        if ck=='mfma' and vw&cur.rd: n=max(n,2)
        if ck=='valu':
            if cur.base.startswith('v_permlane') and vw&cur.rd: n=max(n,2)
            if cur.base in('v_readfirstlane_b32','v_readlane_b32') and vw&cur.rd: n=max(n,1)
            if prev.base in TRANS and cur.base not in TRANS and vw&cur.rd: n=max(n,1)
            if sw&cur.rd: n=max(n,2)
            if cur.base in('v_readlane_b32','v_writelane_b32') and sw&cur.rd: n=max(n,4)
            if 'dpp' in cur.mods or 'row_' in cur.mods or 'quad_perm' in cur.mods:
                if vw&cur.rd: n=max(n,2)
        if ck in('vmem',) and sw&cur.rd: n=max(n,5)
        if ck in('salu','smem') and sw&cur.rd: n=max(n,1)
        if prev.base in TRANS and ck in('vmem','ds','mfma') and vw&cur.rd: n=max(n,2)
        if 'exec' in prev.wr:
            if ck=='mfma': n=max(n,4)
            if ck=='valu' and (cur.base.startswith('v_permlane') or cur.base.startswith('v_read')): n=max(n,4)
    if pk=='mfma':
        P=prev.passes
        big={2:5,4:8,8:12,16:20}[P]; mid={2:4,4:6,8:10,16:18}[P]; war={2:1,4:3,8:7,16:15}[P]
        if ck=='mfma':
            if prev.wr&cur.srcab: n=max(n,big)
            if prev.wr&cur.srcc:
                if not(prev.wr==cur.srcc and cur.passes==P): n=max(n,mid)
            if prev.wr&cur.wr and not(prev.wr==cur.srcc): n=max(n,mid)
        elif ck in('valu','vmem','ds'):
            if prev.wr&(cur.rd|cur.wr): n=max(n,big)
            if ck=='valu' and prev.srcc&cur.wr: n=max(n,war)
    if pk=='salu':
        if 'm0' in prev.wr and ck=='vmem' and 'm0' in cur.rd: n=max(n,1)
    if pk=='vmem' and prev.sdata:
        if ck=='valu' and prev.sdata&cur.wr: n=max(n,2)
        elif ck in('ds','vmem','mfma') and prev.sdata&cur.wr: n=max(n,1)
    return n

WINDOW=24
def required(hist,cur):
    d=0;n=0
    for p in reversed(hist):
        if p.kind=='none': continue
        k=need(p,cur)
        if k-d>n: n=k-d
        d+=p.states()
        if d>=WINDOW: break
    return n

class Asm:
    def __init__(self):
        self.prog=[]
    def e(self,text):
        for line in text.strip('\n').split('\n'):
            line=line.strip()
            if not line: continue
            m=re.match(r's_cselect_b32 (s\d+), (\S+), (\S+)$',line)
            if m:
                def lit(x):
                    try: v=int(x,0)
                    except ValueError: return False
                    return not(-16<=v<=64)
                if lit(m.group(2)) and lit(m.group(3)):
                    self.e('s_mov_b32 %s, %s\ns_cmov_b32 %s, %s'%(m.group(1),m.group(3),m.group(1),m.group(2)));continue
            ins=Ins(line)
            if ins.kind!='none':
                hist=[]
                for p in reversed(self.prog):
                    if p.op in('s_branch','s_endpgm','s_setpc_b64'): break
                    hist.append(p)
                    if len(hist)>3*WINDOW: break
                hist.reverse()
                n=required(hist,ins)
                while n>0:
                    k=min(n,16);self.prog.append(Ins('s_nop %d'%(k-1)));n-=k
            self.prog.append(ins)
    def verify_branches(self):
        lab={p.text.split(';')[0].strip()[:-1]:i for i,p in enumerate(self.prog) if p.is_label}
        bad=0
        for i,p in enumerate(self.prog):
            if p.op.startswith('s_cbranch') or p.op=='s_branch':
                t=lab.get(p.ops[0])
                if t is None: raise Exception('no label '+p.ops[0])
                hist=[]
                for q in reversed(self.prog[:i+1]):
                    if q is not p and q.op in('s_branch','s_endpgm'): break
                    hist.append(q)
                    if len(hist)>3*WINDOW: break
                hist.reverse()
                d=0
                for q in self.prog[t:t+3*WINDOW]:
                    if q.kind=='none': continue
                    n=required(hist,q)
                    if n>0:
                        print('HAZARD across branch',p.text,'->',q.text,'needs',n);bad+=1
                    hist.append(q);d+=q.states()
                    if d>=WINDOW or q.op in('s_branch','s_endpgm'): break
        return bad
    def text(self):
        out=[]
        for p in self.prog:
            out.append(p.text if (p.is_label or p.is_dir) else '    '+p.text)
        return '\n'.join(out)+'\n'
    def maxreg(self,kind,start=0,end=None):
        m=-1
        for p in self.prog[start:end]:
            for r in p.rd|p.wr:
                if isinstance(r,tuple) and r[0]==kind: m=max(m,r[1])
        return m

def vr(a,n=1): return 'v%d'%a if n==1 else 'v[%d:%d]'%(a,a+n-1)
def sr(a,n=1): return 's%d'%a if n==1 else 's[%d:%d]'%(a,a+n-1)
import struct
def f2u(x): return '0x%08x'%struct.unpack('<I',struct.pack('<f',x))[0]
```

```python
import sys, math
from asmlib import *

PHIQ_OFF=0; KV_OFF=0x400000; AINT_OFF=0x500000
LOG2E=1.4426950408889634
OPT=dict(st_phi='', st_aint='', st_out='', prof=0)
for a in sys.argv[2:]:
    k,v=a.split('='); OPT[k]=int(v) if v.lstrip('-').isdigit() else v

def srd(A,d,base,nbytes,off=0):
    if off:
        A.e(f's_add_u32 s{d}, s{base}, {hex(off)}\ns_addc_u32 s{d+1}, s{base+1}, 0')
    else:
        A.e(f's_mov_b32 s{d}, s{base}\ns_mov_b32 s{d+1}, s{base+1}')
    A.e(f's_mov_b32 s{d+2}, {hex(nbytes)}\ns_mov_b32 s{d+3}, 0x20000')

def MF(d,a,b,c=None):
    cc='0' if c is None else vr(c,16)
    return f'v_mfma_f32_32x32x16_bf16 {vr(d,16)}, {vr(a,4)}, {vr(b,4)}, {cc}'

def k1(A):
    e=A.e
    SX,SW,SP,SWS,SDB=20,24,28,32,36
    sWV=40
    e('k1_kernel:')
    e('s_cmp_ge_u32 s2, 256\ns_cbranch_scc1 K1_END')
    e('s_load_dwordx8 s[8:15], s[0:1], 40\ns_load_dwordx4 s[16:19], s[0:1], 80\ns_load_dwordx2 s[4:5], s[0:1], 0')
    e('v_and_b32 v1, 63, v0\nv_lshrrev_b32 v2, 6, v0')
    e('s_and_b32 s41, s2, 7\ns_lshr_b32 s42, s2, 3')
    e(f'v_readfirstlane_b32 s{sWV}, v2')
    e('s_cmp_ge_u32 s42, 24\ns_cbranch_scc1 K1_A')
    e('''s_and_b32 s43, s42, 1
    s_lshl_b32 s41, s41, 1
    s_add_u32 s43, s43, s41
    s_lshr_b32 s50, s42, 1
    s_cmp_ge_u32 s42, 16
    s_cselect_b32 s44, 1, 0
    s_cselect_b32 s46, 0, 784
    s_cselect_b32 s47, 112, 56
    s_cselect_b32 s48, 56, 112
    s_cselect_b32 s51, 224, 112
    s_cselect_b32 s52, 0, 896
    s_and_b32 s50, s50, 7
    s_mul_i32 s45, s50, s51
    s_add_u32 s45, s45, s52
    s_add_u32 s53, s44, 1
    s_lshl_b32 s49, s50, s53''')
    vX0,vX1,vW,vP=10,11,12,13
    vRX=14; vRW0,vRW1=18,19
    XF,WF0,WF1=20,36,52
    ACC0,ACC1=68,84
    WPH=100; WT=116
    e(f'''v_lshrrev_b32 v3, 3, v1
    v_lshl_add_u32 v3, v2, 4, v3
    v_lshrrev_b32 v4, 4, v1
    v_and_b32 v5, 7, v1
    v_xor_b32 v5, v5, v4
    v_lshlrev_b32 v5, 4, v5
    v_mul_u32_u24 v3, 896, v3
    v_add_u32 v{vX0}, v3, v5
    v_xor_b32 v{vX1}, 64, v{vX0}
    v_add_u32 v{vX1}, {8*896}, v{vX1}''')
    e(f'''v_and_b32 v5, 15, v1
    v_lshlrev_b32 v6, 2, v4
    v_xor_b32 v5, v5, v6
    v_min_u32 v5, 13, v5
    v_lshl_add_u32 v6, v2, 3, v4
    v_mul_u32_u24 v6, 2688, v6
    v_lshl_add_u32 v6, v5, 4, v6
    v_mov_b32 v7, s46
    v_cmp_lt_u32 vcc, 6, v5
    v_cndmask_b32 v7, 0, v7, vcc
    v_add3_u32 v{vW}, v6, v7, s45
    v_lshlrev_b32 v{vP}, 4, v0''')
    e(f'''s_mul_i32 s54, s43, {128*896}
    s_mov_b32 s55, 0
    s_lshl_b32 s56, s{sWV}, 11
    s_mul_i32 s57, s49, 1568
    s_lshl_b32 s58, s{sWV}, 10
    s_add_u32 m0, s58, 131072
    s_mov_b32 s59, 0''')
    e('s_waitcnt lgkmcnt(0)')
    srd(A,SP,12,16*1568); srd(A,SX,8,2048*896); srd(A,SW,10,448*2688)
    e(f'buffer_load_dwordx4 v{vP}, s[{SP}:{SP+3}], s57 offen lds')
    def issue():
        e(f'''s_mov_b32 m0, s56
        s_add_u32 s60, s55, {4*2688}
        buffer_load_dwordx4 v{vX0}, s[{SX}:{SX+3}], s54 offen lds
        s_add_u32 m0, s56, 1024
        s_nop 0
        buffer_load_dwordx4 v{vX1}, s[{SX}:{SX+3}], s54 offen lds
        s_add_u32 m0, s56, 16384
        s_add_u32 s54, s54, 128
        buffer_load_dwordx4 v{vW}, s[{SW}:{SW+3}], s55 offen lds
        s_add_u32 m0, s56, 17408
        s_add_u32 s55, s55, {64*2688}
        buffer_load_dwordx4 v{vW}, s[{SW}:{SW+3}], s60 offen lds
        s_add_u32 s56, s56, 32768
        s_and_b32 s56, s56, 0x1ffff''')
    e('K1_PRE:')
    issue()
    e('s_add_u32 s59, s59, 1\ns_cmp_lt_u32 s59, 4\ns_cbranch_scc1 K1_PRE')
    srd(A,SDB,16,256)
    e(f'''s_cmp_eq_u32 s44, 1
    s_cselect_b32 s60, {PHIQ_OFF}, {KV_OFF}
    s_cselect_b32 s{SWS+2}, {64*16*3584}, {16*3584}
    s_add_u32 s{SWS}, s18, s60
    s_addc_u32 s{SWS+1}, s19, 0
    s_mov_b32 s{SWS+3}, 0x20000''')
    e(f'''v_and_b32 v3, 3, v2
    v_and_b32 v4, 31, v1
    v_lshl_add_u32 v8, v3, 5, v4
    v_lshrrev_b32 v9, 5, v1
    v_bfe_u32 v5, v8, 1, 3
    v_xor_b32 v5, v5, v9
    v_lshlrev_b32 v5, 4, v5
    v_lshl_add_u32 v{vRX}, v8, 7, v5''')
    e(f'''v_bfe_u32 v3, v1, 4, 1
    v_and_b32 v4, 3, v1
    v_lshl_add_u32 v3, v3, 2, v4
    v_min_u32 v3, 6, v3
    v_lshrrev_b32 v5, 2, v2
    v_mul_u32_u24 v5, s47, v5
    v_lshl_add_u32 v3, v3, 3, v5
    v_bfe_u32 v4, v1, 2, 2
    v_lshl_add_u32 v5, v9, 3, v4
    v_lshlrev_b32 v5, 8, v5
    v_add_u32 v5, 16384, v5
    v_lshlrev_b32 v4, 6, v4
    v_xor_b32 v6, v3, v4
    v_add_u32 v{vRW0}, v5, v6
    v_add_u32 v3, s48, v3
    v_xor_b32 v6, v3, v4
    v_add_u32 v{vRW1}, v5, v6''')
    e(f'''v_and_b32 v3, 3, v1
    v_bfe_u32 v4, v1, 3, 2
    v_lshl_add_u32 v3, v4, 2, v3
    v_min_u32 v3, 13, v3
    v_bfe_u32 v4, v1, 2, 1
    v_mad_u32_u24 v3, v4, 14, v3
    v_lshlrev_b32 v3, 1, v3
    v_mul_u32_u24 v4, 224, v9
    v_lshrrev_b32 v5, 2, v2
    v_lshlrev_b32 v5, s44, v5
    v_mul_u32_u24 v5, 1568, v5
    v_add3_u32 v3, v3, v4, v5
    v_add_u32 v{vP}, 131072, v3''')
    for i in range(16):
        e(f'v_mov_b32 v{ACC0+i}, 0\nv_mov_b32 v{ACC1+i}, 0')
    e('s_mov_b32 s59, 0')
    e('s_waitcnt vmcnt(12)')
    e('K1_LOOP:')
    e('s_barrier')
    for ks in range(1,4): e(f'v_xor_b32 v{vRX+ks}, {32*ks}, v{vRX}')
    def rd(ks):
        e(f'ds_read_b128 {vr(XF+4*ks,4)}, v{vRX+ks}')
        for (WF,ad) in ((WF0,vRW0),(WF1,vRW1)):
            for jj in range(2):
                e(f'ds_read_b64_tr_b16 {vr(WF+4*ks+2*jj,2)}, v{ad} offset:{4096*ks+1024*jj}')
    def mm(ks):
        e(MF(ACC0,WF0+4*ks,XF+4*ks,ACC0)); e(MF(ACC1,WF1+4*ks,XF+4*ks,ACC1))
    rd(0); rd(1)
    e('s_sub_u32 s60, s59, 1\ns_cmp_lt_u32 s60, 3\ns_cbranch_scc0 K1_NOISS')
    issue()
    e('K1_NOISS:')
    e('s_waitcnt lgkmcnt(5)'); mm(0); rd(2)
    e('s_waitcnt lgkmcnt(5)'); mm(1); rd(3)
    e('s_waitcnt lgkmcnt(5)'); mm(2)
    e('s_waitcnt lgkmcnt(0)'); mm(3)
    for r in (vRX,vRW0,vRW1):
        e(f'v_add_u32 v{r}, 32768, v{r}\nv_and_b32 v{r}, 0x1ffff, v{r}')
    e('s_cmp_eq_u32 s59, 4\ns_cbranch_scc0 K1_NOWP')
    for u in range(2):
        for a in range(4):
            for uu in range(4):
                e(f'ds_read_u16 v{WT+16*u+4*a+uu}, v{vP} offset:{1568*u+(8*a+uu)*56}')
        e('s_waitcnt lgkmcnt(0)')
        for j in range(8):
            e(f'v_lshl_or_b32 v{WPH+8*u+j}, v{WT+16*u+2*j+1}, 16, v{WT+16*u+2*j}')
    e('v_cmp_gt_u32 vcc, 32, v1')
    for u in range(2):
        for j in (6,7): e(f'v_cndmask_b32 v{WPH+8*u+j}, 0, v{WPH+8*u+j}, vcc')
    e('K1_NOWP:')
    e('''s_add_u32 s59, s59, 1
    s_cmp_lt_u32 s59, 5
    s_cbranch_scc0 K1_W2
    s_waitcnt vmcnt(8)
    s_branch K1_LOOP
    K1_W2:
    s_cmp_eq_u32 s59, 5
    s_cbranch_scc0 K1_W3
    s_waitcnt vmcnt(4)
    s_branch K1_LOOP
    K1_W3:
    s_waitcnt vmcnt(0)
    s_cmp_eq_u32 s59, 6
    s_cbranch_scc1 K1_LOOP''')
    QB=20; T2=28; P=36; EP=52; EN=66; PH=80
    vFL=132; vSA=133; vSB=134
    TM=120
    e(f'buffer_load_dword v{vFL}, off, s[{SDB}:{SDB+3}], 0 sc1')
    e(f's_mov_b32 s62, {f2u(LOG2E)}\ns_mov_b32 s61, 0')
    e(f'''s_and_b32 s63, s{sWV}, 3
    s_lshl_b32 s64, s43, 2
    s_add_u32 s63, s63, s64
    s_lshl_b32 s63, s63, 4
    s_lshr_b32 s64, s{sWV}, 2
    s_lshl_b32 s65, s64, 1
    s_add_u32 s63, s63, s65
    s_add_u32 s63, s63, s49
    s_mul_i32 s63, s63, 3584
    v_lshlrev_b32 v{vSA}, 4, v1
    v_lshlrev_b32 v{vSB}, 3, v1''')
    for j in range(8): e(f'v_cvt_pk_bf16_f32 v{QB+j}, v{ACC0+2*j}, v{ACC0+2*j+1}')
    for j in range(8): e(f'v_cvt_pk_bf16_f32 v{T2+j}, v{ACC1+2*j}, v{ACC1+2*j+1}')
    e('K1_UNIT:')
    e(MF(P,WPH,QB)); e(MF(P,WPH+4,QB+4,P))
    mx,nm,t0,t1=TM,TM+1,TM+2,TM+3
    e(f'v_max3_f32 v{mx}, v{P}, v{P+1}, v{P+2}\nv_min3_f32 v{nm}, v{P}, v{P+1}, v{P+2}')
    for j in range(3,13,2):
        e(f'v_max3_f32 v{mx}, v{mx}, v{P+j}, v{P+j+1}\nv_min3_f32 v{nm}, v{nm}, v{P+j}, v{P+j+1}')
    e(f'v_max_f32 v{mx}, v{mx}, v{P+13}\nv_min_f32 v{nm}, v{nm}, v{P+13}')
    e(f'v_mul_f32 v{mx}, s62, v{mx}\nv_mul_f32 v{nm}, s62, v{nm}\nv_sub_f32 v{nm}, 0, v{nm}')
    e(f'v_permlane32_swap_b32 v{mx}, v{nm}')
    e(f'v_max_f32 v{t0}, v{mx}, v{nm}\nv_max_f32 v{t1}, v{mx}, v{nm}')
    e(f'v_permlane32_swap_b32 v{t0}, v{t1}')
    for j in range(0,14,2):
        e(f'v_pk_fma_f32 {vr(EP+j,2)}, {vr(P+j,2)}, s[62:63], {vr(t0,2)} op_sel_hi:[1,0,0] neg_lo:[0,0,1] neg_hi:[0,0,1]')
        e(f'v_pk_fma_f32 {vr(EN+j,2)}, {vr(P+j,2)}, s[62:63], {vr(t0,2)} op_sel:[0,0,1] op_sel_hi:[1,0,1] neg_lo:[0,1,1] neg_hi:[0,1,1]')
    for j in range(14):
        e(f'v_exp_f32 v{EP+j}, v{EP+j}\nv_exp_f32 v{EN+j}, v{EN+j}')
    sp,sn=TM+4,TM+6
    e(f'v_pk_add_f32 {vr(sp,2)}, {vr(EP,2)}, {vr(EP+2,2)}\nv_pk_add_f32 {vr(sn,2)}, {vr(EN,2)}, {vr(EN+2,2)}')
    for j in range(4,14,2):
        e(f'v_pk_add_f32 {vr(sp,2)}, {vr(sp,2)}, {vr(EP+j,2)}\nv_pk_add_f32 {vr(sn,2)}, {vr(sn,2)}, {vr(EN+j,2)}')
    e(f'v_add_f32 v{mx}, v{sp}, v{sp+1}\nv_add_f32 v{nm}, v{sn}, v{sn+1}')
    e(f'v_permlane32_swap_b32 v{mx}, v{nm}')
    e(f'v_add_f32 v{t0}, v{mx}, v{nm}')
    e(f'v_rcp_f32 v{t0}, v{t0}')
    e(f'v_mov_b32 v{t1}, v{t0}')
    e(f'v_permlane32_swap_b32 v{t0}, v{t1}')
    for j in range(0,14,2):
        e(f'v_pk_mul_f32 {vr(EP+j,2)}, {vr(EP+j,2)}, {vr(t0,2)} op_sel_hi:[1,0]')
        e(f'v_pk_mul_f32 {vr(EN+j,2)}, {vr(EN+j,2)}, {vr(t0,2)} op_sel:[0,1] op_sel_hi:[1,1]')
    for j in range(7): e(f'v_cvt_pk_bf16_f32 v{PH+j}, v{EP+2*j}, v{EP+2*j+1}')
    for j in range(7): e(f'v_cvt_pk_bf16_f32 v{PH+7+j}, v{EN+2*j}, v{EN+2*j+1}')
    e('s_cmp_eq_u32 s44, 0\ns_cbranch_scc1 K1_KV')
    st=OPT['st_phi']
    for c in range(3): e(f'buffer_store_dwordx4 {vr(PH+4*c,4)}, v{vSA}, s[{SWS}:{SWS+3}], s63 offen offset:{1024*c} {st}')
    e(f'buffer_store_dwordx2 {vr(PH+12,2)}, v{vSB}, s[{SWS}:{SWS+3}], s63 offen offset:3072 {st}')
    e('s_cmp_eq_u32 s61, 1\ns_cbranch_scc1 K1_END')
    for j in range(8): e(f'v_mov_b32 v{QB+j}, v{T2+j}\nv_mov_b32 v{WPH+j}, v{WPH+8+j}')
    e('s_mov_b32 s61, 1\ns_add_u32 s63, s63, 3584\ns_branch K1_UNIT')
    e('K1_KV:')
    e(f'''v_mov_b32 v3, 0x3f80
    v_cmp_gt_u32 vcc, 32, v1
    v_cndmask_b32 v{T2+6}, v3, v{T2+6}, vcc
    v_cndmask_b32 v{T2+7}, v3, v{T2+7}, vcc''')
    e(f'''s_mul_i32 s65, s64, 98304
    v_mul_u32_u24 v3, 192, v8
    v_bfe_u32 v4, v8, 1, 2
    v_lshlrev_b32 v5, 1, v9
    v_xor_b32 v4, v4, v5
    v_lshl_add_u32 v3, v4, 4, v3
    v_add_u32 v3, s65, v3
    v_xor_b32 v4, 16, v3''')
    e(f'v_permlane32_swap_b32 v{T2+6}, v{T2+7}')
    e(f'''ds_write_b128 v3, {vr(PH,4)}
    ds_write_b128 v4, {vr(PH+4,4)}
    ds_write_b128 v3, {vr(PH+8,4)} offset:64
    ds_write_b64 v4, {vr(PH+12,2)} offset:64
    ds_write_b128 v3, {vr(T2,4)} offset:128
    ds_write_b128 v4, {vr(T2+4,4)} offset:128''')
    e(f'''s_lshr_b32 s66, s{sWV}, 1
    s_and_b32 s67, s{sWV}, 1
    s_mul_i32 s65, s66, 98304
    s_lshl_b32 s68, s67, 6
    v_bfe_u32 v3, v1, 2, 2
    v_lshl_add_u32 v4, v9, 3, v3
    v_mul_u32_u24 v4, 192, v4
    v_and_b32 v5, 1, v1
    v_bfe_u32 v6, v1, 4, 1
    v_lshl_add_u32 v5, v5, 1, v6
    v_lshrrev_b32 v3, 1, v3
    v_xor_b32 v5, v5, v3
    v_lshl_add_u32 v4, v5, 4, v4
    v_bfe_u32 v5, v1, 1, 1
    v_lshl_add_u32 v4, v5, 3, v4
    v_add_u32 v4, s65, v4
    v_xor_b32 v5, 32, v4
    v_add_u32 v6, s68, v4
    v_add_u32 v7, s68, v5''')
    e('s_waitcnt lgkmcnt(0)\ns_barrier')
    e(f's_cmp_ge_u32 s{sWV}, 4\ns_cbranch_scc1 K1_END')
    FA,FB,KA=20,52,84
    for ks in range(8):
        e(f'ds_read_b64_tr_b16 {vr(FA+4*ks,2)}, v6 offset:{3072*ks}')
        e(f'ds_read_b64_tr_b16 {vr(FA+4*ks+2,2)}, v7 offset:{3072*ks+768}')
        e(f'ds_read_b64_tr_b16 {vr(FB+4*ks,2)}, v4 offset:{3072*ks+128}')
        e(f'ds_read_b64_tr_b16 {vr(FB+4*ks+2,2)}, v5 offset:{3072*ks+768+128}')
        if ks>=2:
            e('s_waitcnt lgkmcnt(8)'); e(MF(KA,FA+4*(ks-2),FB+4*(ks-2),KA if ks>2 else None))
    e('s_waitcnt lgkmcnt(4)'); e(MF(KA,FA+24,FB+24,KA))
    e('s_waitcnt lgkmcnt(0)'); e(MF(KA,FA+28,FB+28,KA))
    e(f'''s_add_u32 s65, s49, s66
    s_mul_i32 s65, s65, 3584
    s_lshl_b32 s68, s67, 11
    s_add_u32 s65, s65, s68
    v_lshlrev_b32 v3, 2, v1''')
    e('s_mov_b32 s70, 0\nK1_POLL:\ns_waitcnt vmcnt(0)')
    e(f'v_readfirstlane_b32 s69, v{vFL}')
    e('s_cmp_ge_u32 s69, 64\ns_cbranch_scc1 K1_GO\ns_add_u32 s70, s70, 1\ns_cmp_ge_u32 s70, 0x40000\ns_cbranch_scc1 K1_GO\ns_sleep 2')
    e(f'buffer_load_dword v{vFL}, off, s[{SDB}:{SDB+3}], 0 sc1')
    e('s_branch K1_POLL\nK1_GO:\ns_nop 1')
    for j in range(8): e(f'v_cvt_pk_bf16_f32 v{FA+j}, v{KA+2*j}, v{KA+2*j+1}')
    for j in range(6): e(f'buffer_atomic_pk_add_bf16 v{FA+j}, v3, s[{SWS}:{SWS+3}], s65 offen offset:{256*j}')
    e('s_cmp_eq_u32 s67, 1\ns_cbranch_scc1 K1_END')
    for j in range(6,8): e(f'buffer_atomic_pk_add_bf16 v{FA+j}, v3, s[{SWS}:{SWS+3}], s65 offen offset:{256*j}')
    e('s_endpgm')
    e('K1_A:')
    e(f'''s_lshl_b32 s43, s41, 3
    s_add_u32 s43, s43, s42
    s_sub_u32 s43, s43, 24
    s_lshl_b32 s44, s{sWV}, 8
    s_add_u32 s44, s44, s43
    s_mul_i32 s44, s44, 896
    s_mul_i32 s45, s{sWV}, {4*960}
    v_lshlrev_b32 v3, 4, v1
    s_mov_b32 m0, s45
    s_waitcnt lgkmcnt(0)''')
    srd(A,SX,4,2048*896)
    e('s_mov_b32 exec_hi, 0x00ffffff')
    for i in range(4):
        if i: e(f's_add_u32 m0, s45, {960*i}\ns_add_u32 s44, s44, {64*896}')
        e(f'buffer_load_dwordx4 v3, s[{SX}:{SX+3}], s44 offen lds')
    srd(A,SWS,18,16*3584,KV_OFF); srd(A,SDB,16,256)
    VL=32768; OL=73728
    e('s_mov_b32 exec_hi, -1\nv_and_b32 v8, 31, v1\nv_lshrrev_b32 v9, 5, v1')
    e(f'''v_mul_u32_u24 v10, {8*2560}, v9
    v_mul_u32_u24 v16, 80, v8
    v_add_u32 v10, v16, v10
    v_lshl_add_u32 v10, v2, 3, v10
    v_add_u32 v10, {VL}, v10''')
    e(f's_cmp_eq_u32 s{sWV}, 7\ns_cbranch_scc0 K1A_GEN')
    e(f'''v_mov_b32 v12, 0
    v_mov_b32 v13, 0
    v_mov_b32 v14, 0
    v_mov_b32 v15, 0
    s_mul_i32 s46, s43, 896
    s_mov_b32 exec_hi, 0x00ffffff
    buffer_store_dwordx4 v[12:15], v3, s[{SWS}:{SWS+3}], s46 offen sc1
    s_mov_b32 exec_hi, -1''')
    for r in range(8): e(f'ds_write_b64 v10, v[12:13] offset:{2560*r}')
    e(f'''v_mov_b32 v14, 1
    s_waitcnt vmcnt(0)
    s_mov_b64 exec, 1
    buffer_atomic_add v14, off, s[{SDB}:{SDB+3}], 0 sc1
    s_mov_b64 exec, -1''')
    e('K1A_GEN:')
    FF=20; HH=28; CP=32; SPn=40; A2=48; B2=56; TT=64
    e(f'''v_lshrrev_b32 v4, 1, v8
    v_and_b32 v5, 1, v8
    v_cvt_f32_u32 v5, v5
    v_mul_f32 v5, {f2u(-0.25)}, v5
    v_cmp_eq_u32 vcc, 1, v8
    v_cndmask_b32 v4, v4, 16, vcc
    v_cndmask_b32 v5, v5, 0, vcc
    v_cvt_f32_u32 v4, v4
    v_mul_f32 v4, {f2u(1/32)}, v4
    v_cvt_f32_u32 v11, v9
    v_mul_f32 v12, 4.0, v11
    v_add_f32 v11, v12, v12
    v_fma_f32 v5, v4, v11, v5''')
    for ks in range(2):
        for j in range(8): e(f'v_fmamk_f32 v{TT+8*ks+j}, v4, {f2u(16.*ks+j)}, v5')
    for j in range(16): e(f'v_cos_f32 v{TT+j}, v{TT+j}')
    for j in range(8): e(f'v_cvt_pk_bf16_f32 v{FF+j}, v{TT+2*j}, v{TT+2*j+1}')
    e(f'''v_bfe_u32 v4, v8, 2, 1
    v_bfe_u32 v5, v8, 3, 1
    v_lshl_add_u32 v4, v4, 1, v5
    v_bfe_u32 v5, v8, 1, 1
    v_lshl_add_u32 v4, v4, 1, v5
    v_and_b32 v5, 1, v8
    v_cvt_f32_u32 v5, v5
    v_mul_f32 v5, {f2u(-0.25)}, v5
    v_and_b32 v6, 15, v8
    v_cmp_eq_u32 vcc, 1, v6
    v_cndmask_b32 v4, v4, 8, vcc
    v_cndmask_b32 v5, v5, 0, vcc
    v_cvt_f32_u32 v4, v4
    v_mul_f32 v4, {f2u(1/16)}, v4
    v_fma_f32 v5, v4, v12, v5''')
    for j in range(8): e(f'v_fmamk_f32 v{TT+j}, v4, {f2u(8.*(j>>2)+(j&3))}, v5')
    for j in range(8): e(f'v_cos_f32 v{TT+j}, v{TT+j}')
    for j in range(4): e(f'v_cvt_pk_bf16_f32 v{HH+j}, v{TT+2*j}, v{TT+2*j+1}')
    e(f'''s_cmp_eq_u32 s{sWV}, 0
    s_cselect_b32 s47, 8, s{sWV}
    s_sub_u32 s48, 0, s47
    v_lshrrev_b32 v4, 2, v8
    v_lshlrev_b32 v4, 5, v4
    v_and_b32 v5, 3, v8
    v_add_u32 v5, 1, v5
    v_lshrrev_b32 v5, 1, v5
    v_lshl_add_u32 v4, v5, 4, v4
    v_and_b32 v5, 1, v8
    v_cmp_eq_u32 vcc, 1, v5
    v_mov_b32 v6, s48
    v_cndmask_b32 v6, v2, v6, vcc
    v_add_u32 v4, v4, v6
    v_cvt_f32_u32 v4, v4
    v_mul_f32 v4, {f2u(1/448)}, v4
    v_mul_f32 v5, v4, v11''')
    for ks in range(2):
        for j in range(8): e(f'v_fmamk_f32 v{TT+8*ks+j}, v4, {f2u(16.*ks+j)}, v5')
    for j in range(16): e(f'v_sin_f32 v{TT+16+j}, v{TT+j}\nv_cos_f32 v{TT+j}, v{TT+j}')
    for j in range(8): e(f'v_cvt_pk_bf16_f32 v{CP+j}, v{TT+2*j}, v{TT+2*j+1}\nv_cvt_pk_bf16_f32 v{SPn+j}, v{TT+16+2*j}, v{TT+16+2*j+1}')
    e(f's_cmp_eq_u32 s{sWV}, 0\ns_cbranch_scc1 K1A_SPEC')
    e('''v_mov_b32 v4, 0x80008000
    v_cndmask_b32 v5, v4, 0, vcc
    v_cndmask_b32 v6, 0, v4, vcc''')
    for j in range(8): e(f'v_xor_b32 v{A2+j}, v5, v{SPn+j}\nv_xor_b32 v{B2+j}, v6, v{CP+j}')
    e('s_branch K1A_ST1\nK1A_SPEC:')
    for j in range(8):
        e(f'''v_cndmask_b32 v{A2+j}, 0, v{CP+j}, vcc
        v_cndmask_b32 v{B2+j}, 0, v{SPn+j}, vcc
        v_cndmask_b32 v{CP+j}, v{CP+j}, 0, vcc
        v_cndmask_b32 v{SPn+j}, v{SPn+j}, 0, vcc''')
    e('v_mov_b32 v4, 0xbf803f80\nv_cmp_eq_u32 vcc, 0, v8')
    for j in range(8): e(f'v_cndmask_b32 v{SPn+j}, v{SPn+j}, v4, vcc')
    e('K1A_ST1:')
    e(f'''v_bfe_u32 v4, v1, 2, 2
    v_lshl_add_u32 v4, v9, 3, v4
    v_mul_u32_u24 v4, 960, v4
    v_and_b32 v5, 1, v1
    v_bfe_u32 v6, v1, 4, 1
    v_lshl_add_u32 v5, v5, 1, v6
    v_bfe_u32 v6, v1, 1, 1
    v_lshl_add_u32 v5, v5, 1, v6
    v_mad_u32_u24 v4, v5, 56, v4
    v_lshl_add_u32 v4, v2, 3, v4''')
    e(f'''v_mul_u32_u24 v13, 5120, v2
    v_add_u32 v13, v16, v13
    v_lshl_add_u32 v13, v9, 4, v13
    v_add_u32 v13, {VL}, v13
    v_mul_u32_u24 v14, 1032, v8
    v_lshl_add_u32 v14, v9, 7, v14
    v_add_u32 v14, {OL}, v14
    s_lshl_b32 s48, s48, 1
    v_add_u32 v15, s48, v14
    v_lshl_add_u32 v14, v2, 1, v14''')
    e('s_waitcnt vmcnt(0) lgkmcnt(0)\ns_barrier')
    e(f's_cmp_eq_u32 s{sWV}, 7\ns_cbranch_scc1 K1A_B2')
    XA=64; U0=80; U1=96; BO=112; VU=128
    for dh in range(2):
        for ks in range(2):
            for jj in range(2):
                e(f'ds_read_b64_tr_b16 {vr(XA+8*dh+4*ks+2*jj,2)}, v4 offset:{15360*ks+3840*jj+448*dh}')
    e('s_waitcnt lgkmcnt(4)')
    e(MF(U0,XA,FF)); e(MF(U0,XA+4,FF+4,U0))
    e('s_waitcnt lgkmcnt(0)')
    e(MF(U1,XA+8,FF)); e(MF(U1,XA+12,FF+4,U1))
    for u in range(4):
        e(f'v_cvt_pk_bf16_f32 v{BO+4*u}, v{U0+u}, v{U0+4+u}\nv_cvt_pk_bf16_f32 v{BO+4*u+1}, v{U0+8+u}, v{U0+12+u}')
    for u in range(4):
        e(f'v_cvt_pk_bf16_f32 v{BO+4*u+2}, v{U1+u}, v{U1+4+u}\nv_cvt_pk_bf16_f32 v{BO+4*u+3}, v{U1+8+u}, v{U1+12+u}')
    for u in range(4): e(MF(VU+16*u,HH,BO+4*u))
    for r in range(8):
        e(f'v_cvt_pk_bf16_f32 v{XA+2*r}, v{VU+r}, v{VU+16+r}')
    for r in range(8):
        e(f'v_cvt_pk_bf16_f32 v{XA+2*r+1}, v{VU+32+r}, v{VU+48+r}')
        e(f'ds_write_b64 v10, {vr(XA+2*r,2)} offset:{2560*r}')
    e('K1A_B2:\ns_waitcnt lgkmcnt(0)\ns_barrier')
    for ks in range(4): e(f'ds_read_b128 {vr(XA+4*ks,4)}, v13 offset:{32*(ks&1)+2560*(ks>>1)}')
    GA=[CP,CP+4,A2,A2+4]; GB=[SPn,SPn+4,B2,B2+4]
    for ks in range(4):
        e(f's_waitcnt lgkmcnt({3-ks})')
        e(MF(U0,GA[ks],XA+4*ks,U0 if ks else None)); e(MF(U1,GB[ks],XA+4*ks,U1 if ks else None))
    srd(A,SWS,18,2<<20,AINT_OFF)
    for (U,ab) in ((U0,0),(U1,64)):
        for j in range(8): e(f'v_cvt_pk_bf16_f32 v{BO+j}, v{U+2*j}, v{U+2*j+1}')
        for a in range(4):
            e(f'''ds_write_b16 v14, v{BO+2*a} offset:{256*a+ab}
            ds_write_b16_d16_hi v15, v{BO+2*a} offset:{256*a+32+ab}
            ds_write_b16 v14, v{BO+2*a+1} offset:{256*a+32+ab}
            ds_write_b16_d16_hi v15, v{BO+2*a+1} offset:{256*a+64+ab}''')
    e(f'''s_mul_i32 s45, s{sWV}, {4*1032}
    s_add_u32 s45, s45, {OL}
    v_add_u32 v4, s45, v3
    s_lshl_b32 s44, s{sWV}, 8
    s_add_u32 s44, s44, s43
    s_lshl_b32 s44, s44, 10
    s_waitcnt lgkmcnt(0)
    s_barrier
    s_mov_b32 exec_hi, 0x00ffffff''')
    for i in range(4): e(f'ds_read2_b64 {vr(XA+4*i,4)}, v4 offset0:{129*i%256 if False else 0} offset1:1' if i==0 else f'v_add_u32 v4, 1032, v4\nds_read2_b64 {vr(XA+4*i,4)}, v4 offset0:0 offset1:1')
    st=OPT['st_aint']
    for i in range(4):
        e(f's_waitcnt lgkmcnt({3-i})')
        e(f'buffer_store_dwordx4 {vr(XA+4*i,4)}, v3, s[{SWS}:{SWS+3}], s44 offen {st}')
        e(f's_add_u32 s44, s44, 65536')
    e('K1_END:\ns_endpgm')

def k2(A):
    e=A.e
    SD,SPH,SO=20,24,28
    sWV=40
    e('k2_kernel:')
    e('s_cmp_ge_u32 s2, 256\ns_cbranch_scc1 K2_END')
    e('s_load_dwordx4 s[8:11], s[0:1], 64\ns_load_dwordx2 s[12:13], s[0:1], 88')
    e('v_and_b32 v1, 63, v0\nv_lshrrev_b32 v2, 6, v0')
    e('s_and_b32 s41, s2, 7\ns_lshr_b32 s42, s2, 3')
    e(f'v_readfirstlane_b32 s{sWV}, v2')
    e('''v_and_b32 v8, 31, v1
    v_lshrrev_b32 v9, 5, v1
    v_bfe_u32 v10, v1, 2, 2
    v_bfe_u32 v3, v1, 4, 1
    v_and_b32 v4, 1, v1
    v_lshl_add_u32 v4, v3, 1, v4
    v_bfe_u32 v5, v1, 1, 1
    v_lshl_add_u32 v4, v4, 1, v5
    v_lshlrev_b32 v11, 3, v4
    v_and_b32 v4, 7, v1
    v_lshlrev_b32 v3, 2, v3
    v_xor_b32 v4, v4, v3
    v_lshlrev_b32 v12, 4, v4
    v_lshrrev_b32 v13, 3, v1''')
    e('s_cmp_ge_u32 s42, 28\ns_cbranch_scc1 K2_A')
    e(f'''s_and_b32 s43, s42, 3
    s_lshl_b32 s41, s41, 2
    s_add_u32 s43, s43, s41
    s_lshr_b32 s44, s42, 2
    s_and_b32 s45, s{sWV}, 1
    s_lshr_b32 s46, s{sWV}, 1''')
    vD,vF16,vF8=14,15,16
    e(f'''v_mul_u32_u24 v3, 896, v13
    v_add_u32 v3, v3, v12
    v_lshlrev_b32 v{vF16}, 4, v1
    v_lshlrev_b32 v{vF8}, 3, v1
    s_cmp_eq_u32 s46, 0
    s_cselect_b64 vcc, -1, 0
    s_cselect_b32 s47, 1024, 7168
    s_cselect_b32 s48, 28672, {224*896}
    s_cselect_b32 s49, 0, 128
    s_mul_i32 s48, s48, s45
    s_mul_i32 s49, s49, s44
    s_add_u32 s48, s48, s49
    v_cndmask_b32 v{vD}, v3, v{vF16}, vcc
    s_mul_i32 s50, s{sWV}, 28672
    s_lshl_b32 s51, s43, 1
    s_add_u32 s51, s51, s45
    s_lshl_b32 s52, s51, 4
    s_lshl_b32 s53, s46, 3
    s_add_u32 s52, s52, s53
    s_mul_i32 s52, s52, 3584
    s_mov_b32 m0, s50
    s_waitcnt lgkmcnt(0)
    s_add_u32 s54, s12, {KV_OFF}
    s_addc_u32 s55, s13, 0
    s_cmp_eq_u32 s46, 0
    s_cselect_b32 s{SD}, s54, s8
    s_cselect_b32 s{SD+1}, s55, s9
    s_cselect_b32 s{SD+2}, {16*3584}, {448*896}
    s_mov_b32 s{SD+3}, 0x20000''')
    srd(A,SPH,12,64*16*3584,PHIQ_OFF)
    PHI=128
    for s in range(4):
        for n in range(7):
            e(f'buffer_load_dwordx4 v{vD}, s[{SD}:{SD+3}], s48 offen lds')
            e(f's_add_u32 m0, m0, 1024\ns_add_u32 s48, s48, s47')
        for hl in (2*s,2*s+1):
            for c in range(3): e(f'buffer_load_dwordx4 {vr(PHI+16*hl+4*c,4)}, v{vF16}, s[{SPH}:{SPH+3}], s52 offen offset:{1024*c}')
            e(f'buffer_load_dwordx2 {vr(PHI+16*hl+12,2)}, v{vF8}, s[{SPH}:{SPH+3}], s52 offen offset:3072')
            e('s_add_u32 s52, s52, 3584')
    srd(A,SO,10,2048*1792)
    vK,vN0,vN1,vS0,vS1=17,18,19,20,21
    e(f'''s_mul_i32 s53, s46, 28672
    v_lshlrev_b32 v3, 2, v1
    v_add_u32 v{vK}, s53, v3
    s_add_u32 s53, s53, 57344
    v_lshl_add_u32 v3, v9, 2, v10
    v_lshlrev_b32 v3, 7, v3
    v_lshrrev_b32 v4, 1, v10
    v_lshl_add_u32 v3, v4, 6, v3
    v_add3_u32 v{vN0}, v3, v11, s53
    v_xor_b32 v{vN1}, 64, v{vN0}
    v_lshlrev_b32 v3, 1, v9
    v_xor_b32 v3, v3, v10
    v_lshrrev_b32 v4, 1, v3
    v_lshlrev_b32 v3, 7, v3
    v_lshl_add_u32 v3, v4, 6, v3
    v_add3_u32 v{vS0}, v3, v11, s53
    v_xor_b32 v{vS1}, 64, v{vS0}''')
    KF=[24,40]; WFR=56; NUM=[72,88]; OP=104; OUT=[112-0,0]
    OUT0,OUT1=22*0+0,0
    OUT0=112
    def MFo(mt,a,b,first):
        if mt==0: return MF(OUT0,a,b,None if first else OUT0)
        return f'v_mfma_f32_32x32x16_bf16 a[0:15], {vr(a,4)}, {vr(b,4)}, '+('0' if first else 'a[0:15]')
    for hl in range(8): e(f'v_mov_b32 v{PHI+16*hl+14}, 0\nv_mov_b32 v{PHI+16*hl+15}, 0')
    for b in range(2): e(f'v_mov_b32 v{KF[b]+14}, 0\nv_mov_b32 v{KF[b]+15}, 0')
    e(f'v_mov_b32 v{OP+7}, 0\ns_mov_b32 s56, {f2u(1e-6)}')
    def rdkv(hl):
        for p in range(7): e(f'ds_read2st64_b32 {vr(KF[hl&1]+2*p,2)}, v{vK} offset0:{14*hl+2*p} offset1:{14*hl+2*p+1}')
    def rdwo(hl):
        for mt in range(2):
            for q in range(4):
                if q<3: e(f'ds_read_b64_tr_b16 {vr(WFR+8*mt+2*q,2)}, v{(vN0,vN1)[mt]} offset:{3584*hl+1024*q}')
                else: e(f'ds_read_b64_tr_b16 {vr(WFR+8*mt+6,2)}, v{(vS0,vS1)[mt]} offset:{3584*hl+3072}')
    def num(hl):
        for s in range(4): e(MF(NUM[hl&1],KF[hl&1]+4*s,PHI+16*hl+4*s,NUM[hl&1] if s else None))
    def fin(hl):
        N=NUM[hl&1]
        e(f'v_add_f32 v22, s56, v{N+14}\nv_rcp_f32 v22, v22')
        for j in range(0,14,2): e(f'v_pk_mul_f32 {vr(N+j,2)}, {vr(N+j,2)}, v[22:23] op_sel_hi:[1,0]')
        for j in range(7): e(f'v_cvt_pk_bf16_f32 v{OP+j}, v{N+2*j}, v{N+2*j+1}')
        e('s_waitcnt lgkmcnt(0)')
        for sp in range(2):
            for mt in range(2): e(MFo(mt,WFR+8*mt+4*sp,OP+4*sp,hl==0 and sp==0))
    for hl in range(8):
        if hl%2==0:
            e(f's_waitcnt vmcnt({45-15*(hl//2)})\ns_barrier')
        rdkv(hl)
        if hl>0: rdwo(hl-1)
        e('s_waitcnt lgkmcnt(%d)'%(8 if hl>0 else 0))
        num(hl)
        if hl>0: fin(hl-1)
    rdwo(7); fin(7)
    e(f'''s_lshl_b32 s53, s{sWV}, 12
    s_add_u32 s53, s53, 114688
    v_add_u32 v3, s53, v{vF16}
    s_xor_b32 s53, s53, 8192
    v_add_u32 v4, s53, v{vF16}
    s_cmp_eq_u32 s46, 0
    s_cbranch_scc1 K2_X0''')
    for q in range(4): e(f'ds_write_b128 v3, {vr(OUT0+4*q,4)} offset:{1024*q}')
    for j in range(16): e(f'v_accvgpr_read_b32 v{OUT0+j}, a{j}')
    e('s_branch K2_X1\nK2_X0:\ns_nop 4')
    for q in range(4): e(f'ds_write_b128 v3, a[{4*q}:{4*q+3}] offset:{1024*q}')
    e('K2_X1:')
    e(f'''s_lshl_b32 s51, s51, 5
    v_add_u32 v5, s51, v8
    v_mul_u32_u24 v5, 1792, v5
    v_lshl_add_u32 v5, v9, 4, v5
    s_lshl_b32 s54, s44, 7
    s_lshl_b32 s55, s46, 6
    s_add_u32 s54, s54, s55
    s_add_u32 s54, s54, 896
    s_waitcnt lgkmcnt(0)
    s_barrier''')
    for q in range(4): e(f'ds_read_b128 {vr(24+4*q,4)}, v4 offset:{1024*q}')
    st=OPT['st_out']
    for i in range(2):
        e(f's_waitcnt lgkmcnt({2-2*i})')
        for j in range(0,8,2): e(f'v_pk_add_f32 {vr(OUT0+8*i+j,2)}, {vr(OUT0+8*i+j,2)}, {vr(24+8*i+j,2)}')
        for j in range(4): e(f'v_cvt_pk_bf16_f32 v{56+4*i+j}, v{OUT0+8*i+2*j}, v{OUT0+8*i+2*j+1}')
        e(f'buffer_store_dwordx4 {vr(56+4*i,4)}, v5, s[{SO}:{SO+3}], s54 offen offset:{32*i} {st}')
    e('s_endpgm')
    e('K2_A:')
    e(f'''s_lshl_b32 s43, s41, 2
    s_add_u32 s43, s43, s42
    s_sub_u32 s43, s43, 28
    s_and_b32 s44, s43, 1
    s_lshr_b32 s43, s43, 1
    s_sub_u32 s45, 4, s44
    v_lshl_add_u32 v14, v13, 10, v12
    s_lshl_b32 s46, s43, 17
    s_lshl_b32 s47, s{sWV}, 15
    s_add_u32 s46, s46, s47
    s_lshl_b32 s47, s44, 9
    s_add_u32 s46, s46, s47
    s_lshl_b32 s47, s{sWV}, 12
    s_mov_b32 s48, 0
    s_waitcnt lgkmcnt(0)''')
    srd(A,SD,12,2<<20,AINT_OFF)
    e('K2A_LD:')
    e('s_mov_b32 m0, s47\ns_add_u32 s49, s46, 8192')
    e(f'buffer_load_dwordx4 v14, s[{SD}:{SD+3}], s46 offen lds')
    for n in range(1,4):
        e(f's_add_u32 m0, s47, {1024*n}\ns_nop 0')
        e(f'buffer_load_dwordx4 v14, s[{SD}:{SD+3}], s49 offen lds')
        if n<3: e('s_add_u32 s49, s49, 8192')
    e('''s_add_u32 s46, s46, 128
    s_add_u32 s47, s47, 16384
    s_add_u32 s48, s48, 1
    s_cmp_lt_u32 s48, s45
    s_cbranch_scc1 K2A_LD''')
    srd(A,SO,10,2048*1792)
    e(f'''s_lshr_b32 s56, s{sWV}, 1
    s_sub_u32 s57, 32, s43
    s_cmp_eq_u32 s56, 0
    s_cselect_b32 s50, s43, s57
    s_cselect_b32 s51, 0x80008000, 0
    s_cselect_b32 s52, 0, 0x80008000
    s_cselect_b32 s58, 0, 16
    s_cselect_b32 s59, 0, 8192
    s_cmp_eq_u32 s43, 0
    s_cselect_b32 s50, s58, s50
    s_cselect_b32 s53, 0, -1
    s_cselect_b32 s54, s59, 0
    s_mov_b32 s55, 8192
    s_and_b32 s56, s{sWV}, 1
    s_lshl_b32 s56, s56, 10
    s_add_u32 s50, s50, s56
    v_lshlrev_b32 v3, 5, v8
    v_add_u32 v15, s50, v3
    v_cvt_f32_u32 v4, v15
    v_mul_f32 v4, {f2u(1/2048)}, v4
    v_cvt_f32_u32 v5, v9
    v_mul_f32 v5, {f2u(8.0)}, v5
    v_mul_f32 v5, v4, v5
    v_mov_b32 v6, s53''')
    C,S,S2,C2=24,40,56,72; TT=88
    for ks in range(4):
        for j in range(8): e(f'v_fmamk_f32 v{TT+j}, v4, {f2u(16.*ks+j)}, v5')
        for j in range(8): e(f'v_sin_f32 v{TT+8+j}, v{TT+j}\nv_cos_f32 v{TT+j}, v{TT+j}')
        for j in range(4): e(f'v_cvt_pk_bf16_f32 v{C+4*ks+j}, v{TT+2*j}, v{TT+2*j+1}\nv_cvt_pk_bf16_f32 v{S+4*ks+j}, v{TT+8+2*j}, v{TT+8+2*j+1}')
    for j in range(16):
        e(f'v_bitop3_b32 v{S2+j}, v{S+j}, s51, v6 bitop3:0x28\nv_bitop3_b32 v{C2+j}, v{C+j}, s52, v6 bitop3:0x28')
    aR,aS,bS,bR=16,17,18,19
    e(f'''v_lshl_add_u32 v3, v9, 3, v10
    v_lshlrev_b32 v3, 7, v3
    v_lshrrev_b32 v4, 1, v10
    v_lshl_add_u32 v3, v4, 6, v3
    v_add_u32 v3, v3, v11
    v_add_u32 v{aR}, s54, v3
    v_add_u32 v{aS}, s55, v3
    v_xor_b32 v{bR}, 64, v{aR}
    v_xor_b32 v{bS}, 64, v{aS}''')
    e(f'''v_mul_u32_u24 v20, 1792, v15
    v_lshlrev_b32 v3, 4, v9
    v_sub_u32 v21, v20, v3
    v_add_u32 v20, v20, v3
    s_lshl_b32 s60, s44, 8
    s_sub_u32 s61, {882-32}, s60
    v_add_u32 v21, s61, v21
    s_mov_b32 s48, 0
    s_lshl_b32 s62, s44, 2''')
    FR=88; PA=152; QA=168; PX=184; PK=200
    e('K2A_LOOP:')
    e('''s_cmp_ge_u32 s48, 2
    s_cbranch_scc1 K2A_GO
    s_add_u32 s63, s44, s48
    s_cmp_eq_u32 s63, 0
    s_cbranch_scc0 K2A_W3
    s_waitcnt vmcnt(12)
    K2A_W3:
    s_cmp_eq_u32 s48, 0
    s_cbranch_scc0 K2A_W4
    s_cmp_eq_u32 s44, 0
    s_cbranch_scc1 K2A_W4
    s_waitcnt vmcnt(8)
    K2A_W4:
    s_barrier
    K2A_GO:''')
    srcs=[(aR,C,PA),(aS,S2,PA),(bS,C2,QA),(bR,S,QA)]
    seq=[(ks,q) for ks in range(4) for q in range(4)]
    def rdA(n):
        ks,q=seq[n]
        for jj in range(2): e(f'ds_read_b64_tr_b16 {vr(FR+4*n+2*jj,2)}, v{srcs[q][0]} offset:{2048*ks+512*jj}')
    for n in range(6): rdA(n)
    for n in range(16):
        if n+6<16: rdA(n+6); e('s_waitcnt lgkmcnt(12)')
        else: e(f's_waitcnt lgkmcnt({2*(15-n)})')
        ks,q=seq[n]
        first=(ks==0 and q in(0,2))
        e(MF(srcs[q][2],FR+4*n,srcs[q][1]+4*ks,None if first else srcs[q][2]))
    e('s_cmp_eq_u32 s48, 0\ns_cbranch_scc0 K2A_NW\ns_waitcnt vmcnt(0)\nK2A_NW:\ns_nop 7')
    e('s_cmp_eq_u32 s62, 0\ns_cbranch_scc0 K2A_NS')
    for ks in range(4):
        e(MF(PX,FR+4*(4*ks+3),C+4*ks,PX if ks else None)); e(MF(PX,FR+4*(4*ks+2),S2+4*ks,PX))
    e('s_mov_b32 exec_hi, 0')
    e(f'v_mov_b32 v{QA}, 0\nv_cvt_pk_bf16_f32 v{PX}, v{PX}, v{PX}')
    e(f'buffer_store_short v{PX}, v20, s[{SO}:{SO+3}], 0 offen offset:448')
    e('s_mov_b32 exec_hi, -1')
    e('K2A_NS:')
    for j in range(0,16,2):
        e(f'v_pk_add_f32 {vr(PX+j,2)}, {vr(PA+j,2)}, {vr(QA+j,2)}')
        e(f'v_pk_add_f32 {vr(PA+j,2)}, {vr(PA+j,2)}, {vr(QA+j,2)} neg_lo:[0,1] neg_hi:[0,1]')
    for j in range(8): e(f'v_cvt_pk_bf16_f32 v{PK+j}, v{PA+2*j}, v{PA+2*j+1}')
    for i in range(2):
        for n in range(4): e(f'v_cvt_pk_bf16_f32 v{PK+8+4*i+n}, v{PX+8*i+7-2*n}, v{PX+8*i+6-2*n}')
    for i in range(2): e(f'buffer_store_dwordx4 {vr(PK+4*i,4)}, v20, s[{SO}:{SO+3}], s60 offen offset:{32*i} {st}')
    e(f'buffer_store_dwordx4 {vr(PK+12,4)}, v21, s[{SO}:{SO+3}], 0 offen {st}')
    e('s_cmp_eq_u32 s62, 0\ns_cbranch_scc1 K2A_SP2')
    e(f'buffer_store_dwordx4 {vr(PK+8,4)}, v21, s[{SO}:{SO+3}], 0 offen offset:32 {st}')
    e('s_branch K2A_NX\nK2A_SP2:')
    e('s_mov_b32 exec_lo, 0')
    e(f'buffer_store_dwordx4 {vr(PK+8,4)}, v21, s[{SO}:{SO+3}], 0 offen offset:32 {st}')
    e('s_mov_b32 exec_lo, -1\ns_mov_b32 exec_hi, 0')
    e(f'buffer_store_dwordx3 {vr(PK+8,3)}, v21, s[{SO}:{SO+3}], 0 offen offset:32')
    e(f'buffer_store_short v{PK+11}, v21, s[{SO}:{SO+3}], 0 offen offset:44')
    e('s_mov_b32 exec_hi, -1')
    e('K2A_NX:')
    for r in (aR,aS,bS,bR): e(f'v_add_u32 v{r}, 16384, v{r}')
    e('''v_subrev_u32 v21, 64, v21
    s_add_u32 s60, s60, 64
    s_add_u32 s62, s62, 1
    s_add_u32 s48, s48, 1
    s_cmp_lt_u32 s48, s45
    s_cbranch_scc1 K2A_LOOP''')
    e('K2_END:\ns_endpgm')

def desc(name,vgpr,sgpr,acc):
    return f'''.amdhsa_kernel {name}
  .amdhsa_next_free_vgpr {vgpr}
  .amdhsa_next_free_sgpr {sgpr}
  .amdhsa_accum_offset {acc}
  .amdhsa_group_segment_fixed_size 0
  .amdhsa_kernarg_size 96
  .amdhsa_user_sgpr_count 2
  .amdhsa_user_sgpr_kernarg_segment_ptr 1
  .amdhsa_system_sgpr_workgroup_id_x 1
.end_amdhsa_kernel
'''
def main():
    A1=Asm(); k1(A1); A2=Asm(); k2(A2)
    assert A1.verify_branches()==0 and A2.verify_branches()==0
    v1=A1.maxreg('v')+1; v2=A2.maxreg('v')+1; a2=A2.maxreg('a')+1
    r4=lambda x:(x+3)//4*4
    hdr=open('concat_heads__spectral_fnet__linear_kernel_hedgehog__prompt.s.ref').read().split('; Override')[0]
    out=hdr+'; @launch kernel=k1_kernel grid=(256,1,1) block=(512,1,1) lds=139264\n; @launch kernel=k2_kernel grid=(256,1,1) block=(256,1,1) lds=131072\n'
    out+='.amdgcn_target "amdgcn-amd-amdhsa--gfx950"\n.text\n'
    for n,A in (('k1_kernel',A1),('k2_kernel',A2)):
        out+=f'.globl {n}\n.p2align 8\n.type {n},@function\n'+A.text()
    out+='.section .rodata,"a"\n.p2align 6\n'+desc('k1_kernel',v1,96,r4(v1))+'.p2align 6\n'+desc('k2_kernel',r4(v2)+a2,96,r4(v2))
    open(sys.argv[1],'w').write(out)
    print('k1 vgpr',v1,'k2 vgpr',v2,'agpr',a2, 'k1 sgpr',A1.maxreg('s')+1,'k2 sgpr',A2.maxreg('s')+1)
main()
```

```python
import sys, math
from asmlib import *

PHIQ_OFF=0; KV_OFF=0x400000; AINT_OFF=0x500000
LOG2E=1.4426950408889634
OPT=dict(st_phi='', st_aint='', st_out='', prof=0)
for a in sys.argv[2:]:
    k,v=a.split('='); OPT[k]=int(v) if v.lstrip('-').isdigit() else v

def srd(A,d,base,nbytes,off=0):
    if off:
        A.e(f's_add_u32 s{d}, s{base}, {hex(off)}\ns_addc_u32 s{d+1}, s{base+1}, 0')
    else:
        A.e(f's_mov_b32 s{d}, s{base}\ns_mov_b32 s{d+1}, s{base+1}')
    A.e(f's_mov_b32 s{d+2}, {hex(nbytes)}\ns_mov_b32 s{d+3}, 0x20000')

NST=[0]
def stamp(A,i):
    if OPT['prof']: A.e(f's_memrealtime s[{80+2*i}:{81+2*i}]')
def dump(A,role,slots,dbgptr,wave=0):
    if not OPT['prof'] or OPT['prof']!=role: return
    NST[0]+=1; L=f'PD{NST[0]}'
    A.e(f's_memrealtime s[{80+2*7}:{81+2*7}]\ns_waitcnt vmcnt(0) lgkmcnt(0)\ns_memrealtime s[{80+2*8}:{81+2*8}]\ns_waitcnt lgkmcnt(0)')
    A.e(f's_cmp_eq_u32 s40, {wave}\ns_cbranch_scc0 {L}')
    A.e(f's_mov_b32 s72, s{dbgptr}\ns_mov_b32 s73, s{dbgptr+1}\ns_mov_b32 s74, 256\ns_mov_b32 s75, 0x20000\ns_mov_b64 exec, 1')
    for (i,w,neg) in slots:
        if neg: A.e(f's_not_b32 s76, s{80+2*i}\nv_mov_b32 v0, s76')
        else: A.e(f'v_mov_b32 v0, s{80+2*i}')
        A.e(f'buffer_atomic_umax v0, off, s[72:75], 0 offset:{4*w}\ns_waitcnt vmcnt(0)')
    A.e(f'{L}:')
def MF(d,a,b,c=None):
    cc='0' if c is None else vr(c,16)
    return f'v_mfma_f32_32x32x16_bf16 {vr(d,16)}, {vr(a,4)}, {vr(b,4)}, {cc}'

def k1(A):
    e=A.e
    SX,SW,SP,SWS,SDB=20,24,28,32,36
    sWV=40
    e('k1_kernel:')
    e('s_cmp_ge_u32 s2, 256\ns_cbranch_scc1 K1_END')
    stamp(A,0)
    e('s_load_dwordx8 s[8:15], s[0:1], 40\ns_load_dwordx4 s[16:19], s[0:1], 80\ns_load_dwordx2 s[4:5], s[0:1], 0')
    e('v_and_b32 v1, 63, v0\nv_lshrrev_b32 v2, 6, v0')
    e('s_and_b32 s41, s2, 7\ns_lshr_b32 s42, s2, 3')
    e(f'v_readfirstlane_b32 s{sWV}, v2')
    e('s_cmp_ge_u32 s42, 24\ns_cbranch_scc1 K1_A')
    e('''s_and_b32 s43, s42, 1
    s_lshl_b32 s41, s41, 1
    s_add_u32 s43, s43, s41
    s_lshr_b32 s50, s42, 1
    s_cmp_ge_u32 s42, 16
    s_cselect_b32 s44, 1, 0
    s_cselect_b32 s46, 0, 784
    s_cselect_b32 s47, 112, 56
    s_cselect_b32 s48, 56, 112
    s_cselect_b32 s51, 224, 112
    s_cselect_b32 s52, 0, 896
    s_and_b32 s50, s50, 7
    s_mul_i32 s45, s50, s51
    s_add_u32 s45, s45, s52
    s_add_u32 s53, s44, 1
    s_lshl_b32 s49, s50, s53''')
    vX0,vX1,vW,vP=10,11,12,13
    vRX=14; vRW0,vRW1=18,19
    XF,WF0,WF1=20,36,52
    ACC0,ACC1=68,84
    WPH=100; WT=116
    e(f'''v_lshrrev_b32 v3, 3, v1
    v_lshl_add_u32 v3, v2, 4, v3
    v_lshrrev_b32 v4, 4, v1
    v_and_b32 v5, 7, v1
    v_xor_b32 v5, v5, v4
    v_lshlrev_b32 v5, 4, v5
    v_mul_u32_u24 v3, 896, v3
    v_add_u32 v{vX0}, v3, v5
    v_xor_b32 v{vX1}, 64, v{vX0}
    v_add_u32 v{vX1}, {8*896}, v{vX1}''')
    e(f'''v_and_b32 v5, 15, v1
    v_lshlrev_b32 v6, 2, v4
    v_xor_b32 v5, v5, v6
    v_min_u32 v5, 13, v5
    v_lshl_add_u32 v6, v2, 3, v4
    v_mul_u32_u24 v6, 2688, v6
    v_lshl_add_u32 v6, v5, 4, v6
    v_mov_b32 v7, s46
    v_cmp_lt_u32 vcc, 6, v5
    v_cndmask_b32 v7, 0, v7, vcc
    v_add3_u32 v{vW}, v6, v7, s45
    v_lshlrev_b32 v{vP}, 4, v0''')
    e(f'''s_mul_i32 s54, s43, {128*896}
    s_mov_b32 s55, 0
    s_lshl_b32 s56, s{sWV}, 11
    s_mul_i32 s57, s49, 1568
    s_lshl_b32 s58, s{sWV}, 10
    s_add_u32 m0, s58, 131072
    s_mov_b32 s59, 0''')
    e('s_waitcnt lgkmcnt(0)')
    stamp(A,1)
    srd(A,SP,12,16*1568); srd(A,SX,8,2048*896); srd(A,SW,10,448*2688)
    e(f'buffer_load_dwordx4 v{vP}, s[{SP}:{SP+3}], s57 offen lds')
    def issue():
        e(f'''s_mov_b32 m0, s56
        s_add_u32 s60, s55, {4*2688}
        buffer_load_dwordx4 v{vX0}, s[{SX}:{SX+3}], s54 offen lds
        s_add_u32 m0, s56, 1024
        s_nop 0
        buffer_load_dwordx4 v{vX1}, s[{SX}:{SX+3}], s54 offen lds
        s_add_u32 m0, s56, 16384
        s_add_u32 s54, s54, 128
        buffer_load_dwordx4 v{vW}, s[{SW}:{SW+3}], s55 offen lds
        s_add_u32 m0, s56, 17408
        s_add_u32 s55, s55, {64*2688}
        buffer_load_dwordx4 v{vW}, s[{SW}:{SW+3}], s60 offen lds
        s_add_u32 s56, s56, 32768
        s_and_b32 s56, s56, 0x1ffff''')
    e('K1_PRE:')
    issue()
    e('s_add_u32 s59, s59, 1\ns_cmp_lt_u32 s59, 4\ns_cbranch_scc1 K1_PRE')
    srd(A,SDB,16,256)
    e(f'''s_cmp_eq_u32 s44, 1
    s_cselect_b32 s60, {PHIQ_OFF}, {KV_OFF}
    s_cselect_b32 s{SWS+2}, {64*16*3584}, {16*3584}
    s_add_u32 s{SWS}, s18, s60
    s_addc_u32 s{SWS+1}, s19, 0
    s_mov_b32 s{SWS+3}, 0x20000''')
    e(f'''v_and_b32 v3, 3, v2
    v_and_b32 v4, 31, v1
    v_lshl_add_u32 v8, v3, 5, v4
    v_lshrrev_b32 v9, 5, v1
    v_bfe_u32 v5, v8, 1, 3
    v_xor_b32 v5, v5, v9
    v_lshlrev_b32 v5, 4, v5
    v_lshl_add_u32 v{vRX}, v8, 7, v5''')
    e(f'''v_bfe_u32 v3, v1, 4, 1
    v_and_b32 v4, 3, v1
    v_lshl_add_u32 v3, v3, 2, v4
    v_min_u32 v3, 6, v3
    v_lshrrev_b32 v5, 2, v2
    v_mul_u32_u24 v5, s47, v5
    v_lshl_add_u32 v3, v3, 3, v5
    v_bfe_u32 v4, v1, 2, 2
    v_lshl_add_u32 v5, v9, 3, v4
    v_lshlrev_b32 v5, 8, v5
    v_add_u32 v5, 16384, v5
    v_lshlrev_b32 v4, 6, v4
    v_xor_b32 v6, v3, v4
    v_add_u32 v{vRW0}, v5, v6
    v_add_u32 v3, s48, v3
    v_xor_b32 v6, v3, v4
    v_add_u32 v{vRW1}, v5, v6''')
    e(f'''v_and_b32 v3, 3, v1
    v_bfe_u32 v4, v1, 3, 2
    v_lshl_add_u32 v3, v4, 2, v3
    v_min_u32 v3, 13, v3
    v_bfe_u32 v4, v1, 2, 1
    v_mad_u32_u24 v3, v4, 14, v3
    v_lshlrev_b32 v3, 1, v3
    v_mul_u32_u24 v4, 224, v9
    v_lshrrev_b32 v5, 2, v2
    v_lshlrev_b32 v5, s44, v5
    v_mul_u32_u24 v5, 1568, v5
    v_add3_u32 v3, v3, v4, v5
    v_add_u32 v{vP}, 131072, v3''')
    for i in range(16):
        e(f'v_mov_b32 v{ACC0+i}, 0\nv_mov_b32 v{ACC1+i}, 0')
    e('s_mov_b32 s59, 0')
    stamp(A,2)
    e('s_waitcnt vmcnt(12)')
    stamp(A,3)
    e('K1_LOOP:')
    e('s_barrier')
    for ks in range(1,4): e(f'v_xor_b32 v{vRX+ks}, {32*ks}, v{vRX}')
    def rd(ks):
        e(f'ds_read_b128 {vr(XF+4*ks,4)}, v{vRX+ks}')
        for (WF,ad) in ((WF0,vRW0),(WF1,vRW1)):
            for jj in range(2):
                e(f'ds_read_b64_tr_b16 {vr(WF+4*ks+2*jj,2)}, v{ad} offset:{4096*ks+1024*jj}')
    def mm(ks):
        e(MF(ACC0,WF0+4*ks,XF+4*ks,ACC0)); e(MF(ACC1,WF1+4*ks,XF+4*ks,ACC1))
    rd(0); rd(1)
    e('s_sub_u32 s60, s59, 1\ns_cmp_lt_u32 s60, 3\ns_cbranch_scc0 K1_NOISS')
    issue()
    e('K1_NOISS:')
    e('s_waitcnt lgkmcnt(5)'); mm(0); rd(2)
    e('s_waitcnt lgkmcnt(5)'); mm(1); rd(3)
    e('s_waitcnt lgkmcnt(5)'); mm(2)
    e('s_waitcnt lgkmcnt(0)'); mm(3)
    for r in (vRX,vRW0,vRW1):
        e(f'v_add_u32 v{r}, 32768, v{r}\nv_and_b32 v{r}, 0x1ffff, v{r}')
    e('s_cmp_eq_u32 s59, 4\ns_cbranch_scc0 K1_NOWP')
    for u in range(2):
        for a in range(4):
            for uu in range(4):
                e(f'ds_read_u16 v{WT+16*u+4*a+uu}, v{vP} offset:{1568*u+(8*a+uu)*56}')
        e('s_waitcnt lgkmcnt(0)')
        for j in range(8):
            e(f'v_lshl_or_b32 v{WPH+8*u+j}, v{WT+16*u+2*j+1}, 16, v{WT+16*u+2*j}')
    e('v_cmp_gt_u32 vcc, 32, v1')
    for u in range(2):
        for j in (6,7): e(f'v_cndmask_b32 v{WPH+8*u+j}, 0, v{WPH+8*u+j}, vcc')
    e('K1_NOWP:')
    e('''s_add_u32 s59, s59, 1
    s_cmp_lt_u32 s59, 5
    s_cbranch_scc0 K1_W2
    s_waitcnt vmcnt(8)
    s_branch K1_LOOP
    K1_W2:
    s_cmp_eq_u32 s59, 5
    s_cbranch_scc0 K1_W3
    s_waitcnt vmcnt(4)
    s_branch K1_LOOP
    K1_W3:
    s_waitcnt vmcnt(0)
    s_cmp_eq_u32 s59, 6
    s_cbranch_scc1 K1_LOOP''')
    QB=20; T2=28; P=36; EP=52; EN=66; PH=80
    vFL=132; vSA=133; vSB=134
    TM=120
    stamp(A,4)
    e(f'buffer_load_dword v{vFL}, off, s[{SDB}:{SDB+3}], 0 sc1')
    e(f's_mov_b32 s62, {f2u(LOG2E)}\ns_mov_b32 s61, 0')
    e(f'''s_and_b32 s63, s{sWV}, 3
    s_lshl_b32 s64, s43, 2
    s_add_u32 s63, s63, s64
    s_lshl_b32 s63, s63, 4
    s_lshr_b32 s64, s{sWV}, 2
    s_lshl_b32 s65, s64, 1
    s_add_u32 s63, s63, s65
    s_add_u32 s63, s63, s49
    s_mul_i32 s63, s63, 3584
    v_lshlrev_b32 v{vSA}, 4, v1
    v_lshlrev_b32 v{vSB}, 3, v1''')
    for j in range(8): e(f'v_cvt_pk_bf16_f32 v{QB+j}, v{ACC0+2*j}, v{ACC0+2*j+1}')
    for j in range(8): e(f'v_cvt_pk_bf16_f32 v{T2+j}, v{ACC1+2*j}, v{ACC1+2*j+1}')
    e('K1_UNIT:')
    e(MF(P,WPH,QB)); e(MF(P,WPH+4,QB+4,P))
    mx,nm,t0,t1=TM,TM+1,TM+2,TM+3
    e(f'v_max3_f32 v{mx}, v{P}, v{P+1}, v{P+2}\nv_min3_f32 v{nm}, v{P}, v{P+1}, v{P+2}')
    for j in range(3,13,2):
        e(f'v_max3_f32 v{mx}, v{mx}, v{P+j}, v{P+j+1}\nv_min3_f32 v{nm}, v{nm}, v{P+j}, v{P+j+1}')
    e(f'v_max_f32 v{mx}, v{mx}, v{P+13}\nv_min_f32 v{nm}, v{nm}, v{P+13}')
    e(f'v_mul_f32 v{mx}, s62, v{mx}\nv_mul_f32 v{nm}, s62, v{nm}\nv_sub_f32 v{nm}, 0, v{nm}')
    e(f'v_permlane32_swap_b32 v{mx}, v{nm}')
    e(f'v_max_f32 v{t0}, v{mx}, v{nm}\nv_max_f32 v{t1}, v{mx}, v{nm}')
    e(f'v_permlane32_swap_b32 v{t0}, v{t1}')
    for j in range(0,14,2):
        e(f'v_pk_fma_f32 {vr(EP+j,2)}, {vr(P+j,2)}, s[62:63], {vr(t0,2)} op_sel_hi:[1,0,0] neg_lo:[0,0,1] neg_hi:[0,0,1]')
        e(f'v_pk_fma_f32 {vr(EN+j,2)}, {vr(P+j,2)}, s[62:63], {vr(t0,2)} op_sel:[0,0,1] op_sel_hi:[1,0,1] neg_lo:[0,1,1] neg_hi:[0,1,1]')
    for j in range(14):
        e(f'v_exp_f32 v{EP+j}, v{EP+j}\nv_exp_f32 v{EN+j}, v{EN+j}')
    sp,sn=TM+4,TM+6
    e(f'v_pk_add_f32 {vr(sp,2)}, {vr(EP,2)}, {vr(EP+2,2)}\nv_pk_add_f32 {vr(sn,2)}, {vr(EN,2)}, {vr(EN+2,2)}')
    for j in range(4,14,2):
        e(f'v_pk_add_f32 {vr(sp,2)}, {vr(sp,2)}, {vr(EP+j,2)}\nv_pk_add_f32 {vr(sn,2)}, {vr(sn,2)}, {vr(EN+j,2)}')
    e(f'v_add_f32 v{mx}, v{sp}, v{sp+1}\nv_add_f32 v{nm}, v{sn}, v{sn+1}')
    e(f'v_permlane32_swap_b32 v{mx}, v{nm}')
    e(f'v_add_f32 v{t0}, v{mx}, v{nm}')
    e(f'v_rcp_f32 v{t0}, v{t0}')
    e(f'v_mov_b32 v{t1}, v{t0}')
    e(f'v_permlane32_swap_b32 v{t0}, v{t1}')
    for j in range(0,14,2):
        e(f'v_pk_mul_f32 {vr(EP+j,2)}, {vr(EP+j,2)}, {vr(t0,2)} op_sel_hi:[1,0]')
        e(f'v_pk_mul_f32 {vr(EN+j,2)}, {vr(EN+j,2)}, {vr(t0,2)} op_sel:[0,1] op_sel_hi:[1,1]')
    for j in range(7): e(f'v_cvt_pk_bf16_f32 v{PH+j}, v{EP+2*j}, v{EP+2*j+1}')
    for j in range(7): e(f'v_cvt_pk_bf16_f32 v{PH+7+j}, v{EN+2*j}, v{EN+2*j+1}')
    e('s_cmp_eq_u32 s44, 0\ns_cbranch_scc1 K1_KV')
    st=OPT['st_phi']
    for c in range(3): e(f'buffer_store_dwordx4 {vr(PH+4*c,4)}, v{vSA}, s[{SWS}:{SWS+3}], s63 offen offset:{1024*c} {st}')
    e(f'buffer_store_dwordx2 {vr(PH+12,2)}, v{vSB}, s[{SWS}:{SWS+3}], s63 offen offset:3072 {st}')
    if OPT['prof']==2:
        e('s_cmp_eq_u32 s61, 1\ns_cbranch_scc0 K1_Q2')
        dump(A,2,[(0,1,1),(0,2,0),(1,3,0),(3,4,0),(4,5,0),(5,6,0),(7,7,0),(8,8,0)],16)
        e('s_endpgm\nK1_Q2:')
        stamp(A,5)
    e('s_cmp_eq_u32 s61, 1\ns_cbranch_scc1 K1_END')
    for j in range(8): e(f'v_mov_b32 v{QB+j}, v{T2+j}\nv_mov_b32 v{WPH+j}, v{WPH+8+j}')
    e('s_mov_b32 s61, 1\ns_add_u32 s63, s63, 3584\ns_branch K1_UNIT')
    e('K1_KV:')
    stamp(A,5)
    e(f'''v_mov_b32 v3, 0x3f80
    v_cmp_gt_u32 vcc, 32, v1
    v_cndmask_b32 v{T2+6}, v3, v{T2+6}, vcc
    v_cndmask_b32 v{T2+7}, v3, v{T2+7}, vcc''')
    e(f'''s_mul_i32 s65, s64, 98304
    v_mul_u32_u24 v3, 192, v8
    v_bfe_u32 v4, v8, 1, 2
    v_lshlrev_b32 v5, 1, v9
    v_xor_b32 v4, v4, v5
    v_lshl_add_u32 v3, v4, 4, v3
    v_add_u32 v3, s65, v3
    v_xor_b32 v4, 16, v3''')
    e(f'v_permlane32_swap_b32 v{T2+6}, v{T2+7}')
    e(f'''ds_write_b128 v3, {vr(PH,4)}
    ds_write_b128 v4, {vr(PH+4,4)}
    ds_write_b128 v3, {vr(PH+8,4)} offset:64
    ds_write_b64 v4, {vr(PH+12,2)} offset:64
    ds_write_b128 v3, {vr(T2,4)} offset:128
    ds_write_b128 v4, {vr(T2+4,4)} offset:128''')
    e(f'''s_lshr_b32 s66, s{sWV}, 1
    s_and_b32 s67, s{sWV}, 1
    s_mul_i32 s65, s66, 98304
    s_lshl_b32 s68, s67, 6
    v_bfe_u32 v3, v1, 2, 2
    v_lshl_add_u32 v4, v9, 3, v3
    v_mul_u32_u24 v4, 192, v4
    v_and_b32 v5, 1, v1
    v_bfe_u32 v6, v1, 4, 1
    v_lshl_add_u32 v5, v5, 1, v6
    v_lshrrev_b32 v3, 1, v3
    v_xor_b32 v5, v5, v3
    v_lshl_add_u32 v4, v5, 4, v4
    v_bfe_u32 v5, v1, 1, 1
    v_lshl_add_u32 v4, v5, 3, v4
    v_add_u32 v4, s65, v4
    v_xor_b32 v5, 32, v4
    v_add_u32 v6, s68, v4
    v_add_u32 v7, s68, v5''')
    e('s_waitcnt lgkmcnt(0)\ns_barrier')
    e(f's_cmp_ge_u32 s{sWV}, 4\ns_cbranch_scc1 K1_END')
    FA,FB,KA=20,52,84
    for ks in range(8):
        e(f'ds_read_b64_tr_b16 {vr(FA+4*ks,2)}, v6 offset:{3072*ks}')
        e(f'ds_read_b64_tr_b16 {vr(FA+4*ks+2,2)}, v7 offset:{3072*ks+768}')
        e(f'ds_read_b64_tr_b16 {vr(FB+4*ks,2)}, v4 offset:{3072*ks+128}')
        e(f'ds_read_b64_tr_b16 {vr(FB+4*ks+2,2)}, v5 offset:{3072*ks+768+128}')
        if ks>=2:
            e('s_waitcnt lgkmcnt(8)'); e(MF(KA,FA+4*(ks-2),FB+4*(ks-2),KA if ks>2 else None))
    e('s_waitcnt lgkmcnt(4)'); e(MF(KA,FA+24,FB+24,KA))
    e('s_waitcnt lgkmcnt(0)'); e(MF(KA,FA+28,FB+28,KA))
    e(f'''s_add_u32 s65, s49, s66
    s_mul_i32 s65, s65, 3584
    s_lshl_b32 s68, s67, 11
    s_add_u32 s65, s65, s68
    v_lshlrev_b32 v3, 2, v1''')
    e('s_mov_b32 s70, 0\nK1_POLL:\ns_waitcnt vmcnt(0)')
    e(f'v_readfirstlane_b32 s69, v{vFL}')
    e('s_cmp_ge_u32 s69, 64\ns_cbranch_scc1 K1_GO\ns_add_u32 s70, s70, 1\ns_cmp_ge_u32 s70, 0x40000\ns_cbranch_scc1 K1_GO\ns_sleep 2')
    e(f'buffer_load_dword v{vFL}, off, s[{SDB}:{SDB+3}], 0 sc1')
    e('s_branch K1_POLL\nK1_GO:\ns_nop 1')
    for j in range(8): e(f'v_cvt_pk_bf16_f32 v{FA+j}, v{KA+2*j}, v{KA+2*j+1}')
    for j in range(6): e(f'buffer_atomic_pk_add_bf16 v{FA+j}, v3, s[{SWS}:{SWS+3}], s65 offen offset:{256*j}')
    e('s_cmp_eq_u32 s67, 1\ns_cbranch_scc1 K1_END')
    for j in range(6,8): e(f'buffer_atomic_pk_add_bf16 v{FA+j}, v3, s[{SWS}:{SWS+3}], s65 offen offset:{256*j}')
    dump(A,1,[(0,1,1),(0,2,0),(1,3,0),(3,4,0),(4,5,0),(5,6,0),(7,7,0),(8,8,0)],16)
    e('s_endpgm')
    e('K1_A:')
    e(f'''s_lshl_b32 s43, s41, 3
    s_add_u32 s43, s43, s42
    s_sub_u32 s43, s43, 24
    s_lshl_b32 s44, s{sWV}, 8
    s_add_u32 s44, s44, s43
    s_mul_i32 s44, s44, 896
    s_mul_i32 s45, s{sWV}, {4*960}
    v_lshlrev_b32 v3, 4, v1
    s_mov_b32 m0, s45
    s_waitcnt lgkmcnt(0)''')
    stamp(A,1)
    srd(A,SX,4,2048*896)
    e('s_mov_b32 exec_hi, 0x00ffffff')
    for i in range(4):
        if i: e(f's_add_u32 m0, s45, {960*i}\ns_add_u32 s44, s44, {64*896}')
        e(f'buffer_load_dwordx4 v3, s[{SX}:{SX+3}], s44 offen lds')
    srd(A,SWS,18,16*3584,KV_OFF); srd(A,SDB,16,256)
    VL=32768; OL=73728
    e('s_mov_b32 exec_hi, -1\nv_and_b32 v8, 31, v1\nv_lshrrev_b32 v9, 5, v1')
    e(f'''v_mul_u32_u24 v10, {8*2560}, v9
    v_mul_u32_u24 v16, 80, v8
    v_add_u32 v10, v16, v10
    v_lshl_add_u32 v10, v2, 3, v10
    v_add_u32 v10, {VL}, v10''')
    e(f's_cmp_eq_u32 s{sWV}, 7\ns_cbranch_scc0 K1A_GEN')
    e(f'''v_mov_b32 v12, 0
    v_mov_b32 v13, 0
    v_mov_b32 v14, 0
    v_mov_b32 v15, 0
    s_mul_i32 s46, s43, 896
    s_mov_b32 exec_hi, 0x00ffffff
    buffer_store_dwordx4 v[12:15], v3, s[{SWS}:{SWS+3}], s46 offen sc1
    s_mov_b32 exec_hi, -1''')
    for r in range(8): e(f'ds_write_b64 v10, v[12:13] offset:{2560*r}')
    e(f'''v_mov_b32 v14, 1
    s_waitcnt vmcnt(0)
    s_mov_b64 exec, 1
    buffer_atomic_add v14, off, s[{SDB}:{SDB+3}], 0 sc1
    s_mov_b64 exec, -1''')
    e('K1A_GEN:')
    FF=20; HH=28; CP=32; SPn=40; A2=48; B2=56; TT=64
    e(f'''v_lshrrev_b32 v4, 1, v8
    v_and_b32 v5, 1, v8
    v_cvt_f32_u32 v5, v5
    v_mul_f32 v5, {f2u(-0.25)}, v5
    v_cmp_eq_u32 vcc, 1, v8
    v_cndmask_b32 v4, v4, 16, vcc
    v_cndmask_b32 v5, v5, 0, vcc
    v_cvt_f32_u32 v4, v4
    v_mul_f32 v4, {f2u(1/32)}, v4
    v_cvt_f32_u32 v11, v9
    v_mul_f32 v12, 4.0, v11
    v_add_f32 v11, v12, v12
    v_fma_f32 v5, v4, v11, v5''')
    for ks in range(2):
        for j in range(8): e(f'v_fmamk_f32 v{TT+8*ks+j}, v4, {f2u(16.*ks+j)}, v5')
    for j in range(16): e(f'v_cos_f32 v{TT+j}, v{TT+j}')
    for j in range(8): e(f'v_cvt_pk_bf16_f32 v{FF+j}, v{TT+2*j}, v{TT+2*j+1}')
    e(f'''v_bfe_u32 v4, v8, 2, 1
    v_bfe_u32 v5, v8, 3, 1
    v_lshl_add_u32 v4, v4, 1, v5
    v_bfe_u32 v5, v8, 1, 1
    v_lshl_add_u32 v4, v4, 1, v5
    v_and_b32 v5, 1, v8
    v_cvt_f32_u32 v5, v5
    v_mul_f32 v5, {f2u(-0.25)}, v5
    v_and_b32 v6, 15, v8
    v_cmp_eq_u32 vcc, 1, v6
    v_cndmask_b32 v4, v4, 8, vcc
    v_cndmask_b32 v5, v5, 0, vcc
    v_cvt_f32_u32 v4, v4
    v_mul_f32 v4, {f2u(1/16)}, v4
    v_fma_f32 v5, v4, v12, v5''')
    for j in range(8): e(f'v_fmamk_f32 v{TT+j}, v4, {f2u(8.*(j>>2)+(j&3))}, v5')
    for j in range(8): e(f'v_cos_f32 v{TT+j}, v{TT+j}')
    for j in range(4): e(f'v_cvt_pk_bf16_f32 v{HH+j}, v{TT+2*j}, v{TT+2*j+1}')
    e(f'''s_cmp_eq_u32 s{sWV}, 0
    s_cselect_b32 s47, 8, s{sWV}
    s_sub_u32 s48, 0, s47
    v_lshrrev_b32 v4, 2, v8
    v_lshlrev_b32 v4, 5, v4
    v_and_b32 v5, 3, v8
    v_add_u32 v5, 1, v5
    v_lshrrev_b32 v5, 1, v5
    v_lshl_add_u32 v4, v5, 4, v4
    v_and_b32 v5, 1, v8
    v_cmp_eq_u32 vcc, 1, v5
    v_mov_b32 v6, s48
    v_cndmask_b32 v6, v2, v6, vcc
    v_add_u32 v4, v4, v6
    v_cvt_f32_u32 v4, v4
    v_mul_f32 v4, {f2u(1/448)}, v4
    v_mul_f32 v5, v4, v11''')
    for ks in range(2):
        for j in range(8): e(f'v_fmamk_f32 v{TT+8*ks+j}, v4, {f2u(16.*ks+j)}, v5')
    for j in range(16): e(f'v_sin_f32 v{TT+16+j}, v{TT+j}\nv_cos_f32 v{TT+j}, v{TT+j}')
    for j in range(8): e(f'v_cvt_pk_bf16_f32 v{CP+j}, v{TT+2*j}, v{TT+2*j+1}\nv_cvt_pk_bf16_f32 v{SPn+j}, v{TT+16+2*j}, v{TT+16+2*j+1}')
    e(f's_cmp_eq_u32 s{sWV}, 0\ns_cbranch_scc1 K1A_SPEC')
    e('''v_mov_b32 v4, 0x80008000
    v_cndmask_b32 v5, v4, 0, vcc
    v_cndmask_b32 v6, 0, v4, vcc''')
    for j in range(8): e(f'v_xor_b32 v{A2+j}, v5, v{SPn+j}\nv_xor_b32 v{B2+j}, v6, v{CP+j}')
    e('s_branch K1A_ST1\nK1A_SPEC:')
    for j in range(8):
        e(f'''v_cndmask_b32 v{A2+j}, 0, v{CP+j}, vcc
        v_cndmask_b32 v{B2+j}, 0, v{SPn+j}, vcc
        v_cndmask_b32 v{CP+j}, v{CP+j}, 0, vcc
        v_cndmask_b32 v{SPn+j}, v{SPn+j}, 0, vcc''')
    e('v_mov_b32 v4, 0xbf803f80\nv_cmp_eq_u32 vcc, 0, v8')
    for j in range(8): e(f'v_cndmask_b32 v{SPn+j}, v{SPn+j}, v4, vcc')
    e('K1A_ST1:')
    e(f'''v_bfe_u32 v4, v1, 2, 2
    v_lshl_add_u32 v4, v9, 3, v4
    v_mul_u32_u24 v4, 960, v4
    v_and_b32 v5, 1, v1
    v_bfe_u32 v6, v1, 4, 1
    v_lshl_add_u32 v5, v5, 1, v6
    v_bfe_u32 v6, v1, 1, 1
    v_lshl_add_u32 v5, v5, 1, v6
    v_mad_u32_u24 v4, v5, 56, v4
    v_lshl_add_u32 v4, v2, 3, v4''')
    e(f'''v_mul_u32_u24 v13, 5120, v2
    v_add_u32 v13, v16, v13
    v_lshl_add_u32 v13, v9, 4, v13
    v_add_u32 v13, {VL}, v13
    v_mul_u32_u24 v14, 1032, v8
    v_lshl_add_u32 v14, v9, 7, v14
    v_add_u32 v14, {OL}, v14
    s_lshl_b32 s48, s48, 1
    v_add_u32 v15, s48, v14
    v_lshl_add_u32 v14, v2, 1, v14''')
    stamp(A,3)
    e('s_waitcnt vmcnt(0) lgkmcnt(0)\ns_barrier')
    stamp(A,4)
    e(f's_cmp_eq_u32 s{sWV}, 7\ns_cbranch_scc1 K1A_B2')
    XA=64; U0=80; U1=96; BO=112; VU=128
    for dh in range(2):
        for ks in range(2):
            for jj in range(2):
                e(f'ds_read_b64_tr_b16 {vr(XA+8*dh+4*ks+2*jj,2)}, v4 offset:{15360*ks+3840*jj+448*dh}')
    e('s_waitcnt lgkmcnt(4)')
    e(MF(U0,XA,FF)); e(MF(U0,XA+4,FF+4,U0))
    e('s_waitcnt lgkmcnt(0)')
    e(MF(U1,XA+8,FF)); e(MF(U1,XA+12,FF+4,U1))
    for u in range(4):
        e(f'v_cvt_pk_bf16_f32 v{BO+4*u}, v{U0+u}, v{U0+4+u}\nv_cvt_pk_bf16_f32 v{BO+4*u+1}, v{U0+8+u}, v{U0+12+u}')
    for u in range(4):
        e(f'v_cvt_pk_bf16_f32 v{BO+4*u+2}, v{U1+u}, v{U1+4+u}\nv_cvt_pk_bf16_f32 v{BO+4*u+3}, v{U1+8+u}, v{U1+12+u}')
    for u in range(4): e(MF(VU+16*u,HH,BO+4*u))
    for r in range(8):
        e(f'v_cvt_pk_bf16_f32 v{XA+2*r}, v{VU+r}, v{VU+16+r}')
    for r in range(8):
        e(f'v_cvt_pk_bf16_f32 v{XA+2*r+1}, v{VU+32+r}, v{VU+48+r}')
        e(f'ds_write_b64 v10, {vr(XA+2*r,2)} offset:{2560*r}')
    e('K1A_B2:\ns_waitcnt lgkmcnt(0)\ns_barrier')
    for ks in range(4): e(f'ds_read_b128 {vr(XA+4*ks,4)}, v13 offset:{32*(ks&1)+2560*(ks>>1)}')
    GA=[CP,CP+4,A2,A2+4]; GB=[SPn,SPn+4,B2,B2+4]
    for ks in range(4):
        e(f's_waitcnt lgkmcnt({3-ks})')
        e(MF(U0,GA[ks],XA+4*ks,U0 if ks else None)); e(MF(U1,GB[ks],XA+4*ks,U1 if ks else None))
    stamp(A,5)
    srd(A,SWS,18,2<<20,AINT_OFF)
    for (U,ab) in ((U0,0),(U1,64)):
        for j in range(8): e(f'v_cvt_pk_bf16_f32 v{BO+j}, v{U+2*j}, v{U+2*j+1}')
        for a in range(4):
            e(f'''ds_write_b16 v14, v{BO+2*a} offset:{256*a+ab}
            ds_write_b16_d16_hi v15, v{BO+2*a} offset:{256*a+32+ab}
            ds_write_b16 v14, v{BO+2*a+1} offset:{256*a+32+ab}
            ds_write_b16_d16_hi v15, v{BO+2*a+1} offset:{256*a+64+ab}''')
    e(f'''s_mul_i32 s45, s{sWV}, {4*1032}
    s_add_u32 s45, s45, {OL}
    v_add_u32 v4, s45, v3
    s_lshl_b32 s44, s{sWV}, 8
    s_add_u32 s44, s44, s43
    s_lshl_b32 s44, s44, 10
    s_waitcnt lgkmcnt(0)
    s_barrier
    s_mov_b32 exec_hi, 0x00ffffff''')
    for i in range(4): e(f'ds_read2_b64 {vr(XA+4*i,4)}, v4 offset0:{129*i%256 if False else 0} offset1:1' if i==0 else f'v_add_u32 v4, 1032, v4\nds_read2_b64 {vr(XA+4*i,4)}, v4 offset0:0 offset1:1')
    st=OPT['st_aint']
    for i in range(4):
        e(f's_waitcnt lgkmcnt({3-i})')
        e(f'buffer_store_dwordx4 {vr(XA+4*i,4)}, v3, s[{SWS}:{SWS+3}], s44 offen {st}')
        e(f's_add_u32 s44, s44, 65536')
    dump(A,3,[(0,1,1),(0,2,0),(1,3,0),(3,4,0),(4,5,0),(5,6,0),(7,7,0),(8,8,0)],16)
    e('K1_END:\ns_endpgm')

def k2(A):
    e=A.e
    SD,SPH,SO=20,24,28
    sWV=40
    e('k2_kernel:')
    e('s_cmp_ge_u32 s2, 256\ns_cbranch_scc1 K2_END')
    stamp(A,0)
    e('s_load_dwordx4 s[8:11], s[0:1], 64\ns_load_dwordx2 s[12:13], s[0:1], 88')
    if OPT['prof']:
        e('''s_load_dwordx2 s[14:15], s[0:1], 80
        s_waitcnt lgkmcnt(0)
        s_cmp_eq_u32 s2, 0
        s_cbranch_scc0 K2_NOCP
        s_sub_u32 s72, s14, 512
        s_subb_u32 s73, s15, 0
        s_mov_b32 s74, 1024
        s_mov_b32 s75, 0x20000
        v_and_b32 v1, 7, v0
        v_lshlrev_b32 v1, 2, v1
        buffer_load_dword v2, v1, s[72:75], 0 offen offset:4
        s_waitcnt vmcnt(0)
        buffer_store_dword v2, v1, s[72:75], 0 offen offset:512
        s_waitcnt vmcnt(0)
        K2_NOCP:''')
    e('v_and_b32 v1, 63, v0\nv_lshrrev_b32 v2, 6, v0')
    e('s_and_b32 s41, s2, 7\ns_lshr_b32 s42, s2, 3')
    e(f'v_readfirstlane_b32 s{sWV}, v2')
    e('''v_and_b32 v8, 31, v1
    v_lshrrev_b32 v9, 5, v1
    v_bfe_u32 v10, v1, 2, 2
    v_bfe_u32 v3, v1, 4, 1
    v_and_b32 v4, 1, v1
    v_lshl_add_u32 v4, v3, 1, v4
    v_bfe_u32 v5, v1, 1, 1
    v_lshl_add_u32 v4, v4, 1, v5
    v_lshlrev_b32 v11, 3, v4
    v_and_b32 v4, 7, v1
    v_lshlrev_b32 v3, 2, v3
    v_xor_b32 v4, v4, v3
    v_lshlrev_b32 v12, 4, v4
    v_lshrrev_b32 v13, 3, v1''')
    e('s_cmp_ge_u32 s42, 28\ns_cbranch_scc1 K2_A')
    e(f'''s_and_b32 s43, s42, 3
    s_lshl_b32 s41, s41, 2
    s_add_u32 s43, s43, s41
    s_lshr_b32 s44, s42, 2
    s_and_b32 s45, s{sWV}, 1
    s_lshr_b32 s46, s{sWV}, 1''')
    vD,vF16,vF8=14,15,16
    e(f'''v_mul_u32_u24 v3, 896, v13
    v_add_u32 v3, v3, v12
    v_lshlrev_b32 v{vF16}, 4, v1
    v_lshlrev_b32 v{vF8}, 3, v1
    s_cmp_eq_u32 s46, 0
    s_cselect_b64 vcc, -1, 0
    s_cselect_b32 s47, 1024, 7168
    s_cselect_b32 s48, 28672, {224*896}
    s_cselect_b32 s49, 0, 128
    s_mul_i32 s48, s48, s45
    s_mul_i32 s49, s49, s44
    s_add_u32 s48, s48, s49
    v_cndmask_b32 v{vD}, v3, v{vF16}, vcc
    s_mul_i32 s50, s{sWV}, 28672
    s_lshl_b32 s51, s43, 1
    s_add_u32 s51, s51, s45
    s_lshl_b32 s52, s51, 4
    s_lshl_b32 s53, s46, 3
    s_add_u32 s52, s52, s53
    s_mul_i32 s52, s52, 3584
    s_mov_b32 m0, s50
    s_waitcnt lgkmcnt(0)
    s_add_u32 s54, s12, {KV_OFF}
    s_addc_u32 s55, s13, 0
    s_cmp_eq_u32 s46, 0
    s_cselect_b32 s{SD}, s54, s8
    s_cselect_b32 s{SD+1}, s55, s9
    s_cselect_b32 s{SD+2}, {16*3584}, {448*896}
    s_mov_b32 s{SD+3}, 0x20000''')
    stamp(A,1)
    srd(A,SPH,12,64*16*3584,PHIQ_OFF)
    PHI=128
    for s in range(4):
        for n in range(7):
            e(f'buffer_load_dwordx4 v{vD}, s[{SD}:{SD+3}], s48 offen lds')
            e(f's_add_u32 m0, m0, 1024\ns_add_u32 s48, s48, s47')
        for hl in (2*s,2*s+1):
            for c in range(3): e(f'buffer_load_dwordx4 {vr(PHI+16*hl+4*c,4)}, v{vF16}, s[{SPH}:{SPH+3}], s52 offen offset:{1024*c}')
            e(f'buffer_load_dwordx2 {vr(PHI+16*hl+12,2)}, v{vF8}, s[{SPH}:{SPH+3}], s52 offen offset:3072')
            e('s_add_u32 s52, s52, 3584')
    srd(A,SO,10,2048*1792)
    vK,vN0,vN1,vS0,vS1=17,18,19,20,21
    e(f'''s_mul_i32 s53, s46, 28672
    v_lshlrev_b32 v3, 2, v1
    v_add_u32 v{vK}, s53, v3
    s_add_u32 s53, s53, 57344
    v_lshl_add_u32 v3, v9, 2, v10
    v_lshlrev_b32 v3, 7, v3
    v_lshrrev_b32 v4, 1, v10
    v_lshl_add_u32 v3, v4, 6, v3
    v_add3_u32 v{vN0}, v3, v11, s53
    v_xor_b32 v{vN1}, 64, v{vN0}
    v_lshlrev_b32 v3, 1, v9
    v_xor_b32 v3, v3, v10
    v_lshrrev_b32 v4, 1, v3
    v_lshlrev_b32 v3, 7, v3
    v_lshl_add_u32 v3, v4, 6, v3
    v_add3_u32 v{vS0}, v3, v11, s53
    v_xor_b32 v{vS1}, 64, v{vS0}''')
    KF=[24,40]; WFR=56; NUM=[72,88]; OP=104; OUT=[112-0,0]
    OUT0,OUT1=22*0+0,0
    OUT0=112
    def MFo(mt,a,b,first):
        if mt==0: return MF(OUT0,a,b,None if first else OUT0)
        return f'v_mfma_f32_32x32x16_bf16 a[0:15], {vr(a,4)}, {vr(b,4)}, '+('0' if first else 'a[0:15]')
    for hl in range(8): e(f'v_mov_b32 v{PHI+16*hl+14}, 0\nv_mov_b32 v{PHI+16*hl+15}, 0')
    for b in range(2): e(f'v_mov_b32 v{KF[b]+14}, 0\nv_mov_b32 v{KF[b]+15}, 0')
    e(f'v_mov_b32 v{OP+7}, 0\ns_mov_b32 s56, {f2u(1e-6)}')
    def rdkv(hl):
        for p in range(7): e(f'ds_read2st64_b32 {vr(KF[hl&1]+2*p,2)}, v{vK} offset0:{14*hl+2*p} offset1:{14*hl+2*p+1}')
    def rdwo(hl):
        for mt in range(2):
            for q in range(4):
                if q<3: e(f'ds_read_b64_tr_b16 {vr(WFR+8*mt+2*q,2)}, v{(vN0,vN1)[mt]} offset:{3584*hl+1024*q}')
                else: e(f'ds_read_b64_tr_b16 {vr(WFR+8*mt+6,2)}, v{(vS0,vS1)[mt]} offset:{3584*hl+3072}')
    def num(hl):
        for s in range(4): e(MF(NUM[hl&1],KF[hl&1]+4*s,PHI+16*hl+4*s,NUM[hl&1] if s else None))
    def fin(hl):
        N=NUM[hl&1]
        e(f'v_add_f32 v22, s56, v{N+14}\nv_rcp_f32 v22, v22')
        for j in range(0,14,2): e(f'v_pk_mul_f32 {vr(N+j,2)}, {vr(N+j,2)}, v[22:23] op_sel_hi:[1,0]')
        for j in range(7): e(f'v_cvt_pk_bf16_f32 v{OP+j}, v{N+2*j}, v{N+2*j+1}')
        e('s_waitcnt lgkmcnt(0)')
        for sp in range(2):
            for mt in range(2): e(MFo(mt,WFR+8*mt+4*sp,OP+4*sp,hl==0 and sp==0))
    for hl in range(8):
        if hl%2==0:
            e(f's_waitcnt vmcnt({45-15*(hl//2)})\ns_barrier')
            if hl==0: stamp(A,3)
            if hl==6: stamp(A,4)
        rdkv(hl)
        if hl>0: rdwo(hl-1)
        e('s_waitcnt lgkmcnt(%d)'%(8 if hl>0 else 0))
        num(hl)
        if hl>0: fin(hl-1)
    rdwo(7); fin(7)
    stamp(A,5)
    e(f'''s_lshl_b32 s53, s{sWV}, 12
    s_add_u32 s53, s53, 114688
    v_add_u32 v3, s53, v{vF16}
    s_xor_b32 s53, s53, 8192
    v_add_u32 v4, s53, v{vF16}
    s_cmp_eq_u32 s46, 0
    s_cbranch_scc1 K2_X0''')
    for q in range(4): e(f'ds_write_b128 v3, {vr(OUT0+4*q,4)} offset:{1024*q}')
    for j in range(16): e(f'v_accvgpr_read_b32 v{OUT0+j}, a{j}')
    e('s_branch K2_X1\nK2_X0:\ns_nop 4')
    for q in range(4): e(f'ds_write_b128 v3, a[{4*q}:{4*q+3}] offset:{1024*q}')
    e('K2_X1:')
    e(f'''s_lshl_b32 s51, s51, 5
    v_add_u32 v5, s51, v8
    v_mul_u32_u24 v5, 1792, v5
    v_lshl_add_u32 v5, v9, 4, v5
    s_lshl_b32 s54, s44, 7
    s_lshl_b32 s55, s46, 6
    s_add_u32 s54, s54, s55
    s_add_u32 s54, s54, 896
    s_waitcnt lgkmcnt(0)
    s_barrier''')
    for q in range(4): e(f'ds_read_b128 {vr(24+4*q,4)}, v4 offset:{1024*q}')
    st=OPT['st_out']
    for i in range(2):
        e(f's_waitcnt lgkmcnt({2-2*i})')
        for j in range(0,8,2): e(f'v_pk_add_f32 {vr(OUT0+8*i+j,2)}, {vr(OUT0+8*i+j,2)}, {vr(24+8*i+j,2)}')
        for j in range(4): e(f'v_cvt_pk_bf16_f32 v{56+4*i+j}, v{OUT0+8*i+2*j}, v{OUT0+8*i+2*j+1}')
        e(f'buffer_store_dwordx4 {vr(56+4*i,4)}, v5, s[{SO}:{SO+3}], s54 offen offset:{32*i} {st}')
    if OPT['prof'] in (1,2): OPT['prof2']=OPT['prof']; dump(A,OPT['prof'],[(0,8,1),(0,9,0),(1,10,0),(3,11,0),(4,12,0),(5,13,0),(7,14,0),(8,15,0)],14)
    e('s_endpgm')
    e('K2_A:')
    e(f'''s_lshl_b32 s43, s41, 2
    s_add_u32 s43, s43, s42
    s_sub_u32 s43, s43, 28
    s_and_b32 s44, s43, 1
    s_lshr_b32 s43, s43, 1
    s_sub_u32 s45, 4, s44
    v_lshl_add_u32 v14, v13, 10, v12
    s_lshl_b32 s46, s43, 17
    s_lshl_b32 s47, s{sWV}, 15
    s_add_u32 s46, s46, s47
    s_lshl_b32 s47, s44, 9
    s_add_u32 s46, s46, s47
    s_lshl_b32 s47, s{sWV}, 12
    s_mov_b32 s48, 0
    s_waitcnt lgkmcnt(0)''')
    stamp(A,1)
    srd(A,SD,12,2<<20,AINT_OFF)
    e('K2A_LD:')
    e('s_mov_b32 m0, s47\ns_add_u32 s49, s46, 8192')
    e(f'buffer_load_dwordx4 v14, s[{SD}:{SD+3}], s46 offen lds')
    for n in range(1,4):
        e(f's_add_u32 m0, s47, {1024*n}\ns_nop 0')
        e(f'buffer_load_dwordx4 v14, s[{SD}:{SD+3}], s49 offen lds')
        if n<3: e('s_add_u32 s49, s49, 8192')
    e('''s_add_u32 s46, s46, 128
    s_add_u32 s47, s47, 16384
    s_add_u32 s48, s48, 1
    s_cmp_lt_u32 s48, s45
    s_cbranch_scc1 K2A_LD''')
    srd(A,SO,10,2048*1792)
    e(f'''s_lshr_b32 s56, s{sWV}, 1
    s_sub_u32 s57, 32, s43
    s_cmp_eq_u32 s56, 0
    s_cselect_b32 s50, s43, s57
    s_cselect_b32 s51, 0x80008000, 0
    s_cselect_b32 s52, 0, 0x80008000
    s_cselect_b32 s58, 0, 16
    s_cselect_b32 s59, 0, 8192
    s_cmp_eq_u32 s43, 0
    s_cselect_b32 s50, s58, s50
    s_cselect_b32 s53, 0, -1
    s_cselect_b32 s54, s59, 0
    s_mov_b32 s55, 8192
    s_and_b32 s56, s{sWV}, 1
    s_lshl_b32 s56, s56, 10
    s_add_u32 s50, s50, s56
    v_lshlrev_b32 v3, 5, v8
    v_add_u32 v15, s50, v3
    v_cvt_f32_u32 v4, v15
    v_mul_f32 v4, {f2u(1/2048)}, v4
    v_cvt_f32_u32 v5, v9
    v_mul_f32 v5, {f2u(8.0)}, v5
    v_mul_f32 v5, v4, v5
    v_mov_b32 v6, s53''')
    C,S,S2,C2=24,40,56,72; TT=88
    for ks in range(4):
        for j in range(8): e(f'v_fmamk_f32 v{TT+j}, v4, {f2u(16.*ks+j)}, v5')
        for j in range(8): e(f'v_sin_f32 v{TT+8+j}, v{TT+j}\nv_cos_f32 v{TT+j}, v{TT+j}')
        for j in range(4): e(f'v_cvt_pk_bf16_f32 v{C+4*ks+j}, v{TT+2*j}, v{TT+2*j+1}\nv_cvt_pk_bf16_f32 v{S+4*ks+j}, v{TT+8+2*j}, v{TT+8+2*j+1}')
    for j in range(16):
        e(f'v_bitop3_b32 v{S2+j}, v{S+j}, s51, v6 bitop3:0x28\nv_bitop3_b32 v{C2+j}, v{C+j}, s52, v6 bitop3:0x28')
    aR,aS,bS,bR=16,17,18,19
    e(f'''v_lshl_add_u32 v3, v9, 3, v10
    v_lshlrev_b32 v3, 7, v3
    v_lshrrev_b32 v4, 1, v10
    v_lshl_add_u32 v3, v4, 6, v3
    v_add_u32 v3, v3, v11
    v_add_u32 v{aR}, s54, v3
    v_add_u32 v{aS}, s55, v3
    v_xor_b32 v{bR}, 64, v{aR}
    v_xor_b32 v{bS}, 64, v{aS}''')
    e(f'''v_mul_u32_u24 v20, 1792, v15
    v_lshlrev_b32 v3, 4, v9
    v_sub_u32 v21, v20, v3
    v_add_u32 v20, v20, v3
    s_lshl_b32 s60, s44, 8
    s_sub_u32 s61, {882-32}, s60
    v_add_u32 v21, s61, v21
    s_mov_b32 s48, 0
    s_lshl_b32 s62, s44, 2''')
    FR=88; PA=152; QA=168; PX=184; PK=200
    stamp(A,3)
    e('K2A_LOOP:')
    e('''s_cmp_ge_u32 s48, 2
    s_cbranch_scc1 K2A_GO
    s_add_u32 s63, s44, s48
    s_cmp_eq_u32 s63, 0
    s_cbranch_scc0 K2A_W3
    s_waitcnt vmcnt(12)
    K2A_W3:
    s_cmp_eq_u32 s48, 0
    s_cbranch_scc0 K2A_W4
    s_cmp_eq_u32 s44, 0
    s_cbranch_scc1 K2A_W4
    s_waitcnt vmcnt(8)
    K2A_W4:
    s_barrier
    K2A_GO:''')
    if OPT['prof']:
        e('s_cmp_eq_u32 s48, 0\ns_cbranch_scc0 K2A_P1'); stamp(A,4); e('K2A_P1:\ns_cmp_eq_u32 s48, 1\ns_cbranch_scc0 K2A_P2'); stamp(A,5); e('K2A_P2:')
    srcs=[(aR,C,PA),(aS,S2,PA),(bS,C2,QA),(bR,S,QA)]
    seq=[(ks,q) for ks in range(4) for q in range(4)]
    def rdA(n):
        ks,q=seq[n]
        for jj in range(2): e(f'ds_read_b64_tr_b16 {vr(FR+4*n+2*jj,2)}, v{srcs[q][0]} offset:{2048*ks+512*jj}')
    for n in range(6): rdA(n)
    for n in range(16):
        if n+6<16: rdA(n+6); e('s_waitcnt lgkmcnt(12)')
        else: e(f's_waitcnt lgkmcnt({2*(15-n)})')
        ks,q=seq[n]
        first=(ks==0 and q in(0,2))
        e(MF(srcs[q][2],FR+4*n,srcs[q][1]+4*ks,None if first else srcs[q][2]))
    e('s_cmp_eq_u32 s48, 0\ns_cbranch_scc0 K2A_NW\ns_waitcnt vmcnt(0)\nK2A_NW:\ns_nop 7')
    e('s_cmp_eq_u32 s62, 0\ns_cbranch_scc0 K2A_NS')
    for ks in range(4):
        e(MF(PX,FR+4*(4*ks+3),C+4*ks,PX if ks else None)); e(MF(PX,FR+4*(4*ks+2),S2+4*ks,PX))
    e('s_mov_b32 exec_hi, 0')
    e(f'v_mov_b32 v{QA}, 0\nv_cvt_pk_bf16_f32 v{PX}, v{PX}, v{PX}')
    e(f'buffer_store_short v{PX}, v20, s[{SO}:{SO+3}], 0 offen offset:448')
    e('s_mov_b32 exec_hi, -1')
    e('K2A_NS:')
    for j in range(0,16,2):
        e(f'v_pk_add_f32 {vr(PX+j,2)}, {vr(PA+j,2)}, {vr(QA+j,2)}')
        e(f'v_pk_add_f32 {vr(PA+j,2)}, {vr(PA+j,2)}, {vr(QA+j,2)} neg_lo:[0,1] neg_hi:[0,1]')
    for j in range(8): e(f'v_cvt_pk_bf16_f32 v{PK+j}, v{PA+2*j}, v{PA+2*j+1}')
    for i in range(2):
        for n in range(4): e(f'v_cvt_pk_bf16_f32 v{PK+8+4*i+n}, v{PX+8*i+7-2*n}, v{PX+8*i+6-2*n}')
    for i in range(2): e(f'buffer_store_dwordx4 {vr(PK+4*i,4)}, v20, s[{SO}:{SO+3}], s60 offen offset:{32*i} {st}')
    e(f'buffer_store_dwordx4 {vr(PK+12,4)}, v21, s[{SO}:{SO+3}], 0 offen {st}')
    e('s_cmp_eq_u32 s62, 0\ns_cbranch_scc1 K2A_SP2')
    e(f'buffer_store_dwordx4 {vr(PK+8,4)}, v21, s[{SO}:{SO+3}], 0 offen offset:32 {st}')
    e('s_branch K2A_NX\nK2A_SP2:')
    e('s_mov_b32 exec_lo, 0')
    e(f'buffer_store_dwordx4 {vr(PK+8,4)}, v21, s[{SO}:{SO+3}], 0 offen offset:32 {st}')
    e('s_mov_b32 exec_lo, -1\ns_mov_b32 exec_hi, 0')
    e(f'buffer_store_dwordx3 {vr(PK+8,3)}, v21, s[{SO}:{SO+3}], 0 offen offset:32')
    e(f'buffer_store_short v{PK+11}, v21, s[{SO}:{SO+3}], 0 offen offset:44')
    e('s_mov_b32 exec_hi, -1')
    e('K2A_NX:')
    for r in (aR,aS,bS,bR): e(f'v_add_u32 v{r}, 16384, v{r}')
    e('''v_subrev_u32 v21, 64, v21
    s_add_u32 s60, s60, 64
    s_add_u32 s62, s62, 1
    s_add_u32 s48, s48, 1
    s_cmp_lt_u32 s48, s45
    s_cbranch_scc1 K2A_LOOP''')
    dump(A,3,[(0,8,1),(0,9,0),(1,10,0),(3,11,0),(4,12,0),(5,13,0),(7,14,0),(8,15,0)],14)
    e('K2_END:\ns_endpgm')

def desc(name,vgpr,sgpr,acc):
    return f'''.amdhsa_kernel {name}
  .amdhsa_next_free_vgpr {vgpr}
  .amdhsa_next_free_sgpr {sgpr}
  .amdhsa_accum_offset {acc}
  .amdhsa_group_segment_fixed_size 0
  .amdhsa_kernarg_size 96
  .amdhsa_user_sgpr_count 2
  .amdhsa_user_sgpr_kernarg_segment_ptr 1
  .amdhsa_system_sgpr_workgroup_id_x 1
.end_amdhsa_kernel
'''
def main():
    A1=Asm(); k1(A1); A2=Asm(); k2(A2)
    assert A1.verify_branches()==0 and A2.verify_branches()==0
    v1=A1.maxreg('v')+1; v2=A2.maxreg('v')+1; a2=A2.maxreg('a')+1
    r4=lambda x:(x+3)//4*4
    hdr=open('concat_heads__spectral_fnet__linear_kernel_hedgehog__prompt.s.ref').read().split('; Override')[0]
    out=hdr+'; @launch kernel=k1_kernel grid=(256,1,1) block=(512,1,1) lds=139264\n; @launch kernel=k2_kernel grid=(256,1,1) block=(256,1,1) lds=131072\n'
    out+='.amdgcn_target "amdgcn-amd-amdhsa--gfx950"\n.text\n'
    for n,A in (('k1_kernel',A1),('k2_kernel',A2)):
        out+=f'.globl {n}\n.p2align 8\n.type {n},@function\n'+A.text()
    out+='.section .rodata,"a"\n.p2align 6\n'+desc('k1_kernel',v1,100,r4(v1))+'.p2align 6\n'+desc('k2_kernel',r4(v2)+a2,100,r4(v2))
    open(sys.argv[1],'w').write(out)
    print('k1 vgpr',v1,'k2 vgpr',v2,'agpr',a2, 'k1 sgpr',A1.maxreg('s')+1,'k2 sgpr',A2.maxreg('s')+1)
main()
```

```python
import sys, math
from asmlib import *

PHIQ_OFF=0; KV_OFF=0x400000; AINT_OFF=0x500000
LOG2E=1.4426950408889634
OPT=dict(st_phi='', st_aint='', st_out='', prof=0)
for a in sys.argv[2:]:
    k,v=a.split('='); OPT[k]=int(v) if v.lstrip('-').isdigit() else v

def srd(A,d,base,nbytes,off=0):
    if off:
        A.e(f's_add_u32 s{d}, s{base}, {hex(off)}\ns_addc_u32 s{d+1}, s{base+1}, 0')
    else:
        A.e(f's_mov_b32 s{d}, s{base}\ns_mov_b32 s{d+1}, s{base+1}')
    A.e(f's_mov_b32 s{d+2}, {hex(nbytes)}\ns_mov_b32 s{d+3}, 0x20000')

NST=[0]
def stamp(A,i):
    if OPT.get('lp') and 1<=i<=6 and not OPT.get('k2'): return
    if OPT['prof']:
        A.e(f's_memrealtime s[{80+2*i}:{81+2*i}]')
        if i==0: A.e('s_memtime s[98:99]')
def dump(A,role,slots,dbgptr,wave=0):
    if not OPT['prof']: return
    NST[0]+=1; L=f'PD{NST[0]}'
    if OPT['prof']==9:
        ws=18 if dbgptr==16 else 12; ko=0x800000 if dbgptr==16 else 0x810000
        A.e(f's_memrealtime s[94:95]\ns_waitcnt vmcnt(0) lgkmcnt(0)\ns_memrealtime s[96:97]\ns_memtime s[78:79]\ns_waitcnt lgkmcnt(0)')
        A.e(f's_cmp_eq_u32 s40, {OPT.get("pw",0)}\ns_cbranch_scc0 {L}')
        A.e(f's_add_u32 s72, s{ws}, {ko}\ns_addc_u32 s73, s{ws+1}, 0\ns_mov_b32 s74, 0x10000\ns_mov_b32 s75, 0x20000\ns_mov_b64 exec, 1\ns_lshl_b32 s76, s2, 6\ns_sub_u32 s78, s78, s98')
        for i in range(9): A.e(f'v_mov_b32 v0, s{80+2*i}\nbuffer_store_dword v0, off, s[72:75], s76 offset:{4*i}')
        A.e(f'v_mov_b32 v0, s78\nbuffer_store_dword v0, off, s[72:75], s76 offset:36\nv_mov_b32 v0, {role}\nbuffer_store_dword v0, off, s[72:75], s76 offset:40')
        A.e(f'{L}:'); return
    if OPT['prof']!=role: return
    A.e(f's_memrealtime s[{80+2*7}:{81+2*7}]\ns_waitcnt vmcnt(0) lgkmcnt(0)\ns_memrealtime s[{80+2*8}:{81+2*8}]\ns_waitcnt lgkmcnt(0)')
    A.e(f's_cmp_eq_u32 s40, {wave}\ns_cbranch_scc0 {L}')
    A.e(f's_mov_b32 s72, s{dbgptr}\ns_mov_b32 s73, s{dbgptr+1}\ns_mov_b32 s74, 256\ns_mov_b32 s75, 0x20000\ns_mov_b64 exec, 1')
    for (i,w,neg) in slots:
        if neg: A.e(f's_not_b32 s76, s{80+2*i}\nv_mov_b32 v0, s76')
        else: A.e(f'v_mov_b32 v0, s{80+2*i}')
        A.e(f'buffer_atomic_umax v0, off, s[72:75], 0 offset:{4*w}\ns_waitcnt vmcnt(0)')
    A.e(f'{L}:')
def MF(d,a,b,c=None):
    cc='0' if c is None else vr(c,16)
    return f'v_mfma_f32_32x32x16_bf16 {vr(d,16)}, {vr(a,4)}, {vr(b,4)}, {cc}'

def k1(A):
    e=A.e
    SX,SW,SP,SWS,SDB=20,24,28,32,36
    sWV=40
    e('k1_kernel:')
    e('s_cmp_ge_u32 s2, 256\ns_cbranch_scc1 K1_END')
    stamp(A,0)
    e('s_load_dwordx8 s[8:15], s[0:1], 40\ns_load_dwordx4 s[16:19], s[0:1], 80\ns_load_dwordx2 s[4:5], s[0:1], 0')
    e('v_and_b32 v1, 63, v0\nv_lshrrev_b32 v2, 6, v0')
    e('s_and_b32 s41, s2, 7\ns_lshr_b32 s42, s2, 3')
    e(f'v_readfirstlane_b32 s{sWV}, v2')
    e('s_cmp_ge_u32 s42, 24\ns_cbranch_scc1 K1_A')
    e('''s_and_b32 s43, s42, 1
    s_lshl_b32 s41, s41, 1
    s_add_u32 s43, s43, s41
    s_lshr_b32 s50, s42, 1
    s_cmp_ge_u32 s42, 16
    s_cselect_b32 s44, 1, 0
    s_cselect_b32 s46, 0, 784
    s_cselect_b32 s47, 112, 56
    s_cselect_b32 s48, 56, 112
    s_cselect_b32 s51, 224, 112
    s_cselect_b32 s52, 0, 896
    s_and_b32 s50, s50, 7
    s_mul_i32 s45, s50, s51
    s_add_u32 s45, s45, s52
    s_add_u32 s53, s44, 1
    s_lshl_b32 s49, s50, s53''')
    vX0,vX1,vW,vP=10,11,12,13
    vRX=14; vRW0,vRW1=18,19
    XF,WF0,WF1=20,36,52
    ACC0,ACC1=68,84
    WPH=100; WT=116
    e(f'''v_lshrrev_b32 v3, 3, v1
    v_lshl_add_u32 v3, v2, 4, v3
    v_lshrrev_b32 v4, 4, v1
    v_and_b32 v5, 7, v1
    v_xor_b32 v5, v5, v4
    v_lshlrev_b32 v5, 4, v5
    v_mul_u32_u24 v3, 896, v3
    v_add_u32 v{vX0}, v3, v5
    v_xor_b32 v{vX1}, 64, v{vX0}
    v_add_u32 v{vX1}, {8*896}, v{vX1}''')
    e(f'''v_and_b32 v5, 15, v1
    v_lshlrev_b32 v6, 2, v4
    v_xor_b32 v5, v5, v6
    v_min_u32 v5, 13, v5
    v_lshl_add_u32 v6, v2, 3, v4
    v_mul_u32_u24 v6, 2688, v6
    v_lshl_add_u32 v6, v5, 4, v6
    v_mov_b32 v7, s46
    v_cmp_lt_u32 vcc, 6, v5
    v_cndmask_b32 v7, 0, v7, vcc
    v_add3_u32 v{vW}, v6, v7, s45
    v_lshlrev_b32 v{vP}, 4, v0''')
    e(f'''s_mul_i32 s54, s43, {128*896}
    s_mov_b32 s55, 0
    s_lshl_b32 s56, s{sWV}, 11
    s_mul_i32 s57, s49, 1568
    s_lshl_b32 s58, s{sWV}, 10
    s_add_u32 m0, s58, 131072
    s_mov_b32 s59, 0''')
    e('s_waitcnt lgkmcnt(0)')
    stamp(A,1)
    srd(A,SP,12,16*1568); srd(A,SX,8,2048*896); srd(A,SW,10,448*2688)
    e(f'buffer_load_dwordx4 v{vP}, s[{SP}:{SP+3}], s57 offen lds')
    def issue():
        e(f'''s_mov_b32 m0, s56
        s_add_u32 s60, s55, {4*2688}
        buffer_load_dwordx4 v{vX0}, s[{SX}:{SX+3}], s54 offen lds
        s_add_u32 m0, s56, 1024
        s_nop 0
        buffer_load_dwordx4 v{vX1}, s[{SX}:{SX+3}], s54 offen lds
        s_add_u32 m0, s56, 16384
        s_add_u32 s54, s54, 128
        buffer_load_dwordx4 v{vW}, s[{SW}:{SW+3}], s55 offen lds
        s_add_u32 m0, s56, 17408
        s_add_u32 s55, s55, {64*2688}
        buffer_load_dwordx4 v{vW}, s[{SW}:{SW+3}], s60 offen lds
        s_add_u32 s56, s56, 32768
        s_and_b32 s56, s56, 0x1ffff''')
    e('K1_PRE:')
    issue()
    e('s_add_u32 s59, s59, 1\ns_cmp_lt_u32 s59, 4\ns_cbranch_scc1 K1_PRE')
    srd(A,SDB,16,256)
    e(f'''s_cmp_eq_u32 s44, 1
    s_cselect_b32 s60, {PHIQ_OFF}, {KV_OFF}
    s_cselect_b32 s{SWS+2}, {64*16*3584}, {16*3584}
    s_add_u32 s{SWS}, s18, s60
    s_addc_u32 s{SWS+1}, s19, 0
    s_mov_b32 s{SWS+3}, 0x20000''')
    e(f'''v_and_b32 v3, 3, v2
    v_and_b32 v4, 31, v1
    v_lshl_add_u32 v8, v3, 5, v4
    v_lshrrev_b32 v9, 5, v1
    v_bfe_u32 v5, v8, 1, 3
    v_xor_b32 v5, v5, v9
    v_lshlrev_b32 v5, 4, v5
    v_lshl_add_u32 v{vRX}, v8, 7, v5''')
    e(f'''v_bfe_u32 v3, v1, 4, 1
    v_and_b32 v4, 3, v1
    v_lshl_add_u32 v3, v3, 2, v4
    v_min_u32 v3, 6, v3
    v_lshrrev_b32 v5, 2, v2
    v_mul_u32_u24 v5, s47, v5
    v_lshl_add_u32 v3, v3, 3, v5
    v_bfe_u32 v4, v1, 2, 2
    v_lshl_add_u32 v5, v9, 3, v4
    v_lshlrev_b32 v5, 8, v5
    v_add_u32 v5, 16384, v5
    v_lshlrev_b32 v4, 6, v4
    v_xor_b32 v6, v3, v4
    v_add_u32 v{vRW0}, v5, v6
    v_add_u32 v3, s48, v3
    v_xor_b32 v6, v3, v4
    v_add_u32 v{vRW1}, v5, v6''')
    e(f'''v_and_b32 v3, 3, v1
    v_bfe_u32 v4, v1, 3, 2
    v_lshl_add_u32 v3, v4, 2, v3
    v_min_u32 v3, 13, v3
    v_bfe_u32 v4, v1, 2, 1
    v_mad_u32_u24 v3, v4, 14, v3
    v_lshlrev_b32 v3, 1, v3
    v_mul_u32_u24 v4, 224, v9
    v_lshrrev_b32 v5, 2, v2
    v_lshlrev_b32 v5, s44, v5
    v_mul_u32_u24 v5, 1568, v5
    v_add3_u32 v3, v3, v4, v5
    v_add_u32 v{vP}, 131072, v3''')
    for i in range(16):
        e(f'v_mov_b32 v{ACC0+i}, 0\nv_mov_b32 v{ACC1+i}, 0')
    e('s_mov_b32 s59, 0')
    stamp(A,2)
    e('s_waitcnt vmcnt(12)')
    stamp(A,3)
    e('K1_LOOP:')
    e('s_barrier')
    def shift():
        e('s_memrealtime s[76:77]\ns_waitcnt lgkmcnt(0)')
        for i in range(1,7): e(f's_mov_b32 s{80+2*i}, s{82+2*i}')
        e('s_mov_b32 s92, s76')
    if OPT.get('lp')==1: shift()
    for ks in range(1,4): e(f'v_xor_b32 v{vRX+ks}, {32*ks}, v{vRX}')
    def rd(ks):
        e(f'ds_read_b128 {vr(XF+4*ks,4)}, v{vRX+ks}')
        for (WF,ad) in ((WF0,vRW0),(WF1,vRW1)):
            for jj in range(2):
                e(f'ds_read_b64_tr_b16 {vr(WF+4*ks+2*jj,2)}, v{ad} offset:{4096*ks+1024*jj}')
    def mm(ks):
        e(MF(ACC0,WF0+4*ks,XF+4*ks,ACC0)); e(MF(ACC1,WF1+4*ks,XF+4*ks,ACC1))
    rd(0); rd(1)
    e('s_sub_u32 s60, s59, 1\ns_cmp_lt_u32 s60, 3\ns_cbranch_scc0 K1_NOISS')
    issue()
    e('K1_NOISS:')
    e('s_waitcnt lgkmcnt(5)'); mm(0); rd(2)
    e('s_waitcnt lgkmcnt(5)'); mm(1); rd(3)
    e('s_waitcnt lgkmcnt(5)'); mm(2)
    e('s_waitcnt lgkmcnt(0)'); mm(3)
    for r in (vRX,vRW0,vRW1):
        e(f'v_add_u32 v{r}, 32768, v{r}\nv_and_b32 v{r}, 0x1ffff, v{r}')
    e('s_cmp_eq_u32 s59, 4\ns_cbranch_scc0 K1_NOWP')
    for u in range(2):
        for a in range(4):
            for uu in range(4):
                e(f'ds_read_u16 v{WT+16*u+4*a+uu}, v{vP} offset:{1568*u+(8*a+uu)*56}')
        e('s_waitcnt lgkmcnt(0)')
        for j in range(8):
            e(f'v_lshl_or_b32 v{WPH+8*u+j}, v{WT+16*u+2*j+1}, 16, v{WT+16*u+2*j}')
    e('v_cmp_gt_u32 vcc, 32, v1')
    for u in range(2):
        for j in (6,7): e(f'v_cndmask_b32 v{WPH+8*u+j}, 0, v{WPH+8*u+j}, vcc')
    e('K1_NOWP:')
    if OPT.get('lp')==2: shift()
    e('''s_add_u32 s59, s59, 1
    s_cmp_lt_u32 s59, 5
    s_cbranch_scc0 K1_W2
    s_waitcnt vmcnt(8)
    s_branch K1_LOOP
    K1_W2:
    s_cmp_eq_u32 s59, 5
    s_cbranch_scc0 K1_W3
    s_waitcnt vmcnt(4)
    s_branch K1_LOOP
    K1_W3:
    s_waitcnt vmcnt(0)
    s_cmp_eq_u32 s59, 6
    s_cbranch_scc1 K1_LOOP''')
    QB=20; T2=28; P=36; EP=52; EN=66; PH=80
    vFL=132; vSA=133; vSB=134
    TM=120
    stamp(A,4)
    e(f'buffer_load_dword v{vFL}, off, s[{SDB}:{SDB+3}], 0 sc1')
    e(f's_mov_b32 s62, {f2u(LOG2E)}\ns_mov_b32 s61, 0')
    e(f'''s_and_b32 s63, s{sWV}, 3
    s_lshl_b32 s64, s43, 2
    s_add_u32 s63, s63, s64
    s_lshl_b32 s63, s63, 4
    s_lshr_b32 s64, s{sWV}, 2
    s_lshl_b32 s65, s64, 1
    s_add_u32 s63, s63, s65
    s_add_u32 s63, s63, s49
    s_mul_i32 s63, s63, 3584
    v_lshlrev_b32 v{vSA}, 4, v1
    v_lshlrev_b32 v{vSB}, 3, v1''')
    for j in range(8): e(f'v_cvt_pk_bf16_f32 v{QB+j}, v{ACC0+2*j}, v{ACC0+2*j+1}')
    for j in range(8): e(f'v_cvt_pk_bf16_f32 v{T2+j}, v{ACC1+2*j}, v{ACC1+2*j+1}')
    e('K1_UNIT:')
    e(MF(P,WPH,QB)); e(MF(P,WPH+4,QB+4,P))
    mx,nm,t0,t1=TM,TM+1,TM+2,TM+3
    e(f'v_max3_f32 v{mx}, v{P}, v{P+1}, v{P+2}\nv_min3_f32 v{nm}, v{P}, v{P+1}, v{P+2}')
    for j in range(3,13,2):
        e(f'v_max3_f32 v{mx}, v{mx}, v{P+j}, v{P+j+1}\nv_min3_f32 v{nm}, v{nm}, v{P+j}, v{P+j+1}')
    e(f'v_max_f32 v{mx}, v{mx}, v{P+13}\nv_min_f32 v{nm}, v{nm}, v{P+13}')
    e(f'v_mul_f32 v{mx}, s62, v{mx}\nv_mul_f32 v{nm}, s62, v{nm}\nv_sub_f32 v{nm}, 0, v{nm}')
    e(f'v_permlane32_swap_b32 v{mx}, v{nm}')
    e(f'v_max_f32 v{t0}, v{mx}, v{nm}\nv_max_f32 v{t1}, v{mx}, v{nm}')
    e(f'v_permlane32_swap_b32 v{t0}, v{t1}')
    for j in range(0,14,2):
        e(f'v_pk_fma_f32 {vr(EP+j,2)}, {vr(P+j,2)}, s[62:63], {vr(t0,2)} op_sel_hi:[1,0,0] neg_lo:[0,0,1] neg_hi:[0,0,1]')
        e(f'v_pk_fma_f32 {vr(EN+j,2)}, {vr(P+j,2)}, s[62:63], {vr(t0,2)} op_sel:[0,0,1] op_sel_hi:[1,0,1] neg_lo:[0,1,1] neg_hi:[0,1,1]')
    for j in range(14):
        e(f'v_exp_f32 v{EP+j}, v{EP+j}\nv_exp_f32 v{EN+j}, v{EN+j}')
    sp,sn=TM+4,TM+6
    e(f'v_pk_add_f32 {vr(sp,2)}, {vr(EP,2)}, {vr(EP+2,2)}\nv_pk_add_f32 {vr(sn,2)}, {vr(EN,2)}, {vr(EN+2,2)}')
    for j in range(4,14,2):
        e(f'v_pk_add_f32 {vr(sp,2)}, {vr(sp,2)}, {vr(EP+j,2)}\nv_pk_add_f32 {vr(sn,2)}, {vr(sn,2)}, {vr(EN+j,2)}')
    e(f'v_add_f32 v{mx}, v{sp}, v{sp+1}\nv_add_f32 v{nm}, v{sn}, v{sn+1}')
    e(f'v_permlane32_swap_b32 v{mx}, v{nm}')
    e(f'v_add_f32 v{t0}, v{mx}, v{nm}')
    e(f'v_rcp_f32 v{t0}, v{t0}')
    e(f'v_mov_b32 v{t1}, v{t0}')
    e(f'v_permlane32_swap_b32 v{t0}, v{t1}')
    for j in range(0,14,2):
        e(f'v_pk_mul_f32 {vr(EP+j,2)}, {vr(EP+j,2)}, {vr(t0,2)} op_sel_hi:[1,0]')
        e(f'v_pk_mul_f32 {vr(EN+j,2)}, {vr(EN+j,2)}, {vr(t0,2)} op_sel:[0,1] op_sel_hi:[1,1]')
    for j in range(7): e(f'v_cvt_pk_bf16_f32 v{PH+j}, v{EP+2*j}, v{EP+2*j+1}')
    for j in range(7): e(f'v_cvt_pk_bf16_f32 v{PH+7+j}, v{EN+2*j}, v{EN+2*j+1}')
    e('s_cmp_eq_u32 s44, 0\ns_cbranch_scc1 K1_KV')
    st=OPT['st_phi']
    for c in range(3): e(f'buffer_store_dwordx4 {vr(PH+4*c,4)}, v{vSA}, s[{SWS}:{SWS+3}], s63 offen offset:{1024*c} {st}')
    e(f'buffer_store_dwordx2 {vr(PH+12,2)}, v{vSB}, s[{SWS}:{SWS+3}], s63 offen offset:3072 {st}')
    if OPT['prof'] in (2,9):
        e('s_cmp_eq_u32 s61, 1\ns_cbranch_scc0 K1_Q2')
        dump(A,2,[(0,1,1),(0,2,0),(1,3,0),(3,4,0),(4,5,0),(5,6,0),(7,7,0),(8,8,0)],16)
        e('s_endpgm\nK1_Q2:')
        stamp(A,5)
    e('s_cmp_eq_u32 s61, 1\ns_cbranch_scc1 K1_END')
    for j in range(8): e(f'v_mov_b32 v{QB+j}, v{T2+j}\nv_mov_b32 v{WPH+j}, v{WPH+8+j}')
    e('s_mov_b32 s61, 1\ns_add_u32 s63, s63, 3584\ns_branch K1_UNIT')
    e('K1_KV:')
    stamp(A,5)
    e(f'''v_mov_b32 v3, 0x3f80
    v_cmp_gt_u32 vcc, 32, v1
    v_cndmask_b32 v{T2+6}, v3, v{T2+6}, vcc
    v_cndmask_b32 v{T2+7}, v3, v{T2+7}, vcc''')
    e(f'''s_mul_i32 s65, s64, 98304
    v_mul_u32_u24 v3, 192, v8
    v_bfe_u32 v4, v8, 1, 2
    v_lshlrev_b32 v5, 1, v9
    v_xor_b32 v4, v4, v5
    v_lshl_add_u32 v3, v4, 4, v3
    v_add_u32 v3, s65, v3
    v_xor_b32 v4, 16, v3''')
    e(f'v_permlane32_swap_b32 v{T2+6}, v{T2+7}')
    e(f'''ds_write_b128 v3, {vr(PH,4)}
    ds_write_b128 v4, {vr(PH+4,4)}
    ds_write_b128 v3, {vr(PH+8,4)} offset:64
    ds_write_b64 v4, {vr(PH+12,2)} offset:64
    ds_write_b128 v3, {vr(T2,4)} offset:128
    ds_write_b128 v4, {vr(T2+4,4)} offset:128''')
    e(f'''s_lshr_b32 s66, s{sWV}, 1
    s_and_b32 s67, s{sWV}, 1
    s_mul_i32 s65, s66, 98304
    s_lshl_b32 s68, s67, 6
    v_bfe_u32 v3, v1, 2, 2
    v_lshl_add_u32 v4, v9, 3, v3
    v_mul_u32_u24 v4, 192, v4
    v_and_b32 v5, 1, v1
    v_bfe_u32 v6, v1, 4, 1
    v_lshl_add_u32 v5, v5, 1, v6
    v_lshrrev_b32 v3, 1, v3
    v_xor_b32 v5, v5, v3
    v_lshl_add_u32 v4, v5, 4, v4
    v_bfe_u32 v5, v1, 1, 1
    v_lshl_add_u32 v4, v5, 3, v4
    v_add_u32 v4, s65, v4
    v_xor_b32 v5, 32, v4
    v_add_u32 v6, s68, v4
    v_add_u32 v7, s68, v5''')
    e('s_waitcnt lgkmcnt(0)\ns_barrier')
    e(f's_cmp_ge_u32 s{sWV}, 4\ns_cbranch_scc1 K1_END')
    FA,FB,KA=20,52,84
    for ks in range(8):
        e(f'ds_read_b64_tr_b16 {vr(FA+4*ks,2)}, v6 offset:{3072*ks}')
        e(f'ds_read_b64_tr_b16 {vr(FA+4*ks+2,2)}, v7 offset:{3072*ks+768}')
        e(f'ds_read_b64_tr_b16 {vr(FB+4*ks,2)}, v4 offset:{3072*ks+128}')
        e(f'ds_read_b64_tr_b16 {vr(FB+4*ks+2,2)}, v5 offset:{3072*ks+768+128}')
        if ks>=2:
            e('s_waitcnt lgkmcnt(8)'); e(MF(KA,FA+4*(ks-2),FB+4*(ks-2),KA if ks>2 else None))
    e('s_waitcnt lgkmcnt(4)'); e(MF(KA,FA+24,FB+24,KA))
    e('s_waitcnt lgkmcnt(0)'); e(MF(KA,FA+28,FB+28,KA))
    e(f'''s_add_u32 s65, s49, s66
    s_mul_i32 s65, s65, 3584
    s_lshl_b32 s68, s67, 11
    s_add_u32 s65, s65, s68
    v_lshlrev_b32 v3, 2, v1''')
    e('s_mov_b32 s70, 0\nK1_POLL:\ns_waitcnt vmcnt(0)')
    e(f'v_readfirstlane_b32 s69, v{vFL}')
    e('s_cmp_ge_u32 s69, 64\ns_cbranch_scc1 K1_GO\ns_add_u32 s70, s70, 1\ns_cmp_ge_u32 s70, 0x40000\ns_cbranch_scc1 K1_GO\ns_sleep 2')
    e(f'buffer_load_dword v{vFL}, off, s[{SDB}:{SDB+3}], 0 sc1')
    e('s_branch K1_POLL\nK1_GO:\ns_nop 1')
    for j in range(8): e(f'v_cvt_pk_bf16_f32 v{FA+j}, v{KA+2*j}, v{KA+2*j+1}')
    for j in range(6): e(f'buffer_atomic_pk_add_bf16 v{FA+j}, v3, s[{SWS}:{SWS+3}], s65 offen offset:{256*j}')
    e('s_cmp_eq_u32 s67, 1\ns_cbranch_scc1 K1_END')
    for j in range(6,8): e(f'buffer_atomic_pk_add_bf16 v{FA+j}, v3, s[{SWS}:{SWS+3}], s65 offen offset:{256*j}')
    dump(A,1,[(0,1,1),(0,2,0),(1,3,0),(3,4,0),(4,5,0),(5,6,0),(7,7,0),(8,8,0)],16)
    e('s_endpgm')
    e('K1_A:')
    e(f'''s_lshl_b32 s43, s41, 3
    s_add_u32 s43, s43, s42
    s_sub_u32 s43, s43, 24
    s_lshl_b32 s44, s{sWV}, 8
    s_add_u32 s44, s44, s43
    s_mul_i32 s44, s44, 896
    s_mul_i32 s45, s{sWV}, {4*960}
    v_lshlrev_b32 v3, 4, v1
    s_mov_b32 m0, s45
    s_waitcnt lgkmcnt(0)''')
    stamp(A,1)
    srd(A,SX,4,2048*896)
    e('s_mov_b32 exec_hi, 0x00ffffff')
    for i in range(4):
        if i: e(f's_add_u32 m0, s45, {960*i}\ns_add_u32 s44, s44, {64*896}')
        e(f'buffer_load_dwordx4 v3, s[{SX}:{SX+3}], s44 offen lds')
    srd(A,SWS,18,16*3584,KV_OFF); srd(A,SDB,16,256)
    VL=32768; OL=73728
    e('s_mov_b32 exec_hi, -1\nv_and_b32 v8, 31, v1\nv_lshrrev_b32 v9, 5, v1')
    e(f'''v_mul_u32_u24 v10, {8*2560}, v9
    v_mul_u32_u24 v16, 80, v8
    v_add_u32 v10, v16, v10
    v_lshl_add_u32 v10, v2, 3, v10
    v_add_u32 v10, {VL}, v10''')
    e(f's_cmp_eq_u32 s{sWV}, 7\ns_cbranch_scc0 K1A_GEN')
    e(f'''v_mov_b32 v12, 0
    v_mov_b32 v13, 0
    v_mov_b32 v14, 0
    v_mov_b32 v15, 0
    s_mul_i32 s46, s43, 896
    s_mov_b32 exec_hi, 0x00ffffff
    buffer_store_dwordx4 v[12:15], v3, s[{SWS}:{SWS+3}], s46 offen sc1
    s_mov_b32 exec_hi, -1''')
    for r in range(8): e(f'ds_write_b64 v10, v[12:13] offset:{2560*r}')
    e(f'''v_mov_b32 v14, 1
    s_waitcnt vmcnt(0)
    s_mov_b64 exec, 1
    buffer_atomic_add v14, off, s[{SDB}:{SDB+3}], 0 sc1
    s_mov_b64 exec, -1''')
    e('K1A_GEN:')
    FF=20; HH=28; CP=32; SPn=40; A2=48; B2=56; TT=64
    e(f'''v_lshrrev_b32 v4, 1, v8
    v_and_b32 v5, 1, v8
    v_cvt_f32_u32 v5, v5
    v_mul_f32 v5, {f2u(-0.25)}, v5
    v_cmp_eq_u32 vcc, 1, v8
    v_cndmask_b32 v4, v4, 16, vcc
    v_cndmask_b32 v5, v5, 0, vcc
    v_cvt_f32_u32 v4, v4
    v_mul_f32 v4, {f2u(1/32)}, v4
    v_cvt_f32_u32 v11, v9
    v_mul_f32 v12, 4.0, v11
    v_add_f32 v11, v12, v12
    v_fma_f32 v5, v4, v11, v5''')
    for ks in range(2):
        for j in range(8): e(f'v_fmamk_f32 v{TT+8*ks+j}, v4, {f2u(16.*ks+j)}, v5')
    for j in range(16): e(f'v_cos_f32 v{TT+j}, v{TT+j}')
    for j in range(8): e(f'v_cvt_pk_bf16_f32 v{FF+j}, v{TT+2*j}, v{TT+2*j+1}')
    e(f'''v_bfe_u32 v4, v8, 2, 1
    v_bfe_u32 v5, v8, 3, 1
    v_lshl_add_u32 v4, v4, 1, v5
    v_bfe_u32 v5, v8, 1, 1
    v_lshl_add_u32 v4, v4, 1, v5
    v_and_b32 v5, 1, v8
    v_cvt_f32_u32 v5, v5
    v_mul_f32 v5, {f2u(-0.25)}, v5
    v_and_b32 v6, 15, v8
    v_cmp_eq_u32 vcc, 1, v6
    v_cndmask_b32 v4, v4, 8, vcc
    v_cndmask_b32 v5, v5, 0, vcc
    v_cvt_f32_u32 v4, v4
    v_mul_f32 v4, {f2u(1/16)}, v4
    v_fma_f32 v5, v4, v12, v5''')
    for j in range(8): e(f'v_fmamk_f32 v{TT+j}, v4, {f2u(8.*(j>>2)+(j&3))}, v5')
    for j in range(8): e(f'v_cos_f32 v{TT+j}, v{TT+j}')
    for j in range(4): e(f'v_cvt_pk_bf16_f32 v{HH+j}, v{TT+2*j}, v{TT+2*j+1}')
    e(f'''s_cmp_eq_u32 s{sWV}, 0
    s_cselect_b32 s47, 8, s{sWV}
    s_sub_u32 s48, 0, s47
    v_lshrrev_b32 v4, 2, v8
    v_lshlrev_b32 v4, 5, v4
    v_and_b32 v5, 3, v8
    v_add_u32 v5, 1, v5
    v_lshrrev_b32 v5, 1, v5
    v_lshl_add_u32 v4, v5, 4, v4
    v_and_b32 v5, 1, v8
    v_cmp_eq_u32 vcc, 1, v5
    v_mov_b32 v6, s48
    v_cndmask_b32 v6, v2, v6, vcc
    v_add_u32 v4, v4, v6
    v_cvt_f32_u32 v4, v4
    v_mul_f32 v4, {f2u(1/448)}, v4
    v_mul_f32 v5, v4, v11''')
    for ks in range(2):
        for j in range(8): e(f'v_fmamk_f32 v{TT+8*ks+j}, v4, {f2u(16.*ks+j)}, v5')
    for j in range(16): e(f'v_sin_f32 v{TT+16+j}, v{TT+j}\nv_cos_f32 v{TT+j}, v{TT+j}')
    for j in range(8): e(f'v_cvt_pk_bf16_f32 v{CP+j}, v{TT+2*j}, v{TT+2*j+1}\nv_cvt_pk_bf16_f32 v{SPn+j}, v{TT+16+2*j}, v{TT+16+2*j+1}')
    e(f's_cmp_eq_u32 s{sWV}, 0\ns_cbranch_scc1 K1A_SPEC')
    e('''v_mov_b32 v4, 0x80008000
    v_cndmask_b32 v5, v4, 0, vcc
    v_cndmask_b32 v6, 0, v4, vcc''')
    for j in range(8): e(f'v_xor_b32 v{A2+j}, v5, v{SPn+j}\nv_xor_b32 v{B2+j}, v6, v{CP+j}')
    e('s_branch K1A_ST1\nK1A_SPEC:')
    for j in range(8):
        e(f'''v_cndmask_b32 v{A2+j}, 0, v{CP+j}, vcc
        v_cndmask_b32 v{B2+j}, 0, v{SPn+j}, vcc
        v_cndmask_b32 v{CP+j}, v{CP+j}, 0, vcc
        v_cndmask_b32 v{SPn+j}, v{SPn+j}, 0, vcc''')
    e('v_mov_b32 v4, 0xbf803f80\nv_cmp_eq_u32 vcc, 0, v8')
    for j in range(8): e(f'v_cndmask_b32 v{SPn+j}, v{SPn+j}, v4, vcc')
    e('K1A_ST1:')
    e(f'''v_bfe_u32 v4, v1, 2, 2
    v_lshl_add_u32 v4, v9, 3, v4
    v_mul_u32_u24 v4, 960, v4
    v_and_b32 v5, 1, v1
    v_bfe_u32 v6, v1, 4, 1
    v_lshl_add_u32 v5, v5, 1, v6
    v_bfe_u32 v6, v1, 1, 1
    v_lshl_add_u32 v5, v5, 1, v6
    v_mad_u32_u24 v4, v5, 56, v4
    v_lshl_add_u32 v4, v2, 3, v4''')
    e(f'''v_mul_u32_u24 v13, 5120, v2
    v_add_u32 v13, v16, v13
    v_lshl_add_u32 v13, v9, 4, v13
    v_add_u32 v13, {VL}, v13
    v_mul_u32_u24 v14, 1032, v8
    v_lshl_add_u32 v14, v9, 7, v14
    v_add_u32 v14, {OL}, v14
    s_lshl_b32 s48, s48, 1
    v_add_u32 v15, s48, v14
    v_lshl_add_u32 v14, v2, 1, v14''')
    stamp(A,3)
    e('s_waitcnt vmcnt(0) lgkmcnt(0)\ns_barrier')
    stamp(A,4)
    e(f's_cmp_eq_u32 s{sWV}, 7\ns_cbranch_scc1 K1A_B2')
    XA=64; U0=80; U1=96; BO=112; VU=128
    for dh in range(2):
        for ks in range(2):
            for jj in range(2):
                e(f'ds_read_b64_tr_b16 {vr(XA+8*dh+4*ks+2*jj,2)}, v4 offset:{15360*ks+3840*jj+448*dh}')
    e('s_waitcnt lgkmcnt(4)')
    e(MF(U0,XA,FF)); e(MF(U0,XA+4,FF+4,U0))
    e('s_waitcnt lgkmcnt(0)')
    e(MF(U1,XA+8,FF)); e(MF(U1,XA+12,FF+4,U1))
    for u in range(4):
        e(f'v_cvt_pk_bf16_f32 v{BO+4*u}, v{U0+u}, v{U0+4+u}\nv_cvt_pk_bf16_f32 v{BO+4*u+1}, v{U0+8+u}, v{U0+12+u}')
    for u in range(4):
        e(f'v_cvt_pk_bf16_f32 v{BO+4*u+2}, v{U1+u}, v{U1+4+u}\nv_cvt_pk_bf16_f32 v{BO+4*u+3}, v{U1+8+u}, v{U1+12+u}')
    for u in range(4): e(MF(VU+16*u,HH,BO+4*u))
    for r in range(8):
        e(f'v_cvt_pk_bf16_f32 v{XA+2*r}, v{VU+r}, v{VU+16+r}')
    for r in range(8):
        e(f'v_cvt_pk_bf16_f32 v{XA+2*r+1}, v{VU+32+r}, v{VU+48+r}')
        e(f'ds_write_b64 v10, {vr(XA+2*r,2)} offset:{2560*r}')
    e('K1A_B2:\ns_waitcnt lgkmcnt(0)\ns_barrier')
    for ks in range(4): e(f'ds_read_b128 {vr(XA+4*ks,4)}, v13 offset:{32*(ks&1)+2560*(ks>>1)}')
    GA=[CP,CP+4,A2,A2+4]; GB=[SPn,SPn+4,B2,B2+4]
    for ks in range(4):
        e(f's_waitcnt lgkmcnt({3-ks})')
        e(MF(U0,GA[ks],XA+4*ks,U0 if ks else None)); e(MF(U1,GB[ks],XA+4*ks,U1 if ks else None))
    stamp(A,5)
    srd(A,SWS,18,2<<20,AINT_OFF)
    for (U,ab) in ((U0,0),(U1,64)):
        for j in range(8): e(f'v_cvt_pk_bf16_f32 v{BO+j}, v{U+2*j}, v{U+2*j+1}')
        for a in range(4):
            e(f'''ds_write_b16 v14, v{BO+2*a} offset:{256*a+ab}
            ds_write_b16_d16_hi v15, v{BO+2*a} offset:{256*a+32+ab}
            ds_write_b16 v14, v{BO+2*a+1} offset:{256*a+32+ab}
            ds_write_b16_d16_hi v15, v{BO+2*a+1} offset:{256*a+64+ab}''')
    e(f'''s_mul_i32 s45, s{sWV}, {4*1032}
    s_add_u32 s45, s45, {OL}
    v_add_u32 v4, s45, v3
    s_lshl_b32 s44, s{sWV}, 8
    s_add_u32 s44, s44, s43
    s_lshl_b32 s44, s44, 10
    s_waitcnt lgkmcnt(0)
    s_barrier
    s_mov_b32 exec_hi, 0x00ffffff''')
    for i in range(4): e(f'ds_read2_b64 {vr(XA+4*i,4)}, v4 offset0:{129*i%256 if False else 0} offset1:1' if i==0 else f'v_add_u32 v4, 1032, v4\nds_read2_b64 {vr(XA+4*i,4)}, v4 offset0:0 offset1:1')
    st=OPT['st_aint']
    for i in range(4):
        e(f's_waitcnt lgkmcnt({3-i})')
        e(f'buffer_store_dwordx4 {vr(XA+4*i,4)}, v3, s[{SWS}:{SWS+3}], s44 offen {st}')
        e(f's_add_u32 s44, s44, 65536')
    dump(A,3,[(0,1,1),(0,2,0),(1,3,0),(3,4,0),(4,5,0),(5,6,0),(7,7,0),(8,8,0)],16)
    e('K1_END:\ns_endpgm')

def k2(A):
    e=A.e
    OPT['k2']=1
    SD,SPH,SO=20,24,28
    sWV=40
    e('k2_kernel:')
    e('s_cmp_ge_u32 s2, 256\ns_cbranch_scc1 K2_END')
    stamp(A,0)
    e('s_load_dwordx4 s[8:11], s[0:1], 64\ns_load_dwordx2 s[12:13], s[0:1], 88')
    if OPT['prof'] and OPT['prof']!=9:
        e('''s_load_dwordx2 s[14:15], s[0:1], 80
        s_waitcnt lgkmcnt(0)
        s_cmp_eq_u32 s2, 0
        s_cbranch_scc0 K2_NOCP
        s_sub_u32 s72, s14, 512
        s_subb_u32 s73, s15, 0
        s_mov_b32 s74, 1024
        s_mov_b32 s75, 0x20000
        v_and_b32 v1, 7, v0
        v_lshlrev_b32 v1, 2, v1
        buffer_load_dword v2, v1, s[72:75], 0 offen offset:4
        s_waitcnt vmcnt(0)
        buffer_store_dword v2, v1, s[72:75], 0 offen offset:512
        s_waitcnt vmcnt(0)
        K2_NOCP:''')
    e('v_and_b32 v1, 63, v0\nv_lshrrev_b32 v2, 6, v0')
    e('s_and_b32 s41, s2, 7\ns_lshr_b32 s42, s2, 3')
    e(f'v_readfirstlane_b32 s{sWV}, v2')
    e('''v_and_b32 v8, 31, v1
    v_lshrrev_b32 v9, 5, v1
    v_bfe_u32 v10, v1, 2, 2
    v_bfe_u32 v3, v1, 4, 1
    v_and_b32 v4, 1, v1
    v_lshl_add_u32 v4, v3, 1, v4
    v_bfe_u32 v5, v1, 1, 1
    v_lshl_add_u32 v4, v4, 1, v5
    v_lshlrev_b32 v11, 3, v4
    v_and_b32 v4, 7, v1
    v_lshlrev_b32 v3, 2, v3
    v_xor_b32 v4, v4, v3
    v_lshlrev_b32 v12, 4, v4
    v_lshrrev_b32 v13, 3, v1''')
    e('s_cmp_ge_u32 s42, 28\ns_cbranch_scc1 K2_A')
    e(f'''s_and_b32 s43, s42, 3
    s_lshl_b32 s41, s41, 2
    s_add_u32 s43, s43, s41
    s_lshr_b32 s44, s42, 2
    s_and_b32 s45, s{sWV}, 1
    s_lshr_b32 s46, s{sWV}, 1''')
    vD,vF16,vF8=14,15,16
    e(f'''v_mul_u32_u24 v3, 896, v13
    v_add_u32 v3, v3, v12
    v_lshlrev_b32 v{vF16}, 4, v1
    v_lshlrev_b32 v{vF8}, 3, v1
    s_cmp_eq_u32 s46, 0
    s_cselect_b64 vcc, -1, 0
    s_cselect_b32 s47, 1024, 7168
    s_cselect_b32 s48, 28672, {224*896}
    s_cselect_b32 s49, 0, 128
    s_mul_i32 s48, s48, s45
    s_mul_i32 s49, s49, s44
    s_add_u32 s48, s48, s49
    v_cndmask_b32 v{vD}, v3, v{vF16}, vcc
    s_mul_i32 s50, s{sWV}, 28672
    s_lshl_b32 s51, s43, 1
    s_add_u32 s51, s51, s45
    s_lshl_b32 s52, s51, 4
    s_lshl_b32 s53, s46, 3
    s_add_u32 s52, s52, s53
    s_mul_i32 s52, s52, 3584
    s_mov_b32 m0, s50
    s_waitcnt lgkmcnt(0)
    s_add_u32 s54, s12, {KV_OFF}
    s_addc_u32 s55, s13, 0
    s_cmp_eq_u32 s46, 0
    s_cselect_b32 s{SD}, s54, s8
    s_cselect_b32 s{SD+1}, s55, s9
    s_cselect_b32 s{SD+2}, {16*3584}, {448*896}
    s_mov_b32 s{SD+3}, 0x20000''')
    stamp(A,1)
    srd(A,SPH,12,64*16*3584,PHIQ_OFF)
    PHI=128
    for s in range(4):
        for n in range(7):
            e(f'buffer_load_dwordx4 v{vD}, s[{SD}:{SD+3}], s48 offen lds')
            e(f's_add_u32 m0, m0, 1024\ns_add_u32 s48, s48, s47')
        for hl in (2*s,2*s+1):
            for c in range(3): e(f'buffer_load_dwordx4 {vr(PHI+16*hl+4*c,4)}, v{vF16}, s[{SPH}:{SPH+3}], s52 offen offset:{1024*c}')
            e(f'buffer_load_dwordx2 {vr(PHI+16*hl+12,2)}, v{vF8}, s[{SPH}:{SPH+3}], s52 offen offset:3072')
            e('s_add_u32 s52, s52, 3584')
    srd(A,SO,10,2048*1792)
    vK,vN0,vN1,vS0,vS1=17,18,19,20,21
    e(f'''s_mul_i32 s53, s46, 28672
    v_lshlrev_b32 v3, 2, v1
    v_add_u32 v{vK}, s53, v3
    s_add_u32 s53, s53, 57344
    v_lshl_add_u32 v3, v9, 2, v10
    v_lshlrev_b32 v3, 7, v3
    v_lshrrev_b32 v4, 1, v10
    v_lshl_add_u32 v3, v4, 6, v3
    v_add3_u32 v{vN0}, v3, v11, s53
    v_xor_b32 v{vN1}, 64, v{vN0}
    v_lshlrev_b32 v3, 1, v9
    v_xor_b32 v3, v3, v10
    v_lshrrev_b32 v4, 1, v3
    v_lshlrev_b32 v3, 7, v3
    v_lshl_add_u32 v3, v4, 6, v3
    v_add3_u32 v{vS0}, v3, v11, s53
    v_xor_b32 v{vS1}, 64, v{vS0}''')
    KF=[24,40]; WFR=56; NUM=[72,88]; OP=104; OUT=[112-0,0]
    OUT0,OUT1=22*0+0,0
    OUT0=112
    def MFo(mt,a,b,first):
        if mt==0: return MF(OUT0,a,b,None if first else OUT0)
        return f'v_mfma_f32_32x32x16_bf16 a[0:15], {vr(a,4)}, {vr(b,4)}, '+('0' if first else 'a[0:15]')
    for hl in range(8): e(f'v_mov_b32 v{PHI+16*hl+14}, 0\nv_mov_b32 v{PHI+16*hl+15}, 0')
    for b in range(2): e(f'v_mov_b32 v{KF[b]+14}, 0\nv_mov_b32 v{KF[b]+15}, 0')
    e(f'v_mov_b32 v{OP+7}, 0\ns_mov_b32 s56, {f2u(1e-6)}')
    def rdkv(hl):
        for p in range(7): e(f'ds_read2st64_b32 {vr(KF[hl&1]+2*p,2)}, v{vK} offset0:{14*hl+2*p} offset1:{14*hl+2*p+1}')
    def rdwo(hl):
        for mt in range(2):
            for q in range(4):
                if q<3: e(f'ds_read_b64_tr_b16 {vr(WFR+8*mt+2*q,2)}, v{(vN0,vN1)[mt]} offset:{3584*hl+1024*q}')
                else: e(f'ds_read_b64_tr_b16 {vr(WFR+8*mt+6,2)}, v{(vS0,vS1)[mt]} offset:{3584*hl+3072}')
    def num(hl):
        for s in range(4): e(MF(NUM[hl&1],KF[hl&1]+4*s,PHI+16*hl+4*s,NUM[hl&1] if s else None))
    def fin(hl):
        N=NUM[hl&1]
        e(f'v_add_f32 v22, s56, v{N+14}\nv_rcp_f32 v22, v22')
        for j in range(0,14,2): e(f'v_pk_mul_f32 {vr(N+j,2)}, {vr(N+j,2)}, v[22:23] op_sel_hi:[1,0]')
        for j in range(7): e(f'v_cvt_pk_bf16_f32 v{OP+j}, v{N+2*j}, v{N+2*j+1}')
        e('s_waitcnt lgkmcnt(0)')
        for sp in range(2):
            for mt in range(2): e(MFo(mt,WFR+8*mt+4*sp,OP+4*sp,hl==0 and sp==0))
    for hl in range(8):
        if hl%2==0:
            e(f's_waitcnt vmcnt({45-15*(hl//2)})\ns_barrier')
            if hl==0: stamp(A,3)
            if hl==6: stamp(A,4)
        rdkv(hl)
        if hl>0: rdwo(hl-1)
        e('s_waitcnt lgkmcnt(%d)'%(8 if hl>0 else 0))
        num(hl)
        if hl>0: fin(hl-1)
    rdwo(7); fin(7)
    stamp(A,5)
    e(f'''s_lshl_b32 s53, s{sWV}, 12
    s_add_u32 s53, s53, 114688
    v_add_u32 v3, s53, v{vF16}
    s_xor_b32 s53, s53, 8192
    v_add_u32 v4, s53, v{vF16}
    s_cmp_eq_u32 s46, 0
    s_cbranch_scc1 K2_X0''')
    for q in range(4): e(f'ds_write_b128 v3, {vr(OUT0+4*q,4)} offset:{1024*q}')
    for j in range(16): e(f'v_accvgpr_read_b32 v{OUT0+j}, a{j}')
    e('s_branch K2_X1\nK2_X0:\ns_nop 4')
    for q in range(4): e(f'ds_write_b128 v3, a[{4*q}:{4*q+3}] offset:{1024*q}')
    e('K2_X1:')
    e(f'''s_lshl_b32 s51, s51, 5
    v_add_u32 v5, s51, v8
    v_mul_u32_u24 v5, 1792, v5
    v_lshl_add_u32 v5, v9, 4, v5
    s_lshl_b32 s54, s44, 7
    s_lshl_b32 s55, s46, 6
    s_add_u32 s54, s54, s55
    s_add_u32 s54, s54, 896
    s_waitcnt lgkmcnt(0)
    s_barrier''')
    for q in range(4): e(f'ds_read_b128 {vr(24+4*q,4)}, v4 offset:{1024*q}')
    st=OPT['st_out']
    for i in range(2):
        e(f's_waitcnt lgkmcnt({2-2*i})')
        for j in range(0,8,2): e(f'v_pk_add_f32 {vr(OUT0+8*i+j,2)}, {vr(OUT0+8*i+j,2)}, {vr(24+8*i+j,2)}')
        for j in range(4): e(f'v_cvt_pk_bf16_f32 v{56+4*i+j}, v{OUT0+8*i+2*j}, v{OUT0+8*i+2*j+1}')
        e(f'buffer_store_dwordx4 {vr(56+4*i,4)}, v5, s[{SO}:{SO+3}], s54 offen offset:{32*i} {st}')
    if OPT['prof'] in (1,2,9): dump(A,OPT['prof'] if OPT['prof']!=9 else 1,[(0,8,1),(0,9,0),(1,10,0),(3,11,0),(4,12,0),(5,13,0),(7,14,0),(8,15,0)],14)
    e('s_endpgm')
    e('K2_A:')
    e(f'''s_lshl_b32 s43, s41, 2
    s_add_u32 s43, s43, s42
    s_sub_u32 s43, s43, 28
    s_and_b32 s44, s43, 1
    s_lshr_b32 s43, s43, 1
    s_sub_u32 s45, 4, s44
    v_lshl_add_u32 v14, v13, 10, v12
    s_lshl_b32 s46, s43, 17
    s_lshl_b32 s47, s{sWV}, 15
    s_add_u32 s46, s46, s47
    s_lshl_b32 s47, s44, 9
    s_add_u32 s46, s46, s47
    s_lshl_b32 s47, s{sWV}, 12
    s_mov_b32 s48, 0
    s_waitcnt lgkmcnt(0)''')
    stamp(A,1)
    srd(A,SD,12,2<<20,AINT_OFF)
    e('K2A_LD:')
    e('s_mov_b32 m0, s47\ns_add_u32 s49, s46, 8192')
    e(f'buffer_load_dwordx4 v14, s[{SD}:{SD+3}], s46 offen lds')
    for n in range(1,4):
        e(f's_add_u32 m0, s47, {1024*n}\ns_nop 0')
        e(f'buffer_load_dwordx4 v14, s[{SD}:{SD+3}], s49 offen lds')
        if n<3: e('s_add_u32 s49, s49, 8192')
    e('''s_add_u32 s46, s46, 128
    s_add_u32 s47, s47, 16384
    s_add_u32 s48, s48, 1
    s_cmp_lt_u32 s48, s45
    s_cbranch_scc1 K2A_LD''')
    srd(A,SO,10,2048*1792)
    e(f'''s_lshr_b32 s56, s{sWV}, 1
    s_sub_u32 s57, 32, s43
    s_cmp_eq_u32 s56, 0
    s_cselect_b32 s50, s43, s57
    s_cselect_b32 s51, 0x80008000, 0
    s_cselect_b32 s52, 0, 0x80008000
    s_cselect_b32 s58, 0, 16
    s_cselect_b32 s59, 0, 8192
    s_cmp_eq_u32 s43, 0
    s_cselect_b32 s50, s58, s50
    s_cselect_b32 s53, 0, -1
    s_cselect_b32 s54, s59, 0
    s_mov_b32 s55, 8192
    s_and_b32 s56, s{sWV}, 1
    s_lshl_b32 s56, s56, 10
    s_add_u32 s50, s50, s56
    v_lshlrev_b32 v3, 5, v8
    v_add_u32 v15, s50, v3
    v_cvt_f32_u32 v4, v15
    v_mul_f32 v4, {f2u(1/2048)}, v4
    v_cvt_f32_u32 v5, v9
    v_mul_f32 v5, {f2u(8.0)}, v5
    v_mul_f32 v5, v4, v5
    v_mov_b32 v6, s53''')
    C,S,S2,C2=24,40,56,72; TT=88
    for ks in range(4):
        for j in range(8): e(f'v_fmamk_f32 v{TT+j}, v4, {f2u(16.*ks+j)}, v5')
        for j in range(8): e(f'v_sin_f32 v{TT+8+j}, v{TT+j}\nv_cos_f32 v{TT+j}, v{TT+j}')
        for j in range(4): e(f'v_cvt_pk_bf16_f32 v{C+4*ks+j}, v{TT+2*j}, v{TT+2*j+1}\nv_cvt_pk_bf16_f32 v{S+4*ks+j}, v{TT+8+2*j}, v{TT+8+2*j+1}')
    for j in range(16):
        e(f'v_bitop3_b32 v{S2+j}, v{S+j}, s51, v6 bitop3:0x28\nv_bitop3_b32 v{C2+j}, v{C+j}, s52, v6 bitop3:0x28')
    aR,aS,bS,bR=16,17,18,19
    e(f'''v_lshl_add_u32 v3, v9, 3, v10
    v_lshlrev_b32 v3, 7, v3
    v_lshrrev_b32 v4, 1, v10
    v_lshl_add_u32 v3, v4, 6, v3
    v_add_u32 v3, v3, v11
    v_add_u32 v{aR}, s54, v3
    v_add_u32 v{aS}, s55, v3
    v_xor_b32 v{bR}, 64, v{aR}
    v_xor_b32 v{bS}, 64, v{aS}''')
    e(f'''v_mul_u32_u24 v20, 1792, v15
    v_lshlrev_b32 v3, 4, v9
    v_sub_u32 v21, v20, v3
    v_add_u32 v20, v20, v3
    s_lshl_b32 s60, s44, 8
    s_sub_u32 s61, {882-32}, s60
    v_add_u32 v21, s61, v21
    s_mov_b32 s48, 0
    s_lshl_b32 s62, s44, 2''')
    FR=88; PA=152; QA=168; PX=184; PK=200
    stamp(A,3)
    e('K2A_LOOP:')
    e('''s_cmp_ge_u32 s48, 2
    s_cbranch_scc1 K2A_GO
    s_add_u32 s63, s44, s48
    s_cmp_eq_u32 s63, 0
    s_cbranch_scc0 K2A_W3
    s_waitcnt vmcnt(12)
    K2A_W3:
    s_cmp_eq_u32 s48, 0
    s_cbranch_scc0 K2A_W4
    s_cmp_eq_u32 s44, 0
    s_cbranch_scc1 K2A_W4
    s_waitcnt vmcnt(8)
    K2A_W4:
    s_barrier
    K2A_GO:''')
    if OPT['prof']:
        e('s_cmp_eq_u32 s48, 0\ns_cbranch_scc0 K2A_P1'); stamp(A,4); e('K2A_P1:\ns_cmp_eq_u32 s48, 1\ns_cbranch_scc0 K2A_P2'); stamp(A,5); e('K2A_P2:')
    srcs=[(aR,C,PA),(aS,S2,PA),(bS,C2,QA),(bR,S,QA)]
    seq=[(ks,q) for ks in range(4) for q in range(4)]
    def rdA(n):
        ks,q=seq[n]
        for jj in range(2): e(f'ds_read_b64_tr_b16 {vr(FR+4*n+2*jj,2)}, v{srcs[q][0]} offset:{2048*ks+512*jj}')
    for n in range(6): rdA(n)
    for n in range(16):
        if n+6<16: rdA(n+6); e('s_waitcnt lgkmcnt(12)')
        else: e(f's_waitcnt lgkmcnt({2*(15-n)})')
        ks,q=seq[n]
        first=(ks==0 and q in(0,2))
        e(MF(srcs[q][2],FR+4*n,srcs[q][1]+4*ks,None if first else srcs[q][2]))
    e('s_cmp_eq_u32 s48, 0\ns_cbranch_scc0 K2A_NW\ns_waitcnt vmcnt(0)\nK2A_NW:\ns_nop 7')
    e('s_cmp_eq_u32 s62, 0\ns_cbranch_scc0 K2A_NS')
    for ks in range(4):
        e(MF(PX,FR+4*(4*ks+3),C+4*ks,PX if ks else None)); e(MF(PX,FR+4*(4*ks+2),S2+4*ks,PX))
    e('s_mov_b32 exec_hi, 0')
    e(f'v_mov_b32 v{QA}, 0\nv_cvt_pk_bf16_f32 v{PX}, v{PX}, v{PX}')
    e(f'buffer_store_short v{PX}, v20, s[{SO}:{SO+3}], 0 offen offset:448')
    e('s_mov_b32 exec_hi, -1')
    e('K2A_NS:')
    for j in range(0,16,2):
        e(f'v_pk_add_f32 {vr(PX+j,2)}, {vr(PA+j,2)}, {vr(QA+j,2)}')
        e(f'v_pk_add_f32 {vr(PA+j,2)}, {vr(PA+j,2)}, {vr(QA+j,2)} neg_lo:[0,1] neg_hi:[0,1]')
    for j in range(8): e(f'v_cvt_pk_bf16_f32 v{PK+j}, v{PA+2*j}, v{PA+2*j+1}')
    for i in range(2):
        for n in range(4): e(f'v_cvt_pk_bf16_f32 v{PK+8+4*i+n}, v{PX+8*i+7-2*n}, v{PX+8*i+6-2*n}')
    for i in range(2): e(f'buffer_store_dwordx4 {vr(PK+4*i,4)}, v20, s[{SO}:{SO+3}], s60 offen offset:{32*i} {st}')
    e(f'buffer_store_dwordx4 {vr(PK+12,4)}, v21, s[{SO}:{SO+3}], 0 offen {st}')
    e('s_cmp_eq_u32 s62, 0\ns_cbranch_scc1 K2A_SP2')
    e(f'buffer_store_dwordx4 {vr(PK+8,4)}, v21, s[{SO}:{SO+3}], 0 offen offset:32 {st}')
    e('s_branch K2A_NX\nK2A_SP2:')
    e('s_mov_b32 exec_lo, 0')
    e(f'buffer_store_dwordx4 {vr(PK+8,4)}, v21, s[{SO}:{SO+3}], 0 offen offset:32 {st}')
    e('s_mov_b32 exec_lo, -1\ns_mov_b32 exec_hi, 0')
    e(f'buffer_store_dwordx3 {vr(PK+8,3)}, v21, s[{SO}:{SO+3}], 0 offen offset:32')
    e(f'buffer_store_short v{PK+11}, v21, s[{SO}:{SO+3}], 0 offen offset:44')
    e('s_mov_b32 exec_hi, -1')
    e('K2A_NX:')
    for r in (aR,aS,bS,bR): e(f'v_add_u32 v{r}, 16384, v{r}')
    e('''v_subrev_u32 v21, 64, v21
    s_add_u32 s60, s60, 64
    s_add_u32 s62, s62, 1
    s_add_u32 s48, s48, 1
    s_cmp_lt_u32 s48, s45
    s_cbranch_scc1 K2A_LOOP''')
    dump(A,3,[(0,8,1),(0,9,0),(1,10,0),(3,11,0),(4,12,0),(5,13,0),(7,14,0),(8,15,0)],14)
    e('K2_END:\ns_endpgm')

def k3(A):
    e=A.e
    kk,si,role,stat,scale=[int(x) for x in OPT['x'].split(',')]
    e('k3_kernel:')
    e('s_cmp_ge_u32 s2, 1\ns_cbranch_scc1 K3_END')
    e('s_load_dwordx2 s[4:5], s[0:1], 88\nv_lshlrev_b32 v1, 6, v0\nv_mov_b32 v2, 0\nv_mov_b32 v3, -1\nv_mov_b32 v4, 0')
    e('ds_write_b32 v2, v3\nds_write_b32 v2, v4 offset:4\nds_write_b32 v2, v4 offset:8\ns_waitcnt lgkmcnt(0)\ns_barrier')
    e('s_add_u32 s8, s4, 0x800000\ns_addc_u32 s9, s5, 0\ns_mov_b32 s10, 0x20000\ns_mov_b32 s11, 0x20000')
    e(f'buffer_load_dword v5, v1, s[8:11], 0 offen\ns_mov_b32 s12, {0x10000*kk}')
    e(f'buffer_load_dword v6, v1, s[8:11], s12 offen offset:{4*si}\nbuffer_load_dword v7, v1, s[8:11], s12 offen offset:40\ns_waitcnt vmcnt(0)')
    e('ds_min_u32 v2, v5\ns_waitcnt lgkmcnt(0)\ns_barrier\nds_read_b32 v8, v2\ns_waitcnt lgkmcnt(0)\nv_sub_u32 v6, v6, v8')
    e(f'v_cmp_eq_u32 vcc, {role}, v7\nv_cndmask_b32 v6, 0, v6, vcc\nv_cndmask_b32 v9, 0, 1, vcc')
    e(('ds_max_u32 v2, v6 offset:4' if stat==0 else 'ds_add_u32 v2, v6 offset:4')+'\nds_add_u32 v2, v9 offset:8\ns_waitcnt lgkmcnt(0)\ns_barrier')
    e('ds_read_b32 v6, v2 offset:4\nds_read_b32 v9, v2 offset:8\ns_waitcnt lgkmcnt(0)')
    e(f'v_cvt_f32_u32 v6, v6\nv_mul_f32 v6, {f2u(float(scale))}, v6')
    if stat==1: e('v_cvt_f32_u32 v9, v9\nv_rcp_f32 v9, v9\nv_mul_f32 v6, v6, v9')
    e('v_cvt_u32_f32 v6, v6\nv_min_u32 v6, 100000, v6\nv_readfirstlane_b32 s14, v6')
    e('s_memrealtime s[16:17]\ns_waitcnt lgkmcnt(0)\nK3_L:\ns_memrealtime s[18:19]\ns_waitcnt lgkmcnt(0)\ns_sub_u32 s20, s18, s16\ns_cmp_lt_u32 s20, s14\ns_cbranch_scc1 K3_L')
    e('K3_END:\ns_endpgm')

def desc(name,vgpr,sgpr,acc):
    return f'''.amdhsa_kernel {name}
  .amdhsa_next_free_vgpr {vgpr}
  .amdhsa_next_free_sgpr {sgpr}
  .amdhsa_accum_offset {acc}
  .amdhsa_group_segment_fixed_size 0
  .amdhsa_kernarg_size 96
  .amdhsa_user_sgpr_count 2
  .amdhsa_user_sgpr_kernarg_segment_ptr 1
  .amdhsa_system_sgpr_workgroup_id_x 1
.end_amdhsa_kernel
'''
def main():
    A1=Asm(); k1(A1); A2=Asm(); k2(A2)
    assert A1.verify_branches()==0 and A2.verify_branches()==0
    v1=A1.maxreg('v')+1; v2=A2.maxreg('v')+1; a2=A2.maxreg('a')+1
    r4=lambda x:(x+3)//4*4
    hdr=open('concat_heads__spectral_fnet__linear_kernel_hedgehog__prompt.s.ref').read().split('; Override')[0]
    out=hdr+'; @launch kernel=k1_kernel grid=(256,1,1) block=(512,1,1) lds=139264\n; @launch kernel=k2_kernel grid=(256,1,1) block=(256,1,1) lds=131072\n'
    ks=[('k1_kernel',A1),('k2_kernel',A2)]
    if 'x' in OPT:
        A3=Asm(); k3(A3); ks.append(('k3_kernel',A3)); out+='; @launch kernel=k3_kernel grid=(1,1,1) block=(256,1,1) lds=64\n'
    out+='.amdgcn_target "amdgcn-amd-amdhsa--gfx950"\n.text\n'
    for n,A in ks:
        out+=f'.globl {n}\n.p2align 8\n.type {n},@function\n'+A.text()
    out+='.section .rodata,"a"\n.p2align 6\n'+desc('k1_kernel',v1,102,r4(v1))+'.p2align 6\n'+desc('k2_kernel',r4(v2)+a2,102,r4(v2))
    if 'x' in OPT: out+='.p2align 6\n'+desc('k3_kernel',16,32,16)
    open(sys.argv[1],'w').write(out)
    print('k1 vgpr',v1,'k2 vgpr',v2,'agpr',a2, 'k1 sgpr',A1.maxreg('s')+1,'k2 sgpr',A2.maxreg('s')+1)
main()
```

```python
import sys, math
from asmlib import *

PHIQ_OFF=0; KV_OFF=0x400000; AINT_OFF=0x500000
LOG2E=1.4426950408889634
OPT=dict(st_phi='sc1', st_aint='sc1', st_out='', prof=0, rot=1, ldx='nt', lda='nt', D=2, apf=1, wpf=1, cpf=1)
for a in sys.argv[2:]:
    k,v=a.split('='); OPT[k]=int(v) if v.lstrip('-').isdigit() else v

def srd(A,d,base,nbytes,off=0):
    if off: A.e(f's_add_u32 s{d}, s{base}, {hex(off)}\ns_addc_u32 s{d+1}, s{base+1}, 0')
    else: A.e(f's_mov_b32 s{d}, s{base}\ns_mov_b32 s{d+1}, s{base+1}')
    A.e(f's_mov_b32 s{d+2}, {hex(nbytes)}\ns_mov_b32 s{d+3}, 0x20000')

NST=[0]
def stamp(A,i):
    if OPT.get('lp') and 1<=i<=6 and not OPT.get('k2'): return
    if OPT['prof']:
        A.e(f's_memrealtime s[{80+2*i}:{81+2*i}]')
        if i==0: A.e('s_memtime s[98:99]')
def dump(A,role,ws,ko):
    if not OPT['prof']: return
    NST[0]+=1; L=f'PD{NST[0]}'
    A.e(f's_memrealtime s[94:95]\ns_waitcnt vmcnt(0) lgkmcnt(0)\ns_memrealtime s[96:97]\ns_memtime s[78:79]\ns_waitcnt lgkmcnt(0)')
    A.e(f's_cmp_eq_u32 s40, {OPT.get("pw",0)}\ns_cbranch_scc0 {L}')
    A.e(f's_add_u32 s72, s{ws}, {ko}\ns_addc_u32 s73, s{ws+1}, 0\ns_mov_b32 s74, 0x10000\ns_mov_b32 s75, 0x20000\ns_mov_b64 exec, 1\ns_lshl_b32 s76, s2, 6\ns_sub_u32 s78, s78, s98')
    for i in range(9): A.e(f'v_mov_b32 v0, s{80+2*i}\nbuffer_store_dword v0, off, s[72:75], s76 offset:{4*i}')
    A.e(f'v_mov_b32 v0, s78\nbuffer_store_dword v0, off, s[72:75], s76 offset:36\nv_mov_b32 v0, {role}\nbuffer_store_dword v0, off, s[72:75], s76 offset:40')
    A.e(f'{L}:')
def dump1(A,role): dump(A,role,18,0x800000)
def dump2(A,role): dump(A,role,12,0x810000)

def MF(d,a,b,c=None):
    cc='0' if c is None else vr(c,16)
    return f'v_mfma_f32_32x32x16_bf16 {vr(d,16)}, {vr(a,4)}, {vr(b,4)}, {cc}'

def k1(A):
    e=A.e
    SX,SW,SP,SWS,SDB=20,24,28,32,36
    sWV=40
    e('k1_kernel:')
    e('s_cmp_ge_u32 s2, 256\ns_cbranch_scc1 K1_END')
    stamp(A,0)
    e('s_load_dwordx8 s[8:15], s[0:1], 40\ns_load_dwordx4 s[16:19], s[0:1], 80\ns_load_dwordx2 s[4:5], s[0:1], 0')
    e('v_and_b32 v1, 63, v0\nv_lshrrev_b32 v2, 6, v0')
    e('s_and_b32 s41, s2, 7\ns_lshr_b32 s42, s2, 3')
    e(f'v_readfirstlane_b32 s{sWV}, v2')
    e('s_cmp_ge_u32 s42, 24\ns_cbranch_scc1 K1_A')
    e('''s_and_b32 s43, s42, 1
    s_lshl_b32 s50, s41, 1
    s_add_u32 s43, s43, s50
    s_lshr_b32 s50, s42, 1
    s_and_b32 s50, s50, 7
    s_lshr_b32 s44, s42, 4
    s_add_u32 s53, s44, 1
    s_lshl_b32 s49, s50, s53''')
    e(f's_cmp_ge_u32 s{sWV}, 8\ns_cbranch_scc0 K1_C')
    vX0,vX1,vW,vP=10,11,12,13
    e(f'''s_sub_u32 s61, s{sWV}, 8
    s_cmp_eq_u32 s44, 1
    s_cselect_b32 s46, 0, 784
    s_cselect_b32 s51, 224, 112
    s_cselect_b32 s52, 0, 896
    s_mul_i32 s45, s50, s51
    s_add_u32 s45, s45, s52
    v_lshrrev_b32 v3, 3, v1
    v_lshrrev_b32 v4, 4, v1
    v_and_b32 v5, 7, v1
    v_xor_b32 v5, v5, v4
    v_lshlrev_b32 v5, 4, v5
    v_mul_u32_u24 v3, 896, v3
    v_add_u32 v{vX0}, v3, v5
    v_xor_b32 v{vX1}, 64, v{vX0}
    v_add_u32 v{vX1}, {8*896}, v{vX1}
    v_and_b32 v5, 15, v1
    v_lshlrev_b32 v6, 2, v4
    v_xor_b32 v5, v5, v6
    v_min_u32 v5, 13, v5
    v_mul_u32_u24 v6, 2688, v4
    v_lshl_add_u32 v6, v5, 4, v6
    v_mov_b32 v7, s46
    v_cmp_lt_u32 vcc, 6, v5
    v_cndmask_b32 v7, 0, v7, vcc
    v_add3_u32 v{vW}, v6, v7, s45
    v_lshlrev_b32 v{vP}, 4, v1
    s_lshl_b32 s54, s43, 2
    s_add_u32 s54, s54, s61
    s_mul_i32 s54, s54, {32*896}
    s_mul_i32 s62, s61, {16*2688}
    s_lshl_b32 s56, s61, 12
    s_mul_i32 s57, s49, 1568
    s_lshl_b32 s58, s61, 11
    s_add_u32 s57, s57, s58
    s_add_u32 m0, s58, 131072
    s_mov_b32 s59, 0''')
    if OPT['rot']:
        e(f'''s_min_u32 s58, s41, 6
        s_lshl_b32 s60, s58, 7
        s_add_u32 s54, s54, s60
        s_mul_i32 s55, s58, {64*2688}
        s_add_u32 s55, s55, s62''')
    else: e('s_mov_b32 s58, 0\ns_mov_b32 s55, s62')
    e('s_waitcnt lgkmcnt(0)')
    srd(A,SX,8,2048*896); srd(A,SW,10,448*2688); srd(A,SP,12,16*1568)
    lx=OPT['ldx']
    def issue():
        e(f'''s_mov_b32 m0, s56
        s_add_u32 s60, s54, {16*896}
        buffer_load_dwordx4 v{vX0}, s[{SX}:{SX+3}], s54 offen {lx} lds
        s_add_u32 m0, s56, 16384
        s_add_u32 s63, s55, {4*2688}
        buffer_load_dwordx4 v{vW}, s[{SW}:{SW+3}], s55 offen lds
        s_add_u32 m0, s56, 1024
        s_add_u32 s55, s55, {64*2688}
        buffer_load_dwordx4 v{vX1}, s[{SX}:{SX+3}], s54 offen {lx} lds
        s_add_u32 m0, s56, 17408
        s_add_u32 s54, s54, 128
        buffer_load_dwordx4 v{vW}, s[{SW}:{SW+3}], s63 offen lds
        s_add_u32 m0, s56, 2048
        s_add_u32 s63, s63, {4*2688}
        buffer_load_dwordx4 v{vX0}, s[{SX}:{SX+3}], s60 offen {lx} lds
        s_add_u32 m0, s56, 18432
        s_add_u32 s58, s58, 1
        buffer_load_dwordx4 v{vW}, s[{SW}:{SW+3}], s63 offen lds
        s_add_u32 m0, s56, 3072
        s_add_u32 s63, s63, {4*2688}
        buffer_load_dwordx4 v{vX1}, s[{SX}:{SX+3}], s60 offen {lx} lds
        s_add_u32 m0, s56, 19456
        s_add_u32 s56, s56, 32768
        buffer_load_dwordx4 v{vW}, s[{SW}:{SW+3}], s63 offen lds
        s_and_b32 s56, s56, 0x1ffff
        s_cmp_eq_u32 s58, 7
        s_cselect_b32 s60, 896, 0
        s_cselect_b32 s55, s62, s55
        s_sub_u32 s54, s54, s60''')
    D=OPT['D']
    e(f'buffer_load_dwordx4 v{vP}, s[{SP}:{SP+3}], s57 offen lds\nbuffer_load_dwordx4 v{vP}, s[{SP}:{SP+3}], s57 offen offset:1024 lds')
    e('K1_LL:')
    issue()
    e(f's_add_u32 s59, s59, 1\ns_cmp_lt_u32 s59, {D}\ns_cbranch_scc1 K1_LL')
    e(f's_waitcnt vmcnt({8*(D-1)})\ns_barrier\ns_cmp_lt_u32 s59, 7\ns_cbranch_scc1 K1_LL')
    for r in range(D-2,-1,-1): e(f's_waitcnt vmcnt({8*r})\ns_barrier')
    e('s_endpgm')
    e('K1_C:')
    vRX=14; vRW0,vRW1=18,19
    ACC0,ACC1=68,84
    WPH=100
    e(f'''s_cmp_eq_u32 s44, 1
    s_cselect_b32 s47, 112, 56
    s_cselect_b32 s48, 56, 112
    v_and_b32 v3, 3, v2
    v_and_b32 v4, 31, v1
    v_lshl_add_u32 v8, v3, 5, v4
    v_lshrrev_b32 v9, 5, v1
    v_bfe_u32 v5, v8, 1, 3
    v_xor_b32 v5, v5, v9
    v_lshlrev_b32 v5, 4, v5
    v_lshl_add_u32 v{vRX}, v8, 7, v5
    v_bfe_u32 v3, v1, 4, 1
    v_and_b32 v4, 3, v1
    v_lshl_add_u32 v3, v3, 2, v4
    v_min_u32 v3, 6, v3
    v_lshlrev_b32 v7, 3, v3
    v_lshrrev_b32 v10, 2, v2
    v_mul_u32_u24 v5, s47, v10
    v_add_u32 v3, v7, v5
    v_bfe_u32 v11, v1, 2, 2
    v_lshl_add_u32 v5, v9, 3, v11
    v_lshlrev_b32 v5, 8, v5
    v_add_u32 v5, 16384, v5
    v_lshlrev_b32 v4, 6, v11
    v_xor_b32 v6, v3, v4
    v_add_u32 v{vRW0}, v5, v6
    v_add_u32 v3, s48, v3
    v_xor_b32 v6, v3, v4
    v_add_u32 v{vRW1}, v5, v6
    v_lshl_add_u32 v4, v9, 2, v11
    v_mul_u32_u24 v4, 56, v4
    v_lshlrev_b32 v5, s44, v10
    v_mul_u32_u24 v5, 1568, v5
    v_add3_u32 v3, v7, v4, v5
    v_add_u32 v13, 131072, v3''')
    for ks in range(1,4): e(f'v_xor_b32 v{vRX+ks}, {32*ks}, v{vRX}')
    for i in range(0,16,2): e(f'v_mov_b64 {vr(ACC0+i,2)}, 0\nv_mov_b64 {vr(ACC1+i,2)}, 0')
    e('s_mov_b32 s59, 0')
    SET=[(20,36,52),(116,132,148)]
    def reads(st):
        XF,W0,W1=SET[st]; L=[]
        for ks in range(4):
            L.append(f'ds_read_b128 {vr(XF+4*ks,4)}, v{vRX+ks}')
            for (WF,ad) in ((W0,vRW0),(W1,vRW1)):
                for jj in range(2): L.append(f'ds_read_b64_tr_b16 {vr(WF+4*ks+2*jj,2)}, v{ad} offset:{4096*ks+1024*jj}')
        return L
    def mfmas(st):
        XF,W0,W1=SET[st]; L=[]
        for ks in range(4): L+= [MF(ACC0,W0+4*ks,XF+4*ks,ACC0),MF(ACC1,W1+4*ks,XF+4*ks,ACC1)]
        return L
    def adv():
        L=[]
        for r in (vRX,vRX+1,vRX+2,vRX+3,vRW0,vRW1): L+=[f'v_add_u32 v{r}, 32768, v{r}',f'v_and_b32 v{r}, 0x1ffff, v{r}']
        return L
    def shift():
        e(('s_memtime' if OPT.get('cyc') else 's_memrealtime')+' s[76:77]\ns_waitcnt lgkmcnt(0)')
        for i in range(1,7): e(f's_mov_b32 s{80+2*i}, s{82+2*i}')
        e('s_mov_b32 s92, s76')
    stamp(A,2)
    e('s_waitcnt lgkmcnt(0)\ns_barrier')
    stamp(A,3)
    for x in reads(0): e(x)
    for q in range(4):
        for u in range(2): e(f'ds_read_b64_tr_b16 {vr(WPH+8*u+2*q,2)}, v13 offset:{1568*u+448*q}')
    for x in adv(): e(x)
    srd(A,SDB,16,256)
    e(f'''s_cmp_eq_u32 s44, 1
    s_cselect_b32 s60, {PHIQ_OFF}, {KV_OFF}
    s_cselect_b32 s{SWS+2}, {64*16*3584}, {16*3584}
    s_add_u32 s{SWS}, s18, s60
    s_addc_u32 s{SWS+1}, s19, 0
    s_mov_b32 s{SWS+3}, 0x20000''')
    def step(rs):
        e('s_waitcnt lgkmcnt(0)\ns_barrier')
        if OPT.get('lp')==1: shift()
        R=reads(rs); M=mfmas(rs^1); V=adv()
        for mi in range(8):
            e(M[mi])
            for x in R[mi*20//7:(mi+1)*20//7]: e(x)
            if mi==7:
                for x in V: e(x)
    e('K1_LOOP:')
    step(1); step(0)
    e('s_add_u32 s59, s59, 1\ns_cmp_lt_u32 s59, 3\ns_cbranch_scc1 K1_LOOP')
    QB=20; T2=28; P=36; EP=52; EN=66; PH=80
    vFL=132; vSA=133; KEEP=136; vW0,vW1=134,135
    TM=120
    e(f'buffer_load_dword v{vFL}, off, s[{SDB}:{SDB+3}], 0 sc1')
    e('s_waitcnt lgkmcnt(0)')
    M=mfmas(0)
    F=f'''v_cmp_gt_u32 vcc, 32, v1
    s_mov_b32 s62, {f2u(LOG2E)}
    s_mov_b32 s61, 0
    v_cndmask_b32 v{WPH+6}, 0, v{WPH+6}, vcc
    v_cndmask_b32 v{WPH+7}, 0, v{WPH+7}, vcc
    v_cndmask_b32 v{WPH+14}, 0, v{WPH+14}, vcc
    v_cndmask_b32 v{WPH+15}, 0, v{WPH+15}, vcc
    s_and_b32 s63, s{sWV}, 3
    s_lshl_b32 s64, s43, 2
    s_add_u32 s63, s63, s64
    s_lshl_b32 s63, s63, 4
    s_lshr_b32 s64, s{sWV}, 2
    s_lshl_b32 s65, s64, 1
    s_add_u32 s63, s63, s65
    s_add_u32 s63, s63, s49
    s_mul_i32 s63, s63, 3584
    v_lshlrev_b32 v{vSA}, 4, v1
    s_mul_i32 s65, s64, 98304
    v_mul_u32_u24 v3, 192, v8
    v_bfe_u32 v4, v8, 1, 2
    v_lshlrev_b32 v5, 1, v9
    v_xor_b32 v4, v4, v5
    v_lshl_add_u32 v3, v4, 4, v3
    v_add_u32 v{vW0}, s65, v3
    v_xor_b32 v{vW1}, 16, v{vW0}
    v_mov_b32 v3, 0x3f80'''.split('\n')
    for mi in range(8):
        e(M[mi])
        for x in F[mi*len(F)//8:(mi+1)*len(F)//8]: e(x)
    stamp(A,4)
    for j in range(8): e(f'v_cvt_pk_bf16_f32 v{QB+j}, v{ACC0+2*j}, v{ACC0+2*j+1}')
    e(MF(P,WPH,QB)); e(MF(P,WPH+4,QB+4,P))
    for j in range(8): e(f'v_cvt_pk_bf16_f32 v{T2+j}, v{ACC1+2*j}, v{ACC1+2*j+1}')
    e('s_cmp_eq_u32 s44, 1\ns_cbranch_scc1 K1_U2')
    e(f'''v_cndmask_b32 v{T2+6}, v3, v{T2+6}, vcc
    v_cndmask_b32 v{T2+7}, v3, v{T2+7}, vcc
    ds_write_b128 v{vW0}, {vr(T2,4)} offset:128
    v_permlane32_swap_b32 v{T2+6}, v{T2+7}
    ds_write_b128 v{vW1}, {vr(T2+4,4)} offset:128
    s_branch K1_U2''')
    e('K1_UNIT:')
    e(MF(P,WPH+8,T2)); e(MF(P,WPH+12,T2+4,P))
    e('s_nop 7\nK1_U2:\ns_nop 3')
    mx,nm,t0,t1=TM,TM+1,TM+2,TM+3
    e(f'v_permlane32_swap_b32 v{P+12}, v{P+14}\nv_permlane32_swap_b32 v{P+13}, v{P+15}')
    e(f'v_max3_f32 v{mx}, v{P}, v{P+1}, v{P+2}\nv_min3_f32 v{nm}, v{P}, v{P+1}, v{P+2}')
    for j in range(3,13,2):
        e(f'v_max3_f32 v{mx}, v{mx}, v{P+j}, v{P+j+1}\nv_min3_f32 v{nm}, v{nm}, v{P+j}, v{P+j+1}')
    e(f'v_max_f32 v{mx}, v{mx}, v{P+13}\nv_min_f32 v{nm}, v{nm}, v{P+13}')
    e(f'v_mul_f32 v{mx}, s62, v{mx}\nv_mul_f32 v{nm}, {f2u(-LOG2E)}, v{nm}')
    e(f'v_permlane32_swap_b32 v{mx}, v{nm}')
    e(f'v_max_f32 v{t0}, v{mx}, v{nm}\nv_max_f32 v{t1}, v{mx}, v{nm}')
    e(f'v_permlane32_swap_b32 v{t0}, v{t1}')
    for j in range(0,14,2):
        e(f'v_pk_fma_f32 {vr(EP+j,2)}, {vr(P+j,2)}, s[62:63], {vr(t0,2)} op_sel_hi:[1,0,0] neg_lo:[0,0,1] neg_hi:[0,0,1]')
        e(f'v_pk_fma_f32 {vr(EN+j,2)}, {vr(P+j,2)}, s[62:63], {vr(t0,2)} op_sel:[0,0,1] op_sel_hi:[1,0,1] neg_lo:[0,1,1] neg_hi:[0,1,1]')
    for j in range(14):
        e(f'v_exp_f32 v{EP+j}, v{EP+j}\nv_exp_f32 v{EN+j}, v{EN+j}')
    sp,sn=TM+4,TM+6
    e(f'v_pk_add_f32 {vr(sp,2)}, {vr(EP,2)}, {vr(EP+2,2)}\nv_pk_add_f32 {vr(sn,2)}, {vr(EN,2)}, {vr(EN+2,2)}')
    for j in range(4,14,2):
        e(f'v_pk_add_f32 {vr(sp,2)}, {vr(sp,2)}, {vr(EP+j,2)}\nv_pk_add_f32 {vr(sn,2)}, {vr(sn,2)}, {vr(EN+j,2)}')
    e(f'v_add_f32 v{mx}, v{sp}, v{sp+1}\nv_add_f32 v{nm}, v{sn}, v{sn+1}')
    e(f'v_permlane32_swap_b32 v{mx}, v{nm}')
    e(f'v_add_f32 v{t0}, v{mx}, v{nm}')
    e(f'v_rcp_f32 v{t0}, v{t0}')
    e(f'v_mov_b32 v{t1}, v{t0}')
    e(f'v_permlane32_swap_b32 v{t0}, v{t1}')
    for j in range(0,14,2): e(f'v_pk_mul_f32 {vr(EP+j,2)}, {vr(EP+j,2)}, {vr(t0,2)} op_sel_hi:[1,0]')
    for j in range(7): e(f'v_cvt_pk_bf16_f32 v{PH+j}, v{EP+2*j}, v{EP+2*j+1}')
    for j in range(0,14,2): e(f'v_pk_mul_f32 {vr(EN+j,2)}, {vr(EN+j,2)}, {vr(t0,2)} op_sel:[0,1] op_sel_hi:[1,1]')
    for j in range(7): e(f'v_cvt_pk_bf16_f32 v{PH+7+j}, v{EN+2*j}, v{EN+2*j+1}')
    e('s_cmp_eq_u32 s44, 0\ns_cbranch_scc1 K1_KV')
    st=OPT['st_phi']
    for c in range(3): e(f'buffer_store_dwordx4 {vr(PH+4*c,4)}, v{vSA}, s[{SWS}:{SWS+3}], s63 offen offset:{1024*c} {st}')
    e('s_cmp_eq_u32 s61, 1\ns_cbranch_scc1 K1_QF')
    e(f'v_mov_b32 v{KEEP}, v{PH+12}\nv_mov_b32 v{KEEP+1}, v{PH+13}')
    stamp(A,5)
    e('s_mov_b32 s61, 1\ns_add_u32 s63, s63, 3072\ns_branch K1_UNIT')
    e(f'K1_QF:\nv_mov_b32 v{KEEP+2}, v{PH+12}\nv_mov_b32 v{KEEP+3}, v{PH+13}')
    e(f'buffer_store_dwordx4 {vr(KEEP,4)}, v{vSA}, s[{SWS}:{SWS+3}], s63 offen offset:3072 {st}')
    dump1(A,2)
    e('s_endpgm')
    e('K1_KV:')
    stamp(A,5)
    e(f'''ds_write_b128 v{vW0}, {vr(PH,4)}
    ds_write_b128 v{vW1}, {vr(PH+4,4)}
    ds_write_b128 v{vW0}, {vr(PH+8,4)} offset:64
    ds_write_b64 v{vW1}, {vr(PH+12,2)} offset:64''')
    e(f'''s_lshr_b32 s66, s{sWV}, 1
    s_and_b32 s67, s{sWV}, 1
    s_mul_i32 s65, s66, 98304
    s_lshl_b32 s68, s67, 6
    v_lshl_add_u32 v4, v9, 3, v11
    v_mul_u32_u24 v4, 192, v4
    v_and_b32 v5, 1, v1
    v_bfe_u32 v6, v1, 4, 1
    v_lshl_add_u32 v5, v5, 1, v6
    v_lshrrev_b32 v3, 1, v11
    v_xor_b32 v5, v5, v3
    v_lshl_add_u32 v4, v5, 4, v4
    v_bfe_u32 v5, v1, 1, 1
    v_lshl_add_u32 v4, v5, 3, v4
    v_add_u32 v4, s65, v4
    v_xor_b32 v5, 32, v4
    v_add_u32 v6, s68, v4
    v_add_u32 v7, s68, v5
    s_add_u32 s65, s49, s66
    s_mul_i32 s65, s65, 3584
    s_lshl_b32 s68, s67, 11
    s_add_u32 s65, s65, s68
    v_lshlrev_b32 v3, 2, v1
    s_mov_b32 s70, 0''')
    e('s_waitcnt lgkmcnt(0)\ns_barrier')
    e(f's_cmp_ge_u32 s{sWV}, 4\ns_cbranch_scc1 K1_END')
    FA,FB,KA=20,52,84
    for ks in range(8):
        e(f'ds_read_b64_tr_b16 {vr(FA+4*ks,2)}, v6 offset:{3072*ks}')
        e(f'ds_read_b64_tr_b16 {vr(FA+4*ks+2,2)}, v7 offset:{3072*ks+768}')
        e(f'ds_read_b64_tr_b16 {vr(FB+4*ks,2)}, v4 offset:{3072*ks+128}')
        e(f'ds_read_b64_tr_b16 {vr(FB+4*ks+2,2)}, v5 offset:{3072*ks+768+128}')
        if ks>=2:
            e('s_waitcnt lgkmcnt(8)'); e(MF(KA,FA+4*(ks-2),FB+4*(ks-2),KA if ks>2 else None))
    e('s_waitcnt lgkmcnt(4)'); e(MF(KA,FA+24,FB+24,KA))
    e('s_waitcnt lgkmcnt(0)'); e(MF(KA,FA+28,FB+28,KA))
    e('K1_POLL:\ns_waitcnt vmcnt(0)')
    e(f'v_readfirstlane_b32 s69, v{vFL}')
    e('s_cmp_ge_u32 s69, 64\ns_cbranch_scc1 K1_GO\ns_add_u32 s70, s70, 1\ns_cmp_ge_u32 s70, 0x40000\ns_cbranch_scc1 K1_GO\ns_sleep 2')
    e(f'buffer_load_dword v{vFL}, off, s[{SDB}:{SDB+3}], 0 sc1')
    e('s_branch K1_POLL\nK1_GO:\ns_nop 7')
    for j in range(6):
        e(f'v_cvt_pk_bf16_f32 v{FA+j}, v{KA+2*j}, v{KA+2*j+1}')
        e(f'buffer_atomic_pk_add_bf16 v{FA+j}, v3, s[{SWS}:{SWS+3}], s65 offen offset:{256*j}')
    e('s_cmp_eq_u32 s67, 1\ns_cbranch_scc1 K1_END')
    for j in range(6,8):
        e(f'v_cvt_pk_bf16_f32 v{FA+j}, v{KA+2*j}, v{KA+2*j+1}')
        e(f'buffer_atomic_pk_add_bf16 v{FA+j}, v3, s[{SWS}:{SWS+3}], s65 offen offset:{256*j}')
    dump1(A,1)
    e('s_endpgm')
    e('K1_A:')
    e(f'''s_lshl_b32 s43, s41, 3
    s_add_u32 s43, s43, s42
    s_sub_u32 s43, s43, 24
    v_lshlrev_b32 v3, 4, v1
    s_cmp_ge_u32 s{sWV}, 8
    s_cbranch_scc0 K1A_M''')
    e('v_lshlrev_b32 v4, 7, v1')
    if OPT['cpf']:
        e(f'''s_cmp_eq_u32 s{sWV}, 11
        s_cbranch_scc0 K1A_H1
        s_getpc_b64 s[44:45]
        K1_PC:
        s_sub_u32 s44, s44, K1_PC-k1_kernel
        s_subb_u32 s45, s45, 0
        global_load_dword v6, v4, s[44:45]
        K1A_H1:''')
    e(f'''s_lshl_b32 s46, s43, 2
    s_add_u32 s46, s46, s{sWV}
    s_sub_u32 s46, s46, 8
    s_mul_i32 s46, s46, {56*128}
    s_mul_i32 s47, s43, 896
    v_mov_b64 v[12:13], 0
    v_mov_b64 v[14:15], 0
    v_mov_b32 v16, 1
    s_mov_b32 exec_hi, 0x00ffffff
    s_waitcnt lgkmcnt(0)''')
    if OPT['apf']:
        srd(A,SW,8,2048*896)
        e(f'buffer_load_dword v5, v4, s[{SW}:{SW+3}], s46 offen {lx}')
    e(f's_cmp_eq_u32 s{sWV}, 8\ns_cbranch_scc0 K1_END')
    srd(A,SWS,18,16*3584,KV_OFF); srd(A,SDB,16,256)
    e(f'''buffer_store_dwordx4 v[12:15], v3, s[{SWS}:{SWS+3}], s47 offen sc1
    s_waitcnt vmcnt(0)
    s_mov_b64 exec, 1
    buffer_atomic_add v16, off, s[{SDB}:{SDB+3}], 0 sc1
    s_endpgm''')
    e('K1A_M:')
    e(f'''s_lshl_b32 s44, s{sWV}, 8
    s_add_u32 s44, s44, s43
    s_mul_i32 s44, s44, 896
    s_mul_i32 s45, s{sWV}, {4*960}
    s_mov_b32 m0, s45
    s_waitcnt lgkmcnt(0)''')
    stamp(A,1)
    srd(A,SX,4,2048*896)
    e('s_mov_b32 exec_hi, 0x00ffffff')
    for i in range(4):
        if i: e(f's_add_u32 m0, s45, {960*i}\ns_add_u32 s44, s44, {64*896}')
        e(f'buffer_load_dwordx4 v3, s[{SX}:{SX+3}], s44 offen {OPT["lda"]} lds')
    VL=32768; OL=73728
    e('s_mov_b32 exec_hi, -1\nv_and_b32 v8, 31, v1\nv_lshrrev_b32 v9, 5, v1')
    e(f'''v_mul_u32_u24 v10, {8*2560}, v9
    v_mul_u32_u24 v16, 80, v8
    v_add_u32 v10, v16, v10
    v_lshl_add_u32 v10, v2, 3, v10
    v_add_u32 v10, {VL}, v10''')
    FF=20; HH=28; CP=32; SPn=40; A2=48; B2=56; TT=64
    e(f'''v_lshrrev_b32 v4, 1, v8
    v_and_b32 v5, 1, v8
    v_cvt_f32_u32 v5, v5
    v_mul_f32 v5, {f2u(-0.25)}, v5
    v_cmp_eq_u32 vcc, 1, v8
    v_cndmask_b32 v4, v4, 16, vcc
    v_cndmask_b32 v5, v5, 0, vcc
    v_cvt_f32_u32 v4, v4
    v_mul_f32 v4, {f2u(1/32)}, v4
    v_cvt_f32_u32 v11, v9
    v_mul_f32 v12, 4.0, v11
    v_add_f32 v11, v12, v12
    v_fma_f32 v5, v4, v11, v5''')
    for ks in range(2):
        for j in range(8): e(f'v_fmamk_f32 v{TT+8*ks+j}, v4, {f2u(16.*ks+j)}, v5')
    for j in range(16): e(f'v_cos_f32 v{TT+j}, v{TT+j}')
    for j in range(8): e(f'v_cvt_pk_bf16_f32 v{FF+j}, v{TT+2*j}, v{TT+2*j+1}')
    e(f'''v_bfe_u32 v4, v8, 2, 1
    v_bfe_u32 v5, v8, 3, 1
    v_lshl_add_u32 v4, v4, 1, v5
    v_bfe_u32 v5, v8, 1, 1
    v_lshl_add_u32 v4, v4, 1, v5
    v_and_b32 v5, 1, v8
    v_cvt_f32_u32 v5, v5
    v_mul_f32 v5, {f2u(-0.25)}, v5
    v_and_b32 v6, 15, v8
    v_cmp_eq_u32 vcc, 1, v6
    v_cndmask_b32 v4, v4, 8, vcc
    v_cndmask_b32 v5, v5, 0, vcc
    v_cvt_f32_u32 v4, v4
    v_mul_f32 v4, {f2u(1/16)}, v4
    v_fma_f32 v5, v4, v12, v5''')
    for j in range(8): e(f'v_fmamk_f32 v{TT+j}, v4, {f2u(8.*(j>>2)+(j&3))}, v5')
    for j in range(8): e(f'v_cos_f32 v{TT+j}, v{TT+j}')
    for j in range(4): e(f'v_cvt_pk_bf16_f32 v{HH+j}, v{TT+2*j}, v{TT+2*j+1}')
    e(f'''s_cmp_eq_u32 s{sWV}, 0
    s_cselect_b32 s47, 8, s{sWV}
    s_sub_u32 s48, 0, s47
    v_lshrrev_b32 v4, 2, v8
    v_lshlrev_b32 v4, 5, v4
    v_and_b32 v5, 3, v8
    v_add_u32 v5, 1, v5
    v_lshrrev_b32 v5, 1, v5
    v_lshl_add_u32 v4, v5, 4, v4
    v_and_b32 v5, 1, v8
    v_cmp_eq_u32 vcc, 1, v5
    v_mov_b32 v6, s48
    v_cndmask_b32 v6, v2, v6, vcc
    v_add_u32 v4, v4, v6
    v_cvt_f32_u32 v4, v4
    v_mul_f32 v4, {f2u(1/448)}, v4
    v_mul_f32 v5, v4, v11''')
    for ks in range(2):
        for j in range(8): e(f'v_fmamk_f32 v{TT+8*ks+j}, v4, {f2u(16.*ks+j)}, v5')
    for j in range(16): e(f'v_sin_f32 v{TT+16+j}, v{TT+j}\nv_cos_f32 v{TT+j}, v{TT+j}')
    for j in range(8): e(f'v_cvt_pk_bf16_f32 v{CP+j}, v{TT+2*j}, v{TT+2*j+1}\nv_cvt_pk_bf16_f32 v{SPn+j}, v{TT+16+2*j}, v{TT+16+2*j+1}')
    e(f's_cmp_eq_u32 s{sWV}, 0\ns_cbranch_scc1 K1A_SPEC')
    e('''v_mov_b32 v4, 0x80008000
    v_cndmask_b32 v5, v4, 0, vcc
    v_cndmask_b32 v6, 0, v4, vcc''')
    for j in range(8): e(f'v_xor_b32 v{A2+j}, v5, v{SPn+j}\nv_xor_b32 v{B2+j}, v6, v{CP+j}')
    e('s_branch K1A_ST1\nK1A_SPEC:')
    for j in range(8):
        e(f'''v_cndmask_b32 v{A2+j}, 0, v{CP+j}, vcc
        v_cndmask_b32 v{B2+j}, 0, v{SPn+j}, vcc
        v_cndmask_b32 v{CP+j}, v{CP+j}, 0, vcc
        v_cndmask_b32 v{SPn+j}, v{SPn+j}, 0, vcc''')
    e('v_mov_b32 v4, 0xbf803f80\nv_cmp_eq_u32 vcc, 0, v8')
    for j in range(8): e(f'v_cndmask_b32 v{SPn+j}, v{SPn+j}, v4, vcc')
    e('K1A_ST1:')
    XA=64; BO=80; U0=96; U1=112; VU=96
    e(f'''v_bfe_u32 v4, v1, 2, 2
    v_lshl_add_u32 v4, v9, 3, v4
    v_mul_u32_u24 v4, 960, v4
    v_and_b32 v5, 1, v1
    v_bfe_u32 v6, v1, 4, 1
    v_lshl_add_u32 v5, v5, 1, v6
    v_bfe_u32 v6, v1, 1, 1
    v_lshl_add_u32 v5, v5, 1, v6
    v_mad_u32_u24 v4, v5, 56, v4
    v_lshl_add_u32 v4, v2, 3, v4
    v_mul_u32_u24 v13, 5120, v2
    v_add_u32 v13, v16, v13
    v_lshl_add_u32 v13, v9, 4, v13
    v_add_u32 v13, {VL}, v13
    v_mul_u32_u24 v14, 1032, v8
    v_lshl_add_u32 v14, v9, 7, v14
    v_add_u32 v14, {OL}, v14
    s_lshl_b32 s48, s48, 1
    v_add_u32 v15, s48, v14
    v_lshl_add_u32 v14, v2, 1, v14''')
    for r in range(8): e(f'v_mov_b64 {vr(XA+2*r,2)}, 0')
    stamp(A,3)
    e('s_waitcnt vmcnt(0)\ns_barrier')
    stamp(A,4)
    e(f's_cmp_eq_u32 s{sWV}, 7\ns_cbranch_scc1 K1A_VW')
    for dh in range(2):
        for ks in range(2):
            for jj in range(2):
                e(f'ds_read_b64_tr_b16 {vr(XA+8*dh+4*ks+2*jj,2)}, v4 offset:{15360*ks+3840*jj+448*dh}')
    e('s_waitcnt lgkmcnt(4)')
    e(MF(U0,XA,FF)); e(MF(U0,XA+4,FF+4,U0))
    e('s_waitcnt lgkmcnt(0)')
    e(MF(U1,XA+8,FF)); e(MF(U1,XA+12,FF+4,U1))
    for u in range(4):
        e(f'v_cvt_pk_bf16_f32 v{BO+4*u}, v{U0+u}, v{U0+4+u}\nv_cvt_pk_bf16_f32 v{BO+4*u+1}, v{U0+8+u}, v{U0+12+u}')
    for u in range(4):
        e(f'v_cvt_pk_bf16_f32 v{BO+4*u+2}, v{U1+u}, v{U1+4+u}\nv_cvt_pk_bf16_f32 v{BO+4*u+3}, v{U1+8+u}, v{U1+12+u}')
    for u in range(4): e(MF(VU+16*u,HH,BO+4*u))
    for r in range(8): e(f'v_cvt_pk_bf16_f32 v{XA+2*r}, v{VU+r}, v{VU+16+r}')
    for r in range(8): e(f'v_cvt_pk_bf16_f32 v{XA+2*r+1}, v{VU+32+r}, v{VU+48+r}')
    e('K1A_VW:')
    for r in range(8): e(f'ds_write_b64 v10, {vr(XA+2*r,2)} offset:{2560*r}')
    e('s_waitcnt lgkmcnt(0)\ns_barrier')
    for ks in range(4): e(f'ds_read_b128 {vr(XA+4*ks,4)}, v13 offset:{32*(ks&1)+2560*(ks>>1)}')
    GA=[CP,CP+4,A2,A2+4]; GB=[SPn,SPn+4,B2,B2+4]
    for ks in range(4):
        e(f's_waitcnt lgkmcnt({3-ks})')
        e(MF(U0,GA[ks],XA+4*ks,U0 if ks else None)); e(MF(U1,GB[ks],XA+4*ks,U1 if ks else None))
    stamp(A,5)
    srd(A,SWS,18,2<<20,AINT_OFF)
    for (U,ab) in ((U0,0),(U1,64)):
        for j in range(8): e(f'v_cvt_pk_bf16_f32 v{BO+(ab>>3)+j}, v{U+2*j}, v{U+2*j+1}')
        for a in range(4):
            r=BO+(ab>>3)+2*a
            e(f'''ds_write_b16 v14, v{r} offset:{256*a+ab}
            ds_write_b16_d16_hi v15, v{r} offset:{256*a+32+ab}
            ds_write_b16 v14, v{r+1} offset:{256*a+32+ab}
            ds_write_b16_d16_hi v15, v{r+1} offset:{256*a+64+ab}''')
    e(f'''s_mul_i32 s45, s{sWV}, {4*1032}
    s_add_u32 s45, s45, {OL}
    v_add_u32 v4, s45, v3
    v_add_u32 v5, 2064, v4
    s_lshl_b32 s44, s{sWV}, 8
    s_add_u32 s44, s44, s43
    s_lshl_b32 s44, s44, 10
    v_lshlrev_b32 v6, 7, v1
    s_waitcnt lgkmcnt(0)
    s_barrier
    s_mov_b32 exec_hi, 0x00ffffff''')
    for i in range(4): e(f'ds_read2_b64 {vr(XA+4*i,4)}, v{4+(i>>1)} offset0:{129*(i&1)} offset1:{129*(i&1)+1}')
    st=OPT['st_aint']
    for i in range(4):
        e(f's_waitcnt lgkmcnt({3-i})')
        e(f'buffer_store_dwordx4 {vr(XA+4*i,4)}, v3, s[{SWS}:{SWS+3}], s44 offen {st}')
        e(f's_add_u32 s44, s44, 65536')
    if OPT['wpf']:
        srd(A,SW,14,448*896)
        e(f'''s_cmp_eq_u32 s{sWV}, 7
        s_cbranch_scc1 K1A_CP
        s_sub_u32 s46, s42, 24
        s_mul_i32 s46, s46, 7
        s_add_u32 s46, s46, s{sWV}
        s_mul_i32 s46, s46, {56*128}
        buffer_load_dword v7, v6, s[{SW}:{SW+3}], s46 offen
        s_branch K1A_E
        K1A_CP:
        s_mov_b32 exec_hi, -1
        s_getpc_b64 s[44:45]
        K1_PC2:
        s_add_u32 s44, s44, k2_kernel-K1_PC2
        s_addc_u32 s45, s45, 0
        global_load_dword v7, v6, s[44:45]
        K1A_E:''')
    dump1(A,3)
    e('K1_END:\ns_endpgm')

def k2(A):
    e=A.e
    OPT['k2']=1
    SD,SPH,SO=20,24,28
    sWV=40
    e('k2_kernel:')
    e('s_cmp_ge_u32 s2, 256\ns_cbranch_scc1 K2_END')
    stamp(A,0)
    e('s_load_dwordx4 s[8:11], s[0:1], 64\ns_load_dwordx2 s[12:13], s[0:1], 88')
    e('v_and_b32 v1, 63, v0\nv_lshrrev_b32 v2, 6, v0')
    e('s_and_b32 s41, s2, 7\ns_lshr_b32 s42, s2, 3')
    e(f'v_readfirstlane_b32 s{sWV}, v2')
    e('''v_bfe_u32 v3, v1, 4, 1
    v_and_b32 v4, 7, v1
    v_lshlrev_b32 v5, 2, v3
    v_xor_b32 v4, v4, v5
    v_lshlrev_b32 v12, 4, v4
    v_lshrrev_b32 v13, 3, v1
    v_lshlrev_b32 v15, 4, v1''')
    LANE='''v_and_b32 v8, 31, v1
    v_lshrrev_b32 v9, 5, v1
    v_bfe_u32 v10, v1, 2, 2
    v_bfe_u32 v3, v1, 4, 1
    v_and_b32 v4, 1, v1
    v_lshl_add_u32 v4, v3, 1, v4
    v_bfe_u32 v5, v1, 1, 1
    v_lshl_add_u32 v4, v4, 1, v5
    v_lshlrev_b32 v11, 3, v4'''
    e('s_cmp_ge_u32 s42, 28\ns_cbranch_scc1 K2_A')
    e(f'''s_lshr_b32 s44, s42, 2
    s_and_b32 s45, s{sWV}, 1
    s_bfe_u32 s46, s{sWV}, 0x10001
    s_cmp_ge_u32 s{sWV}, 4
    s_cbranch_scc0 K2_C''')
    e(f'''v_mul_u32_u24 v3, 896, v13
    v_add_u32 v3, v3, v12
    s_and_b32 s50, s{sWV}, 3
    s_mul_i32 s50, s50, 28672
    s_cmp_eq_u32 s46, 0
    s_cselect_b64 vcc, -1, 0
    s_cselect_b32 s47, 1024, 7168
    s_cselect_b32 s48, 28672, {224*896}
    s_cselect_b32 s49, 0, 128
    s_mul_i32 s48, s48, s45
    s_mul_i32 s49, s49, s44
    s_add_u32 s48, s48, s49
    v_cndmask_b32 v14, v3, v15, vcc
    s_mov_b32 m0, s50
    s_mov_b32 s51, 0
    s_waitcnt lgkmcnt(0)
    s_add_u32 s54, s12, {KV_OFF}
    s_addc_u32 s55, s13, 0
    s_cmp_eq_u32 s46, 0
    s_cselect_b32 s{SD}, s54, s8
    s_cselect_b32 s{SD+1}, s55, s9
    s_cselect_b32 s{SD+2}, {16*3584}, {448*896}
    s_mov_b32 s{SD+3}, 0x20000
    K2_LL:''')
    for n in range(7): e(f'buffer_load_dwordx4 v14, s[{SD}:{SD+3}], s48 offen lds\ns_add_u32 m0, m0, 1024\ns_add_u32 s48, s48, s47')
    D2=OPT.get('D2',2)
    e(f's_add_u32 s51, s51, 1\ns_cmp_lt_u32 s51, {D2}\ns_cbranch_scc1 K2_LL')
    e(f's_waitcnt vmcnt({7*(D2-1)})\ns_barrier\ns_cmp_lt_u32 s51, 4\ns_cbranch_scc1 K2_LL')
    for r in range(D2-2,-1,-1): e(f's_waitcnt vmcnt({7*r})\ns_barrier')
    e('s_endpgm')
    e('K2_C:')
    e(f'''s_and_b32 s43, s42, 3
    s_lshl_b32 s41, s41, 2
    s_add_u32 s43, s43, s41
    s_lshl_b32 s51, s43, 1
    s_add_u32 s51, s51, s45
    s_lshl_b32 s52, s51, 4
    s_lshl_b32 s53, s46, 3
    s_add_u32 s52, s52, s53
    s_mul_i32 s52, s52, 3584
    s_add_u32 s57, s52, 4096
    s_waitcnt lgkmcnt(0)''')
    stamp(A,1)
    srd(A,SPH,12,64*16*3584,PHIQ_OFF)
    PHI=144; vF16=15
    def loads(s):
        L=[]
        for n in range(7):
            x=f'buffer_load_dwordx4 {vr(PHI+28*s+4*n,4)}, v{vF16}, s[{SPH}:{SPH+3}], s{52 if n<4 else 57} offen offset:{1024*(n&3)}'
            if n==6: x+='\ns_add_u32 s52, s52, 7168\ns_add_u32 s57, s57, 7168'
            L.append(x)
        return L
    for x in loads(0)+loads(1): e(x)
    srd(A,SO,10,2048*1792)
    e(LANE)
    vK,vN0,vN1,vS0,vS1=17,18,19,20,21
    e(f'''s_mul_i32 s53, s46, 28672
    v_lshlrev_b32 v3, 2, v1
    v_add_u32 v{vK}, s53, v3
    s_add_u32 s53, s53, 57344
    v_lshl_add_u32 v3, v9, 2, v10
    v_lshlrev_b32 v3, 7, v3
    v_lshrrev_b32 v4, 1, v10
    v_lshl_add_u32 v3, v4, 6, v3
    v_add3_u32 v{vN0}, v3, v11, s53
    v_xor_b32 v{vN1}, 64, v{vN0}
    v_lshlrev_b32 v3, 1, v9
    v_xor_b32 v3, v3, v10
    v_lshrrev_b32 v4, 1, v3
    v_lshlrev_b32 v3, 7, v3
    v_lshl_add_u32 v3, v4, 6, v3
    v_add3_u32 v{vS0}, v3, v11, s53
    v_xor_b32 v{vS1}, 64, v{vS0}
    s_lshl_b32 s53, s{sWV}, 12
    s_add_u32 s53, s53, 114688
    v_add_u32 v6, s53, v{vF16}
    s_xor_b32 s53, s53, 8192
    v_add_u32 v7, s53, v{vF16}
    s_lshl_b32 s51, s51, 5
    v_add_u32 v5, s51, v8
    v_mul_u32_u24 v5, 1792, v5
    v_lshl_add_u32 v5, v9, 4, v5
    s_lshl_b32 s54, s44, 7
    s_lshl_b32 s55, s46, 6
    s_add_u32 s54, s54, s55
    s_add_u32 s54, s54, 896''')
    KF=[24,40]; WFR=56; NUM=[72,88]; OP=104; OUT=[112,128]
    e(f'v_mov_b64 {vr(KF[0]+14,2)}, 0\nv_mov_b64 {vr(KF[1]+12,2)}, 0')
    e(f'v_mov_b32 v{OP+7}, 0\ns_mov_b32 s56, {f2u(1e-6)}')
    def rdkv(hl):
        return [f'ds_read2st64_b32 {vr(KF[hl&1]+2*p+(2 if (p==6 and hl&1) else 0),2)}, v{vK} offset0:{14*hl+2*p} offset1:{14*hl+2*p+1}' for p in range(7)]
    def rdwo(hl):
        L=[]
        for q in range(4):
            for mt in range(2):
                if q<3: L.append(f'ds_read_b64_tr_b16 {vr(WFR+8*mt+2*q,2)}, v{(vN0,vN1)[mt]} offset:{3584*hl+1024*q}')
                else: L.append(f'ds_read_b64_tr_b16 {vr(WFR+8*mt+6,2)}, v{(vS0,vS1)[mt]} offset:{3584*hl+3072}')
        return L
    def num(hl):
        base=PHI+28*(hl>>1)
        ph=[base+12*(hl&1)+4*s for s in range(3)]+[base+24]
        return [MF(NUM[hl&1],KF[hl&1]+4*s,ph[s],NUM[hl&1] if s else None) for s in range(4)]
    def fin(hl):
        N=NUM[hl&1]
        L=[f'v_add_f32 v22, s56, v{N+14}','v_rcp_f32 v22, v22']
        L+=[f'v_pk_mul_f32 {vr(N+j,2)}, {vr(N+j,2)}, v[22:23] op_sel_hi:[1,0]' for j in range(0,14,2)]
        L+=[f'v_cvt_pk_bf16_f32 v{OP+j}, v{N+2*j}, v{N+2*j+1}' for j in range(7)]
        return L
    def outm(hl):
        return [MF(OUT[mt],WFR+8*mt+4*sp,OP+4*sp,None if (hl==0 and sp==0) else OUT[mt]) for sp in range(2) for mt in range(2)]
    e('s_barrier')
    stamp(A,3)
    for x in rdkv(0): e(x)
    later=loads(2)+loads(3)
    for h in range(9):
        if h==6: stamp(A,4)
        if h<8:
            w='s_waitcnt lgkmcnt(0)'
            if h%2==0: w+=' vmcnt(%d)'%(7 if h<6 else 0)
            e(w)
        N=num(h) if h<8 else []
        W=rdwo(h-1) if h>0 else []
        Fv=fin(h-1) if h>0 else []
        K=rdkv(h+1) if h<7 else []
        if h<7 and h%2==1: K=['s_barrier']+K
        fill=[W[:8]+Fv[:1],Fv[1:8],Fv[8:16],K]
        for i in range(4):
            if N: e(N[i])
            for x in fill[i]: e(x)
        if h>0:
            e('s_waitcnt lgkmcnt(%d)'%(7 if h<7 else 0))
            O=outm(h-1)
        else: O=[]
        Ld=later[(7*h)//2:(7*(h+1))//2] if h<4 else []
        for i in range(4):
            if O: e(O[i])
            if i<len(Ld): e(Ld[i])
    stamp(A,5)
    e('s_nop 7\ns_cmp_eq_u32 s46, 0\ns_cbranch_scc1 K2_X0')
    for q in range(4): e(f'ds_write_b128 v6, {vr(OUT[0]+4*q,4)} offset:{1024*q}')
    for j in range(0,16,2): e(f'v_mov_b64 {vr(OUT[0]+j,2)}, {vr(OUT[1]+j,2)}')
    e('s_branch K2_X1\nK2_X0:\ns_nop 1')
    for q in range(4): e(f'ds_write_b128 v6, {vr(OUT[1]+4*q,4)} offset:{1024*q}')
    e('K2_X1:\ns_waitcnt lgkmcnt(0)\ns_barrier')
    for q in range(4): e(f'ds_read_b128 {vr(24+4*q,4)}, v7 offset:{1024*q}')
    st=OPT['st_out']
    for i in range(2):
        e(f's_waitcnt lgkmcnt({2-2*i})')
        for j in range(0,8,2): e(f'v_pk_add_f32 {vr(OUT[0]+8*i+j,2)}, {vr(OUT[0]+8*i+j,2)}, {vr(24+8*i+j,2)}')
        for j in range(4): e(f'v_cvt_pk_bf16_f32 v{56+4*i+j}, v{OUT[0]+8*i+2*j}, v{OUT[0]+8*i+2*j+1}')
        e(f'buffer_store_dwordx4 {vr(56+4*i,4)}, v5, s[{SO}:{SO+3}], s54 offen offset:{32*i} {st}')
    dump2(A,1)
    e('s_endpgm')
    e('K2_A:')
    SP_=912
    e(f'''s_lshl_b32 s43, s41, 2
    s_add_u32 s43, s43, s42
    s_sub_u32 s43, s43, 28
    s_and_b32 s44, s43, 1
    s_lshr_b32 s43, s43, 1
    s_and_b32 s45, s{sWV}, 1
    s_lshr_b32 s46, s{sWV}, 1
    v_lshl_add_u32 v14, v13, 10, v12
    s_lshl_b32 s47, s43, 17
    s_lshl_b32 s48, s{sWV}, 14
    s_add_u32 s47, s47, s48
    s_add_u32 s49, s47, 8192
    s_lshl_b32 s48, s{sWV}, 11
    s_mov_b32 m0, s48
    s_waitcnt lgkmcnt(0)''')
    stamp(A,1)
    srd(A,SD,12,2<<20,AINT_OFF)
    Ld=[]
    for j in range(7):
        Ld.append(f'buffer_load_dwordx4 v14, s[{SD}:{SD+3}], s47 offen lds\ns_add_u32 m0, m0, 1024\ns_add_u32 s47, s47, 128')
        Ld.append(f'buffer_load_dwordx4 v14, s[{SD}:{SD+3}], s49 offen lds\ns_add_u32 m0, m0, {16384-1024}\ns_add_u32 s49, s49, 128')
    G=f"""s_sub_u32 s58, 32, s43
    s_mov_b32 s57, s43
    s_cmp_eq_u32 s43, 0
    s_cselect_b32 s58, 16, s58
    s_cselect_b32 s53, 0, -1
    s_cselect_b32 s54, 8192, 0
    s_mul_i32 s54, s54, s45
    s_lshl_b32 s56, s44, 10
    s_add_u32 s57, s57, s56
    s_add_u32 s58, s58, s56
    s_cmp_eq_u32 s45, 0
    s_cselect_b32 s50, s57, s58
    s_cselect_b32 s51, 0x80008000, 0
    s_cselect_b32 s52, 0, 0x80008000""".split('\n')
    npre=len(G)
    G+=LANE.split('\n')
    G+=f"""v_lshlrev_b32 v3, 5, v8
    v_add_u32 v3, s50, v3
    v_cvt_f32_u32 v4, v3
    v_mul_f32 v4, {f2u(1/2048)}, v4
    v_cvt_f32_u32 v5, v9
    v_mul_f32 v5, {f2u(8.0)}, v5
    v_mul_f32 v5, v4, v5
    v_mov_b32 v6, s53""".split('\n')
    C,S,S2,C2=24,40,56,72; TT=88
    for ks in range(4):
        for j in range(8): G.append(f'v_fmamk_f32 v{TT+j}, v4, {f2u(16.*ks+j)}, v5')
        for j in range(8): G+=[f'v_sin_f32 v{TT+8+j}, v{TT+j}',f'v_cos_f32 v{TT+j}, v{TT+j}']
        for j in range(4): G+=[f'v_cvt_pk_bf16_f32 v{C+4*ks+j}, v{TT+2*j}, v{TT+2*j+1}',f'v_cvt_pk_bf16_f32 v{S+4*ks+j}, v{TT+8+2*j}, v{TT+8+2*j+1}']
    for j in range(16):
        G+=[f'v_bitop3_b32 v{S2+j}, v{S+j}, s51, v6 bitop3:0x28',f'v_bitop3_b32 v{C2+j}, v{C+j}, s52, v6 bitop3:0x28']
    for x in Ld[:4]: e(x)
    for x in G[:npre]: e(x)
    k=4
    for i,x in enumerate(G[npre:]):
        e(x)
        if i%8==7 and k<len(Ld): e(Ld[k]); k+=1
    while k<len(Ld): e(Ld[k]); k+=1
    srd(A,SO,10,2048*1792)
    aR,aS,bS,bR=16,17,18,19
    e(f"""v_lshl_add_u32 v3, v9, 3, v10
    v_lshlrev_b32 v3, 7, v3
    v_lshrrev_b32 v4, 1, v10
    v_lshl_add_u32 v3, v4, 6, v3
    s_lshl_b32 s55, s46, 14
    v_add3_u32 v3, v3, v11, s55
    v_add_u32 v{aR}, s54, v3
    v_add_u32 v{aS}, 8192, v3
    v_xor_b32 v{bR}, 64, v{aR}
    v_xor_b32 v{bS}, 64, v{aS}
    s_mul_i32 s59, s45, {32*SP_}
    v_mul_u32_u24 v22, {SP_}, v8
    v_add_u32 v22, s59, v22
    s_lshl_b32 s60, s46, 6
    v_lshl_add_u32 v3, v9, 4, s60
    v_add_u32 v20, v22, v3
    v_sub_u32 v21, v22, v3
    v_add_u32 v21, 850, v21
    s_mov_b32 s62, s46""")
    FR=88; PA=152; QA=168; PX=184; PK=200; PS=23
    stamp(A,3)
    e('s_waitcnt vmcnt(6)\ns_barrier')
    stamp(A,4)
    e('K2A_LOOP:')
    srcs=[(aR,C,PA),(aS,S2,PA),(bS,C2,QA),(bR,S,QA)]
    seq=[(ks,q) for ks in range(4) for q in (0,2,1,3)]
    def rdA(n):
        ks,q=seq[n]
        for jj in range(2): e(f'ds_read_b64_tr_b16 {vr(FR+4*n+2*jj,2)}, v{srcs[q][0]} offset:{2048*ks+512*jj}')
    for n in range(6): rdA(n)
    for n in range(16):
        if n+6<16: rdA(n+6); e('s_waitcnt lgkmcnt(12)')
        else: e(f's_waitcnt lgkmcnt({2*(15-n)})')
        ks,q=seq[n]
        e(MF(srcs[q][2],FR+4*n,srcs[q][1]+4*ks,None if n<2 else srcs[q][2]))
    for r in (aR,aS,bS,bR): e(f'v_add_u32 v{r}, 65536, v{r}')
    e('s_nop 5\ns_cmp_eq_u32 s62, 0\ns_cbranch_scc0 K2A_NS')
    for ks in range(4):
        e(MF(PX,FR+4*(4*ks+3),C+4*ks,PX if ks else None)); e(MF(PX,FR+4*(4*ks+1),S2+4*ks,PX))
    e('s_mov_b32 exec_hi, 0')
    e(f'v_mov_b32 v{QA}, 0\nv_cvt_pk_bf16_f32 v{PS}, v{PX}, v{PX}')
    e('s_mov_b32 exec_hi, -1')
    e('K2A_NS:')
    for j in range(0,16,2):
        e(f'v_pk_add_f32 {vr(PX+j,2)}, {vr(PA+j,2)}, {vr(QA+j,2)}')
        e(f'v_pk_add_f32 {vr(PA+j,2)}, {vr(PA+j,2)}, {vr(QA+j,2)} neg_lo:[0,1] neg_hi:[0,1]')
    for j in range(8): e(f'v_cvt_pk_bf16_f32 v{PK+j}, v{PA+2*j}, v{PA+2*j+1}')
    for i in range(2):
        for n in range(4): e(f'v_cvt_pk_bf16_f32 v{PK+8+4*i+n}, v{PX+8*i+7-2*n}, v{PX+8*i+6-2*n}')
    e("""s_cmp_lt_u32 s62, 4
    s_cbranch_scc0 K2A_WR
    s_waitcnt vmcnt(0)
    s_barrier
    s_cmp_eq_u32 s62, 0
    s_cbranch_scc0 K2A_WR
    s_mov_b32 exec_hi, 0""")
    e(f'ds_write_b16 v20, v{PS} offset:448\ns_mov_b32 exec_hi, -1\nK2A_WR:')
    for i in range(2): e(f'ds_write_b128 v20, {vr(PK+4*i,4)} offset:{32*i}')
    for i in range(2): e(f'ds_write_b128 v21, {vr(PK+8+4*i,4)} offset:{32-32*i}')
    e("""v_add_u32 v20, 256, v20
    v_subrev_u32 v21, 256, v21
    s_add_u32 s62, s62, 4
    s_cmp_lt_u32 s62, 7
    s_cbranch_scc1 K2A_LOOP""")
    stamp(A,5)
    e(f"""s_cmp_lt_u32 s{sWV}, 4
    s_cselect_b32 s50, s57, s58
    s_and_b32 s56, s{sWV}, 3
    s_lshl_b32 s56, s56, 8
    s_add_u32 s50, s50, s56
    s_mul_i32 s50, s50, 1792
    s_mul_i32 s56, s{sWV}, {8*SP_}
    v_add_u32 v4, s56, v15
    s_waitcnt lgkmcnt(0)
    s_barrier
    s_mov_b32 exec_hi, 0x00ffffff""")
    for i in range(8): e(f'ds_read_b128 {vr(24+4*i,4)}, v4 offset:{SP_*i}')
    for i in range(8):
        e(f's_waitcnt lgkmcnt({7-i})')
        e(f'buffer_store_dwordx4 {vr(24+4*i,4)}, v15, s[{SO}:{SO+3}], s50 offen {st}')
        e(f's_add_u32 s50, s50, {32*1792}')
    dump2(A,3)
    e('K2_END:\ns_endpgm')

def k3(A):
    e=A.e
    kk,si,role,stat,scale=[int(x) for x in OPT['x'].split(',')]
    e('k3_kernel:')
    e('s_cmp_ge_u32 s2, 1\ns_cbranch_scc1 K3_END')
    e('s_load_dwordx2 s[4:5], s[0:1], 88\nv_lshlrev_b32 v1, 6, v0\nv_mov_b32 v2, 0\nv_mov_b32 v3, -1\nv_mov_b32 v4, 0')
    e('ds_write_b32 v2, v3\nds_write_b32 v2, v4 offset:4\nds_write_b32 v2, v4 offset:8\ns_waitcnt lgkmcnt(0)\ns_barrier')
    e('s_add_u32 s8, s4, 0x800000\ns_addc_u32 s9, s5, 0\ns_mov_b32 s10, 0x20000\ns_mov_b32 s11, 0x20000')
    e(f'buffer_load_dword v5, v1, s[8:11], 0 offen\ns_mov_b32 s12, {0x10000*kk}')
    e(f'buffer_load_dword v6, v1, s[8:11], s12 offen offset:{4*si}\nbuffer_load_dword v7, v1, s[8:11], s12 offen offset:40\ns_waitcnt vmcnt(0)')
    e('ds_min_u32 v2, v5\ns_waitcnt lgkmcnt(0)\ns_barrier\nds_read_b32 v8, v2\ns_waitcnt lgkmcnt(0)\nv_sub_u32 v6, v6, v8')
    e(f'v_cmp_eq_u32 vcc, {role}, v7\nv_cndmask_b32 v6, 0, v6, vcc\nv_cndmask_b32 v9, 0, 1, vcc')
    e(('ds_max_u32 v2, v6 offset:4' if stat==0 else 'ds_add_u32 v2, v6 offset:4')+'\nds_add_u32 v2, v9 offset:8\ns_waitcnt lgkmcnt(0)\ns_barrier')
    e('ds_read_b32 v6, v2 offset:4\nds_read_b32 v9, v2 offset:8\ns_waitcnt lgkmcnt(0)')
    e(f'v_cvt_f32_u32 v6, v6\nv_mul_f32 v6, {f2u(float(scale))}, v6')
    if stat==1: e('v_cvt_f32_u32 v9, v9\nv_rcp_f32 v9, v9\nv_mul_f32 v6, v6, v9')
    e('v_cvt_u32_f32 v6, v6\nv_min_u32 v6, 100000, v6\nv_readfirstlane_b32 s14, v6')
    e('s_memrealtime s[16:17]\ns_waitcnt lgkmcnt(0)\nK3_L:\ns_memrealtime s[18:19]\ns_waitcnt lgkmcnt(0)\ns_sub_u32 s20, s18, s16\ns_cmp_lt_u32 s20, s14\ns_cbranch_scc1 K3_L')
    e('K3_END:\ns_endpgm')

def desc(name,vgpr,sgpr,acc):
    return f'''.amdhsa_kernel {name}
  .amdhsa_next_free_vgpr {vgpr}
  .amdhsa_next_free_sgpr {sgpr}
  .amdhsa_accum_offset {acc}
  .amdhsa_group_segment_fixed_size 0
  .amdhsa_kernarg_size 96
  .amdhsa_user_sgpr_count 2
  .amdhsa_user_sgpr_kernarg_segment_ptr 1
  .amdhsa_system_sgpr_workgroup_id_x 1
.end_amdhsa_kernel
'''
def main():
    A1=Asm(); k1(A1); A2=Asm(); k2(A2)
    assert A1.verify_branches()==0 and A2.verify_branches()==0
    v1=A1.maxreg('v')+1; v2=A2.maxreg('v')+1; a2=A2.maxreg('a')+1
    r4=lambda x:(x+3)//4*4
    hdr=open('concat_heads__spectral_fnet__linear_kernel_hedgehog__prompt.s.ref').read().split('; Override')[0]
    out=hdr+'; @launch kernel=k1_kernel grid=(256,1,1) block=(768,1,1) lds=139264\n; @launch kernel=k2_kernel grid=(256,1,1) block=(512,1,1) lds=131072\n'
    ks=[('k1_kernel',A1),('k2_kernel',A2)]
    if 'x' in OPT:
        A3=Asm(); k3(A3); ks.append(('k3_kernel',A3)); out+='; @launch kernel=k3_kernel grid=(1,1,1) block=(256,1,1) lds=64\n'
    out+='.amdgcn_target "amdgcn-amd-amdhsa--gfx950"\n.text\n'
    for n,A in ks:
        out+=f'.globl {n}\n.p2align 8\n.type {n},@function\n'+A.text()
    out+='.section .rodata,"a"\n.p2align 6\n'+desc('k1_kernel',v1,102,r4(v1))+'.p2align 6\n'+desc('k2_kernel',v2,102,r4(v2))
    if 'x' in OPT: out+='.p2align 6\n'+desc('k3_kernel',16,32,16)
    open(sys.argv[1],'w').write(out)
    print('k1 vgpr',v1,'k2 vgpr',v2,'agpr',a2, 'k1 sgpr',A1.maxreg('s')+1,'k2 sgpr',A2.maxreg('s')+1)
main()
```

```python
import sys, math
from asmlib import *

PHIQ_OFF=0; KV_OFF=0x400000; AINT_OFF=0x500000
LOG2E=1.4426950408889634
OPT=dict(st_phi='sc1', st_aint='sc1', st_out='', prof=0, rot=1, ldx='nt', lda='nt', D=2, apf=1, wpf=1, cpf=1)
for a in sys.argv[2:]:
    k,v=a.split('='); OPT[k]=int(v) if v.lstrip('-').isdigit() else v

def srd(A,d,base,nbytes,off=0):
    if off: A.e(f's_add_u32 s{d}, s{base}, {hex(off)}\ns_addc_u32 s{d+1}, s{base+1}, 0')
    else: A.e(f's_mov_b32 s{d}, s{base}\ns_mov_b32 s{d+1}, s{base+1}')
    A.e(f's_mov_b32 s{d+2}, {hex(nbytes)}\ns_mov_b32 s{d+3}, 0x20000')

NST=[0]
def stamp(A,i):
    if OPT.get('lp') and 1<=i<=6 and not OPT.get('k2'): return
    if OPT['prof']:
        A.e(f's_memrealtime s[{80+2*i}:{81+2*i}]')
        if i==0: A.e('s_memtime s[98:99]')
def dump(A,role,ws,ko):
    if not OPT['prof']: return
    NST[0]+=1; L=f'PD{NST[0]}'
    A.e(f's_memrealtime s[94:95]\ns_waitcnt vmcnt(0) lgkmcnt(0)\ns_memrealtime s[96:97]\ns_memtime s[78:79]\ns_waitcnt lgkmcnt(0)')
    A.e(f's_cmp_eq_u32 s40, {OPT.get("pw",0)}\ns_cbranch_scc0 {L}')
    A.e(f's_add_u32 s72, s{ws}, {ko}\ns_addc_u32 s73, s{ws+1}, 0\ns_mov_b32 s74, 0x10000\ns_mov_b32 s75, 0x20000\ns_mov_b64 exec, 1\ns_lshl_b32 s76, s2, 6\ns_sub_u32 s78, s78, s98')
    for i in range(9): A.e(f'v_mov_b32 v0, s{80+2*i}\nbuffer_store_dword v0, off, s[72:75], s76 offset:{4*i}')
    A.e(f'v_mov_b32 v0, s78\nbuffer_store_dword v0, off, s[72:75], s76 offset:36\nv_mov_b32 v0, {role}\nbuffer_store_dword v0, off, s[72:75], s76 offset:40')
    A.e(f'{L}:')
def dump1(A,role): dump(A,role,18,0x800000)
def dump2(A,role): dump(A,role,12,0x810000)

def MF(d,a,b,c=None):
    cc='0' if c is None else vr(c,16)
    return f'v_mfma_f32_32x32x16_bf16 {vr(d,16)}, {vr(a,4)}, {vr(b,4)}, {cc}'

def k1(A):
    e=A.e
    SX,SW,SP,SWS,SDB=20,24,28,32,36
    sWV=40
    e('k1_kernel:')
    e('s_cmp_ge_u32 s2, 256\ns_cbranch_scc1 K1_END')
    stamp(A,0)
    e('s_load_dwordx8 s[8:15], s[0:1], 40\ns_load_dwordx4 s[16:19], s[0:1], 80\ns_load_dwordx2 s[4:5], s[0:1], 0')
    e('v_and_b32 v1, 63, v0\nv_lshrrev_b32 v2, 6, v0')
    e('s_and_b32 s41, s2, 7\ns_lshr_b32 s42, s2, 3')
    e(f'v_readfirstlane_b32 s{sWV}, v2')
    e('s_cmp_ge_u32 s42, 24\ns_cbranch_scc1 K1_A')
    e('''s_and_b32 s43, s42, 1
    s_lshl_b32 s50, s41, 1
    s_add_u32 s43, s43, s50
    s_lshr_b32 s50, s42, 1
    s_and_b32 s50, s50, 7
    s_lshr_b32 s44, s42, 4
    s_add_u32 s53, s44, 1
    s_lshl_b32 s49, s50, s53''')
    vRX=10; vRW,vRB,vX0,vX1,vW,vP,vSA,vFL,vW0,vW1=14,15,16,17,18,19,20,21,22,23
    TM=24; WF=[32,48]; ACC0,ACC1=64,80; WPH=96; QB=112; EN=120; XF=144
    SLOT=24576; WBL=98304; WPL=155648
    e(f"""s_cmp_eq_u32 s44, 1
    s_cselect_b32 s46, 112, 896
    s_cselect_b32 s51, 224, 112
    s_cselect_b32 s52, 0, 896
    s_mul_i32 s45, s50, s51
    s_add_u32 s45, s45, s52
    v_lshrrev_b32 v3, 3, v1
    v_lshrrev_b32 v4, 4, v1
    v_and_b32 v5, 7, v1
    v_xor_b32 v6, v5, v4
    v_lshlrev_b32 v6, 4, v6
    v_mul_u32_u24 v7, 896, v3
    v_add_u32 v{vX0}, v7, v6
    v_xor_b32 v{vX1}, 64, v{vX0}
    v_add_u32 v{vX1}, {8*896}, v{vX1}
    v_and_b32 v4, 1, v4
    v_lshlrev_b32 v4, 2, v4
    v_xor_b32 v5, v5, v4
    v_min_u32 v5, 6, v5
    v_mul_u32_u24 v7, 2688, v3
    v_lshl_add_u32 v{vW}, v5, 4, v7
    v_lshlrev_b32 v3, 4, v0
    s_lshl_b32 s54, s43, 3
    s_add_u32 s54, s54, s{sWV}
    s_mul_i32 s54, s54, {16*896}
    s_mul_i32 s62, s{sWV}, {8*2688}
    s_add_u32 s62, s62, s45
    s_lshl_b32 s56, s{sWV}, 11
    s_lshl_b32 s61, s{sWV}, 10
    s_mul_i32 s57, s49, 1568
    s_add_u32 m0, s61, {WPL}""")
    if OPT['rot']:
        e(f"""s_min_u32 s58, s41, 6
        s_lshl_b32 s60, s58, 7
        s_add_u32 s54, s54, s60
        s_mul_i32 s55, s58, {64*2688}
        s_add_u32 s55, s55, s62""")
    else: e('s_mov_b32 s58, 0\ns_mov_b32 s55, s62')
    e('s_add_u32 s59, s55, s46\ns_mov_b32 s63, s58\ns_add_u32 s47, s62, s46')
    e('s_waitcnt lgkmcnt(0)')
    stamp(A,1)
    srd(A,SX,8,2048*896); srd(A,SW,10,448*2688); srd(A,SP,12,16*1568)
    lx=OPT['ldx']
    def issue(st):
        sl=SLOT*(st%4)
        return [f's_add_u32 m0, s56, {sl}\ns_add_u32 s58, s58, 1\nbuffer_load_dwordx4 v{vX0}, s[{SX}:{SX+3}], s54 offen {lx} lds',
                f's_add_u32 m0, s61, {sl+16384}\ns_cmp_eq_u32 s58, 7\nbuffer_load_dwordx4 v{vW}, s[{SW}:{SW+3}], s55 offen lds\ns_cselect_b32 s60, {128-896+(1<<32)}, 128\ns_cselect_b32 s55, {-64*2688*6+(1<<32)}, {64*2688}'.replace('s_cselect_b32 s55','s_cselect_b32 s64'),
                f's_add_u32 m0, s56, {sl+1024}\ns_add_u32 s55, s55, s64\nbuffer_load_dwordx4 v{vX1}, s[{SX}:{SX+3}], s54 offen {lx} lds\ns_add_u32 s54, s54, s60']
    def issueB(t):
        return [f's_add_u32 m0, s61, {WBL+8192*t}\ns_add_u32 s63, s63, 1\nbuffer_load_dwordx4 v{vW}, s[{SW}:{SW+3}], s59 offen lds\ns_add_u32 s59, s59, {64*2688}\ns_cmp_eq_u32 s63, 7\ns_cselect_b32 s59, s47, s59']
    D=OPT['D']
    e(f'buffer_load_dwordx4 v3, s[{SP}:{SP+3}], s57 offen lds')
    for st in range(D):
        for x in issue(st): e(x)
    e(f"""v_and_b32 v3, 3, v2
    v_and_b32 v4, 31, v1
    v_lshl_add_u32 v8, v3, 5, v4
    v_lshrrev_b32 v9, 5, v1
    v_bfe_u32 v5, v8, 1, 3
    v_xor_b32 v5, v5, v9
    v_lshlrev_b32 v5, 4, v5
    v_lshl_add_u32 v{vRX}, v8, 7, v5
    v_bfe_u32 v3, v1, 4, 1
    v_and_b32 v4, 3, v1
    v_lshl_add_u32 v3, v3, 2, v4
    v_min_u32 v3, 6, v3
    v_lshlrev_b32 v7, 3, v3
    v_lshrrev_b32 v2, 2, v2
    v_mad_u32_u24 v3, v2, 56, v7
    v_bfe_u32 v0, v1, 2, 2
    v_lshl_add_u32 v5, v9, 3, v0
    v_lshlrev_b32 v5, 7, v5
    v_bfe_u32 v4, v1, 3, 1
    v_lshlrev_b32 v4, 6, v4
    v_xor_b32 v6, v3, v4
    v_add_u32 v5, v5, v6
    v_add_u32 v{vRW}, 16384, v5
    v_add_u32 v{vRB}, {WBL}, v5
    v_lshl_add_u32 v4, v9, 2, v0
    v_mul_u32_u24 v4, 56, v4
    v_mul_u32_u24 v5, 1568, v2
    v_add3_u32 v3, v7, v4, v5
    v_add_u32 v{vP}, {WPL}, v3""")
    for ks in range(1,4): e(f'v_xor_b32 v{vRX+ks}, {32*ks}, v{vRX}')
    srd(A,SDB,16,256)
    e(f"""s_cmp_eq_u32 s44, 1
    s_cselect_b32 s60, {PHIQ_OFF}, {KV_OFF}
    s_cselect_b32 s{SWS+2}, {64*16*3584}, {16*3584}
    s_add_u32 s{SWS}, s18, s60
    s_addc_u32 s{SWS+1}, s19, 0
    s_mov_b32 s{SWS+3}, 0x20000
    s_and_b32 s65, s{sWV}, 3
    s_lshl_b32 s66, s43, 2
    s_add_u32 s65, s65, s66
    s_lshl_b32 s65, s65, 4
    s_lshr_b32 s66, s{sWV}, 2
    s_lshl_b32 s67, s66, 1
    s_add_u32 s65, s65, s67
    s_add_u32 s65, s65, s49
    s_mul_i32 s65, s65, 3584
    v_lshlrev_b32 v{vSA}, 4, v1
    s_mul_i32 s67, s66, 24576
    v_mul_u32_u24 v3, 192, v8
    v_bfe_u32 v4, v8, 1, 2
    v_lshlrev_b32 v5, 1, v9
    v_xor_b32 v4, v4, v5
    v_lshl_add_u32 v3, v4, 4, v3
    v_add_u32 v{vW0}, s67, v3
    v_xor_b32 v{vW1}, 16, v{vW0}
    s_mov_b32 s68, {f2u(LOG2E)}""")
    def rdW(ad,buf,off):
        return [f'ds_read_b64_tr_b16 {vr(WF[buf]+4*ks+2*jj,2)}, v{ad} offset:{off+2048*ks+512*jj}' for ks in range(4) for jj in range(2)]
    def shift():
        e(('s_memtime' if OPT.get('cyc') else 's_memrealtime')+' s[76:77]\ns_waitcnt lgkmcnt(0)')
        for i in range(1,7): e(f's_mov_b32 s{80+2*i}, s{82+2*i}')
        e('s_mov_b32 s92, s76')
    stamp(A,2)
    issued=[('p',1)]+[(k,3) for k in range(D)]
    def younger(tag):
        n=0
        for t,c in reversed(issued):
            if t==tag: return n
            n+=c
        raise
    nB=0
    for s_ in range(7):
        e(f's_waitcnt vmcnt({younger(s_)}) lgkmcnt(0)\ns_barrier')
        if s_==0: stamp(A,3)
        elif OPT.get('lp')==1: shift()
        I=[]
        if s_+D<7: I=issue(s_+D); issued.append((s_+D,3))
        k=int(str(OPT.get('bs','0000043')).zfill(7)[s_])
        for t in range(nB,nB+k): I+=issueB(t); issued.append((f'B{t}',1))
        nB+=k
        R=[]
        for ks in range(4): R+=[f'ds_read_b128 {vr(XF+16*s_+4*ks,4)}, v{vRX+ks}']+rdW(vRW,s_&1,0)[2*ks:2*ks+2]
        if s_==0: R+=[f'ds_read_b64_tr_b16 {vr(WPH+8*u+2*q,2)}, v{vP} offset:{3136*u+448*q}' for u in range(2) for q in range(4)]
        M=[MF(ACC0,WF[(s_-1)&1]+4*ks,XF+16*(s_-1)+4*ks,ACC0 if (s_>1 or ks) else None) for ks in range(4)] if s_ else []
        d=SLOT if (s_+1)%4 else -3*SLOT
        V=[f'v_add_u32 v{r}, {d&0xffffffff}, v{r}' for r in (vRX,vRX+1,vRX+2,vRX+3,vRW)] if s_<6 else []
        for i in range(4):
            if M: e(M[i])
            for x in R[i*len(R)//4:(i+1)*len(R)//4]: e(x)
            if i<len(I): e(I[i])
        for x in I[4:]: e(x)
        for x in V: e(x)
    P=ACC0; EP=ACC0
    PHR=[112+j for j in range(8)]+[136+j for j in range(4)]
    def unit(P,EN,PH,pk=1):
        U=[]
        mx,nm,t0,t1=TM,TM+1,TM+2,TM+3; EP=P
        U+=[f'v_permlane32_swap_b32 v{P+12}, v{P+14}',f'v_permlane32_swap_b32 v{P+13}, v{P+15}']
        U+=[f'v_max3_f32 v{mx}, v{P}, v{P+1}, v{P+2}',f'v_min3_f32 v{nm}, v{P}, v{P+1}, v{P+2}']
        for j in range(3,13,2): U+=[f'v_max3_f32 v{mx}, v{mx}, v{P+j}, v{P+j+1}',f'v_min3_f32 v{nm}, v{nm}, v{P+j}, v{P+j+1}']
        U+=[f'v_max_f32 v{mx}, v{mx}, v{P+13}',f'v_min_f32 v{nm}, v{nm}, v{P+13}']
        U+=[f'v_mul_f32 v{mx}, s68, v{mx}',f'v_mul_f32 v{nm}, {f2u(-LOG2E)}, v{nm}']
        U+=[f'v_permlane32_swap_b32 v{mx}, v{nm}',f'v_max_f32 v{t0}, v{mx}, v{nm}',f'v_max_f32 v{t1}, v{mx}, v{nm}',f'v_permlane32_swap_b32 v{t0}, v{t1}']
        if pk:
            for j in range(0,14,2):
                U+=[f'v_pk_fma_f32 {vr(EN+j,2)}, {vr(P+j,2)}, s[68:69], {vr(t0,2)} op_sel:[0,0,1] op_sel_hi:[1,0,1] neg_lo:[0,1,1] neg_hi:[0,1,1]',
                    f'v_pk_fma_f32 {vr(EP+j,2)}, {vr(P+j,2)}, s[68:69], {vr(t0,2)} op_sel_hi:[1,0,0] neg_lo:[0,0,1] neg_hi:[0,0,1]']
        else:
            for j in range(14): U+=[f'v_fma_f32 v{EN+j}, -v{P+j}, s68, -v{t1}',f'v_fma_f32 v{EP+j}, v{P+j}, s68, -v{t0}']
        for j in range(14): U+=[f'v_exp_f32 v{EP+j}, v{EP+j}',f'v_exp_f32 v{EN+j}, v{EN+j}']
        sp,sn=TM+4,TM+6
        if pk:
            U+=[f'v_pk_add_f32 {vr(sp,2)}, {vr(EP,2)}, {vr(EP+2,2)}',f'v_pk_add_f32 {vr(sn,2)}, {vr(EN,2)}, {vr(EN+2,2)}']
            for j in range(4,14,2): U+=[f'v_pk_add_f32 {vr(sp,2)}, {vr(sp,2)}, {vr(EP+j,2)}',f'v_pk_add_f32 {vr(sn,2)}, {vr(sn,2)}, {vr(EN+j,2)}']
            U+=[f'v_add_f32 v{mx}, v{sp}, v{sp+1}',f'v_add_f32 v{nm}, v{sn}, v{sn+1}']
        else:
            U+=[f'v_add_f32 v{mx}, v{EP}, v{EP+1}',f'v_add_f32 v{nm}, v{EN}, v{EN+1}']
            for j in range(2,14): U+=[f'v_add_f32 v{mx}, v{mx}, v{EP+j}',f'v_add_f32 v{nm}, v{nm}, v{EN+j}']
        U+=[f'v_permlane32_swap_b32 v{mx}, v{nm}',f'v_add_f32 v{t0}, v{mx}, v{nm}',f'v_rcp_f32 v{t0}, v{t0}',f'v_mov_b32 v{t1}, v{t0}',f'v_permlane32_swap_b32 v{t0}, v{t1}']
        if pk: U+=[f'v_pk_mul_f32 {vr(EP+j,2)}, {vr(EP+j,2)}, {vr(t0,2)} op_sel_hi:[1,0]' for j in range(0,14,2)]
        else: U+=[f'v_mul_f32 v{EP+j}, v{t0}, v{EP+j}' for j in range(14)]
        U+=[f'v_cvt_pk_bf16_f32 v{PH[j]}, v{EP+2*j}, v{EP+2*j+1}' for j in range(7)]
        if pk: U+=[f'v_pk_mul_f32 {vr(EN+j,2)}, {vr(EN+j,2)}, {vr(t0,2)} op_sel:[0,1] op_sel_hi:[1,1]' for j in range(0,14,2)]
        else: U+=[f'v_mul_f32 v{EN+j}, v{t1}, v{EN+j}' for j in range(14)]
        U+=[f'v_cvt_pk_bf16_f32 v{PH[7+j]}, v{EN+2*j}, v{EN+2*j+1}' for j in range(7)]
        return U
    e('s_waitcnt lgkmcnt(0)')
    for ks in range(4): e(MF(ACC0,WF[0]+4*ks,XF+96+4*ks,ACC0))
    e('v_cmp_gt_u32 vcc, 32, v1')
    for j in (6,7,14,15): e(f'v_cndmask_b32 v{WPH+j}, 0, v{WPH+j}, vcc')
    for j in range(8): e(f'v_cvt_pk_bf16_f32 v{QB+j}, v{ACC0+2*j}, v{ACC0+2*j+1}')
    e(MF(P,WPH,QB)); e(MF(P,WPH+4,QB+4,P))
    n1=OPT.get('n1',40)
    Ua=unit(P,EN,PHR+[140,141],1); Ub=unit(P,EN,PHR+[140,141],0)
    cutA=22+14; cutB=22+28
    U=Ua[:cutA]+Ub[cutB:]
    for x in U[:n1]: e(x)
    e(f's_waitcnt vmcnt({younger("B2")})\ns_barrier')
    stamp(A,4)
    for x in rdW(vRB,1,0)+rdW(vRB,0,8192): e(x)
    gaps=[1]*27+[0]
    cost=lambda x: 2.0 if x.startswith(('v_exp','v_rcp')) else 1.0
    tot=sum(gaps); k=n1; acc=0; ctot=sum(cost(x) for x in U[n1:]); cdone=0
    for t in range(7):
        e('s_waitcnt lgkmcnt(%d)'%(8 if t<6 else 0))
        for ks in range(4):
            e(MF(ACC1,WF[(t+1)&1]+4*ks,XF+16*t+4*ks,ACC1 if (t or ks) else None))
            if ks==3 and t+2<7:
                if t==1: e('s_waitcnt vmcnt(0)\ns_barrier'); e(f'buffer_load_dword v{vFL}, off, s[{SDB}:{SDB+3}], 0 sc1')
                for x in rdW(vRB,(t+1)&1,8192*(t+2)): e(x)
            acc+=gaps[4*t+ks]
            while k<len(U) and cdone<ctot*acc/tot-1e-9: e(U[k]); cdone+=cost(U[k]); k+=1
    assert k==len(U)
    stamp(A,5)
    e('s_cmp_eq_u32 s44, 0\ns_cbranch_scc1 K1_KV')
    st=OPT['st_phi']
    for c,r in enumerate((112,116,136)): e(f'buffer_store_dwordx4 {vr(r,4)}, v{vSA}, s[{SWS}:{SWS+3}], s65 offen offset:{1024*c} {st}')
    e('s_add_u32 s65, s65, 3072')
    Q2=144; P2=160; E2=176; H2=192
    for j in range(8): e(f'v_cvt_pk_bf16_f32 v{Q2+j}, v{ACC1+2*j}, v{ACC1+2*j+1}')
    e(MF(P2,WPH+8,Q2)); e(MF(P2,WPH+12,Q2+4,P2))
    for x in unit(P2,E2,[H2+j for j in range(12)]+[142,143]): e(x)
    for c in range(3): e(f'buffer_store_dwordx4 {vr(H2+4*c,4)}, v{vSA}, s[{SWS}:{SWS+3}], s65 offen offset:{1024*c} {st}')
    e(f'buffer_store_dwordx4 v[140:143], v{vSA}, s[{SWS}:{SWS+3}], s65 offen offset:3072 {st}')
    dump1(A,2)
    e('s_endpgm')
    e('K1_KV:')
    T2=144
    e(f"""ds_write_b128 v{vW0}, v[112:115]
    ds_write_b128 v{vW1}, v[116:119]
    ds_write_b128 v{vW0}, v[136:139] offset:64
    ds_write_b64 v{vW1}, v[140:141] offset:64
    v_mov_b32 v3, 0x3f80""")
    e(f"""s_lshr_b32 s66, s{sWV}, 1
    s_and_b32 s67, s{sWV}, 1
    s_mul_i32 s65, s66, 24576
    s_lshl_b32 s68, s67, 6
    s_nop 0""")
    for j in range(8): e(f'v_cvt_pk_bf16_f32 v{T2+j}, v{ACC1+2*j}, v{ACC1+2*j+1}')
    e(f"""v_cndmask_b32 v{T2+6}, v3, v{T2+6}, vcc
    v_cndmask_b32 v{T2+7}, v3, v{T2+7}, vcc
    ds_write_b128 v{vW0}, {vr(T2,4)} offset:128
    v_permlane32_swap_b32 v{T2+6}, v{T2+7}
    ds_write_b128 v{vW1}, {vr(T2+4,4)} offset:128
    v_lshl_add_u32 v4, v9, 3, v0
    v_mul_u32_u24 v4, 192, v4
    v_and_b32 v5, 1, v1
    v_bfe_u32 v6, v1, 4, 1
    v_lshl_add_u32 v5, v5, 1, v6
    v_lshrrev_b32 v3, 1, v0
    v_xor_b32 v5, v5, v3
    v_lshl_add_u32 v4, v5, 4, v4
    v_bfe_u32 v5, v1, 1, 1
    v_lshl_add_u32 v4, v5, 3, v4
    v_add_u32 v4, s65, v4
    v_xor_b32 v5, 32, v4
    v_add_u32 v6, s68, v4
    v_add_u32 v7, s68, v5
    s_lshr_b32 s65, s50, 1
    s_lshl_b32 s65, s65, 1
    s_add_u32 s65, s65, s66
    s_lshl_b32 s65, s65, 1
    s_and_b32 s68, s50, 1
    s_add_u32 s65, s65, s68
    s_mul_i32 s65, s65, 3584
    s_lshl_b32 s68, s67, 11
    s_add_u32 s65, s65, s68
    v_lshlrev_b32 v3, 2, v1
    s_mov_b32 s70, 0""")
    e('s_waitcnt lgkmcnt(0)\ns_barrier')
    stamp(A,6)
    if OPT.get('pw',0)>=4:
        e(f's_cmp_ge_u32 s{sWV}, 4\ns_cbranch_scc0 K1_KV2'); dump1(A,1); e('s_endpgm\nK1_KV2:')
    e(f's_cmp_ge_u32 s{sWV}, 4\ns_cbranch_scc1 K1_END')
    FA,FB,KA=160,192,224
    for ks in range(8):
        e(f'ds_read_b64_tr_b16 {vr(FA+4*ks,2)}, v6 offset:{3072*ks}')
        e(f'ds_read_b64_tr_b16 {vr(FA+4*ks+2,2)}, v7 offset:{3072*ks+768}')
        e(f'ds_read_b64_tr_b16 {vr(FB+4*ks,2)}, v4 offset:{3072*ks+128}')
        e(f'ds_read_b64_tr_b16 {vr(FB+4*ks+2,2)}, v5 offset:{3072*ks+768+128}')
        if ks>=2:
            e('s_waitcnt lgkmcnt(8)'); e(MF(KA,FA+4*(ks-2),FB+4*(ks-2),KA if ks>2 else None))
    e('s_waitcnt lgkmcnt(4)'); e(MF(KA,FA+24,FB+24,KA))
    e('s_waitcnt lgkmcnt(0)'); e(MF(KA,FA+28,FB+28,KA))
    e('K1_POLL:\ns_waitcnt vmcnt(0)')
    e(f'v_readfirstlane_b32 s69, v{vFL}')
    e('s_cmp_ge_u32 s69, 64\ns_cbranch_scc1 K1_GO\ns_add_u32 s70, s70, 1\ns_cmp_ge_u32 s70, 0x40000\ns_cbranch_scc1 K1_GO\ns_sleep 2')
    e(f'buffer_load_dword v{vFL}, off, s[{SDB}:{SDB+3}], 0 sc1')
    e('s_branch K1_POLL\nK1_GO:\ns_nop 7')
    for j in range(6):
        e(f'v_cvt_pk_bf16_f32 v{FA+j}, v{KA+2*j}, v{KA+2*j+1}')
        e(f'buffer_atomic_pk_add_bf16 v{FA+j}, v3, s[{SWS}:{SWS+3}], s65 offen offset:{256*j}')
    e('s_cmp_eq_u32 s67, 1\ns_cbranch_scc1 K1_END')
    for j in range(6,8):
        e(f'v_cvt_pk_bf16_f32 v{FA+j}, v{KA+2*j}, v{KA+2*j+1}')
        e(f'buffer_atomic_pk_add_bf16 v{FA+j}, v3, s[{SWS}:{SWS+3}], s65 offen offset:{256*j}')
    dump1(A,1)
    e('s_endpgm')
    e('K1_A:')
    e(f"""s_lshl_b32 s43, s41, 3
    s_add_u32 s43, s43, s42
    s_sub_u32 s43, s43, 24
    v_lshlrev_b32 v3, 4, v1
    v_lshlrev_b32 v17, 7, v1""")
    if OPT['cpf']:
        e(f"""s_cmp_eq_u32 s{sWV}, 6
        s_cbranch_scc0 K1A_H1
        s_getpc_b64 s[44:45]
        K1_PC:
        s_sub_u32 s44, s44, K1_PC-k1_kernel
        s_subb_u32 s45, s45, 0
        global_load_dword v18, v17, s[44:45]
        global_load_dword v18, v17, s[44:45] offset:4032
        K1A_H1:""".replace("global_load_dword v18, v17, s[44:45] offset:4032\n","s_add_u32 s44, s44, 8192\ns_addc_u32 s45, s45, 0\nglobal_load_dword v18, v17, s[44:45]\n"))
    e(f"""s_lshl_b32 s44, s{sWV}, 8
    s_add_u32 s44, s44, s43
    s_mul_i32 s44, s44, 896
    s_mul_i32 s45, s{sWV}, {4*960}
    s_lshl_b32 s46, s43, 2
    s_add_u32 s46, s46, s{sWV}
    s_mul_i32 s46, s46, {56*128}
    s_mul_i32 s47, s43, 896
    s_mov_b32 m0, s45
    s_mov_b32 exec_hi, 0x00ffffff
    s_waitcnt lgkmcnt(0)""")
    stamp(A,1)
    if OPT['apf']:
        srd(A,SW,8,2048*896)
        e(f's_cmp_lt_u32 s{sWV}, 4\ns_cbranch_scc0 K1A_H2\nbuffer_load_dword v18, v17, s[{SW}:{SW+3}], s46 offen {lx}\nK1A_H2:')
    e(f's_cmp_eq_u32 s{sWV}, 7\ns_cbranch_scc0 K1A_H3')
    srd(A,SWS,18,16*3584,KV_OFF); srd(A,SDB,16,256)
    e(f"""v_mov_b64 v[12:13], 0
    v_mov_b64 v[14:15], 0
    v_mov_b32 v16, 1
    buffer_store_dwordx4 v[12:15], v3, s[{SWS}:{SWS+3}], s47 offen sc1
    s_waitcnt vmcnt(0)
    s_mov_b64 exec, 1
    buffer_atomic_add v16, off, s[{SDB}:{SDB+3}], 0 sc1
    s_mov_b32 exec_lo, -1
    s_mov_b32 exec_hi, 0x00ffffff
    K1A_H3:""")
    srd(A,SX,4,2048*896)
    for i in range(4):
        if i: e(f's_add_u32 m0, s45, {960*i}\ns_add_u32 s44, s44, {64*896}')
        e(f'buffer_load_dwordx4 v3, s[{SX}:{SX+3}], s44 offen {OPT["lda"]} lds')
    VL=32768; OL=73728
    e('s_mov_b32 exec_hi, -1\nv_and_b32 v8, 31, v1\nv_lshrrev_b32 v9, 5, v1')
    e(f'''v_mul_u32_u24 v10, {8*2560}, v9
    v_mul_u32_u24 v16, 80, v8
    v_add_u32 v10, v16, v10
    v_lshl_add_u32 v10, v2, 3, v10
    v_add_u32 v10, {VL}, v10''')
    FF=20; HH=28; CP=32; SPn=40; A2=48; B2=56; TT=64
    e(f'''v_lshrrev_b32 v4, 1, v8
    v_and_b32 v5, 1, v8
    v_cvt_f32_u32 v5, v5
    v_mul_f32 v5, {f2u(-0.25)}, v5
    v_cmp_eq_u32 vcc, 1, v8
    v_cndmask_b32 v4, v4, 16, vcc
    v_cndmask_b32 v5, v5, 0, vcc
    v_cvt_f32_u32 v4, v4
    v_mul_f32 v4, {f2u(1/32)}, v4
    v_cvt_f32_u32 v11, v9
    v_mul_f32 v12, 4.0, v11
    v_add_f32 v11, v12, v12
    v_fma_f32 v5, v4, v11, v5''')
    for ks in range(2):
        for j in range(8): e(f'v_fmamk_f32 v{TT+8*ks+j}, v4, {f2u(16.*ks+j)}, v5')
    for j in range(16): e(f'v_cos_f32 v{TT+j}, v{TT+j}')
    for j in range(8): e(f'v_cvt_pk_bf16_f32 v{FF+j}, v{TT+2*j}, v{TT+2*j+1}')
    e(f'''v_bfe_u32 v4, v8, 2, 1
    v_bfe_u32 v5, v8, 3, 1
    v_lshl_add_u32 v4, v4, 1, v5
    v_bfe_u32 v5, v8, 1, 1
    v_lshl_add_u32 v4, v4, 1, v5
    v_and_b32 v5, 1, v8
    v_cvt_f32_u32 v5, v5
    v_mul_f32 v5, {f2u(-0.25)}, v5
    v_and_b32 v6, 15, v8
    v_cmp_eq_u32 vcc, 1, v6
    v_cndmask_b32 v4, v4, 8, vcc
    v_cndmask_b32 v5, v5, 0, vcc
    v_cvt_f32_u32 v4, v4
    v_mul_f32 v4, {f2u(1/16)}, v4
    v_fma_f32 v5, v4, v12, v5''')
    for j in range(8): e(f'v_fmamk_f32 v{TT+j}, v4, {f2u(8.*(j>>2)+(j&3))}, v5')
    for j in range(8): e(f'v_cos_f32 v{TT+j}, v{TT+j}')
    for j in range(4): e(f'v_cvt_pk_bf16_f32 v{HH+j}, v{TT+2*j}, v{TT+2*j+1}')
    e(f'''s_cmp_eq_u32 s{sWV}, 0
    s_cselect_b32 s47, 8, s{sWV}
    s_sub_u32 s48, 0, s47
    v_lshrrev_b32 v4, 2, v8
    v_lshlrev_b32 v4, 5, v4
    v_and_b32 v5, 3, v8
    v_add_u32 v5, 1, v5
    v_lshrrev_b32 v5, 1, v5
    v_lshl_add_u32 v4, v5, 4, v4
    v_and_b32 v5, 1, v8
    v_cmp_eq_u32 vcc, 1, v5
    v_mov_b32 v6, s48
    v_cndmask_b32 v6, v2, v6, vcc
    v_add_u32 v4, v4, v6
    v_cvt_f32_u32 v4, v4
    v_mul_f32 v4, {f2u(1/448)}, v4
    v_mul_f32 v5, v4, v11''')
    for ks in range(2):
        for j in range(8): e(f'v_fmamk_f32 v{TT+8*ks+j}, v4, {f2u(16.*ks+j)}, v5')
    for j in range(16): e(f'v_sin_f32 v{TT+16+j}, v{TT+j}\nv_cos_f32 v{TT+j}, v{TT+j}')
    for j in range(8): e(f'v_cvt_pk_bf16_f32 v{CP+j}, v{TT+2*j}, v{TT+2*j+1}\nv_cvt_pk_bf16_f32 v{SPn+j}, v{TT+16+2*j}, v{TT+16+2*j+1}')
    e(f's_cmp_eq_u32 s{sWV}, 0\ns_cbranch_scc1 K1A_SPEC')
    e('''v_mov_b32 v4, 0x80008000
    v_cndmask_b32 v5, v4, 0, vcc
    v_cndmask_b32 v6, 0, v4, vcc''')
    for j in range(8): e(f'v_xor_b32 v{A2+j}, v5, v{SPn+j}\nv_xor_b32 v{B2+j}, v6, v{CP+j}')
    e('s_branch K1A_ST1\nK1A_SPEC:')
    for j in range(8):
        e(f'''v_cndmask_b32 v{A2+j}, 0, v{CP+j}, vcc
        v_cndmask_b32 v{B2+j}, 0, v{SPn+j}, vcc
        v_cndmask_b32 v{CP+j}, v{CP+j}, 0, vcc
        v_cndmask_b32 v{SPn+j}, v{SPn+j}, 0, vcc''')
    e('v_mov_b32 v4, 0xbf803f80\nv_cmp_eq_u32 vcc, 0, v8')
    for j in range(8): e(f'v_cndmask_b32 v{SPn+j}, v{SPn+j}, v4, vcc')
    e('K1A_ST1:')
    XA=64; BO=80; U0=96; U1=112; VU=96
    e(f'''v_bfe_u32 v4, v1, 2, 2
    v_lshl_add_u32 v4, v9, 3, v4
    v_mul_u32_u24 v4, 960, v4
    v_and_b32 v5, 1, v1
    v_bfe_u32 v6, v1, 4, 1
    v_lshl_add_u32 v5, v5, 1, v6
    v_bfe_u32 v6, v1, 1, 1
    v_lshl_add_u32 v5, v5, 1, v6
    v_mad_u32_u24 v4, v5, 56, v4
    v_lshl_add_u32 v4, v2, 3, v4
    v_mul_u32_u24 v13, 5120, v2
    v_add_u32 v13, v16, v13
    v_lshl_add_u32 v13, v9, 4, v13
    v_add_u32 v13, {VL}, v13
    v_mul_u32_u24 v14, 1032, v8
    v_lshl_add_u32 v14, v9, 7, v14
    v_add_u32 v14, {OL}, v14
    s_lshl_b32 s48, s48, 1
    v_add_u32 v15, s48, v14
    v_lshl_add_u32 v14, v2, 1, v14''')
    for r in range(8): e(f'v_mov_b64 {vr(XA+2*r,2)}, 0')
    stamp(A,3)
    e('s_waitcnt vmcnt(0)\ns_barrier')
    stamp(A,4)
    e(f's_cmp_eq_u32 s{sWV}, 7\ns_cbranch_scc1 K1A_VW')
    for dh in range(2):
        for ks in range(2):
            for jj in range(2):
                e(f'ds_read_b64_tr_b16 {vr(XA+8*dh+4*ks+2*jj,2)}, v4 offset:{15360*ks+3840*jj+448*dh}')
    e('s_waitcnt lgkmcnt(4)')
    e(MF(U0,XA,FF)); e(MF(U0,XA+4,FF+4,U0))
    e('s_waitcnt lgkmcnt(0)')
    e(MF(U1,XA+8,FF)); e(MF(U1,XA+12,FF+4,U1))
    for u in range(4):
        e(f'v_cvt_pk_bf16_f32 v{BO+4*u}, v{U0+u}, v{U0+4+u}\nv_cvt_pk_bf16_f32 v{BO+4*u+1}, v{U0+8+u}, v{U0+12+u}')
    for u in range(4):
        e(f'v_cvt_pk_bf16_f32 v{BO+4*u+2}, v{U1+u}, v{U1+4+u}\nv_cvt_pk_bf16_f32 v{BO+4*u+3}, v{U1+8+u}, v{U1+12+u}')
    for u in range(4): e(MF(VU+16*u,HH,BO+4*u))
    for r in range(8): e(f'v_cvt_pk_bf16_f32 v{XA+2*r}, v{VU+r}, v{VU+16+r}')
    for r in range(8): e(f'v_cvt_pk_bf16_f32 v{XA+2*r+1}, v{VU+32+r}, v{VU+48+r}')
    e('K1A_VW:')
    for r in range(8): e(f'ds_write_b64 v10, {vr(XA+2*r,2)} offset:{2560*r}')
    e('s_waitcnt lgkmcnt(0)\ns_barrier')
    for ks in range(4): e(f'ds_read_b128 {vr(XA+4*ks,4)}, v13 offset:{32*(ks&1)+2560*(ks>>1)}')
    GA=[CP,CP+4,A2,A2+4]; GB=[SPn,SPn+4,B2,B2+4]
    for ks in range(4):
        e(f's_waitcnt lgkmcnt({3-ks})')
        e(MF(U0,GA[ks],XA+4*ks,U0 if ks else None)); e(MF(U1,GB[ks],XA+4*ks,U1 if ks else None))
    stamp(A,5)
    srd(A,SWS,18,2<<20,AINT_OFF)
    for (U,ab) in ((U0,0),(U1,64)):
        for j in range(8): e(f'v_cvt_pk_bf16_f32 v{BO+(ab>>3)+j}, v{U+2*j}, v{U+2*j+1}')
        for a in range(4):
            r=BO+(ab>>3)+2*a
            e(f'''ds_write_b16 v14, v{r} offset:{256*a+ab}
            ds_write_b16_d16_hi v15, v{r} offset:{256*a+32+ab}
            ds_write_b16 v14, v{r+1} offset:{256*a+32+ab}
            ds_write_b16_d16_hi v15, v{r+1} offset:{256*a+64+ab}''')
    e(f'''s_mul_i32 s45, s{sWV}, {4*1032}
    s_add_u32 s45, s45, {OL}
    v_add_u32 v4, s45, v3
    v_add_u32 v5, 2064, v4
    s_lshl_b32 s44, s{sWV}, 8
    s_add_u32 s44, s44, s43
    s_lshl_b32 s44, s44, 10
    v_lshlrev_b32 v6, 7, v1
    s_waitcnt lgkmcnt(0)
    s_barrier
    s_mov_b32 exec_hi, 0x00ffffff''')
    for i in range(4): e(f'ds_read2_b64 {vr(XA+4*i,4)}, v{4+(i>>1)} offset0:{129*(i&1)} offset1:{129*(i&1)+1}')
    st=OPT['st_aint']
    for i in range(4):
        e(f's_waitcnt lgkmcnt({3-i})')
        e(f'buffer_store_dwordx4 {vr(XA+4*i,4)}, v3, s[{SWS}:{SWS+3}], s44 offen {st}')
        e(f's_add_u32 s44, s44, 65536')
    if OPT['wpf']:
        srd(A,SW,14,448*896)
        e(f'''s_cmp_eq_u32 s{sWV}, 7
        s_cbranch_scc1 K1A_CP
        s_sub_u32 s46, s42, 24
        s_mul_i32 s46, s46, 7
        s_add_u32 s46, s46, s{sWV}
        s_mul_i32 s46, s46, {56*128}
        buffer_load_dword v7, v6, s[{SW}:{SW+3}], s46 offen
        s_branch K1A_E
        K1A_CP:
        s_mov_b32 exec_hi, -1
        s_getpc_b64 s[44:45]
        K1_PC2:
        s_add_u32 s44, s44, k2_kernel-K1_PC2
        s_addc_u32 s45, s45, 0
        global_load_dword v7, v6, s[44:45]
        K1A_E:''')
    dump1(A,3)
    e('K1_END:\ns_endpgm')

def k2(A):
    e=A.e
    OPT['k2']=1
    SD,SPH,SO=20,24,28
    sWV=40
    e('k2_kernel:')
    e('s_cmp_ge_u32 s2, 256\ns_cbranch_scc1 K2_END')
    stamp(A,0)
    e('s_load_dwordx4 s[8:11], s[0:1], 64\ns_load_dwordx2 s[12:13], s[0:1], 88')
    e('v_and_b32 v1, 63, v0\nv_lshrrev_b32 v2, 6, v0')
    e('s_and_b32 s41, s2, 7\ns_lshr_b32 s42, s2, 3')
    e(f'v_readfirstlane_b32 s{sWV}, v2')
    e('''v_bfe_u32 v3, v1, 4, 1
    v_and_b32 v4, 7, v1
    v_lshlrev_b32 v5, 2, v3
    v_xor_b32 v4, v4, v5
    v_lshlrev_b32 v12, 4, v4
    v_lshrrev_b32 v13, 3, v1
    v_lshlrev_b32 v15, 4, v1''')
    LANE='''v_and_b32 v8, 31, v1
    v_lshrrev_b32 v9, 5, v1
    v_bfe_u32 v10, v1, 2, 2
    v_bfe_u32 v3, v1, 4, 1
    v_and_b32 v4, 1, v1
    v_lshl_add_u32 v4, v3, 1, v4
    v_bfe_u32 v5, v1, 1, 1
    v_lshl_add_u32 v4, v4, 1, v5
    v_lshlrev_b32 v11, 3, v4'''
    e('s_cmp_ge_u32 s42, 28\ns_cbranch_scc1 K2_A')
    e(f'''s_lshr_b32 s44, s42, 2
    s_and_b32 s45, s{sWV}, 1
    s_bfe_u32 s46, s{sWV}, 0x10001
    s_cmp_ge_u32 s{sWV}, 4
    s_cbranch_scc0 K2_C''')
    e(f'''v_mul_u32_u24 v3, 896, v13
    v_add_u32 v3, v3, v12
    s_and_b32 s50, s{sWV}, 3
    s_mul_i32 s50, s50, 28672
    s_cmp_eq_u32 s46, 0
    s_cselect_b64 vcc, -1, 0
    s_cselect_b32 s47, 1024, 7168
    s_cselect_b32 s48, 28672, {224*896}
    s_cselect_b32 s49, 0, 128
    s_cselect_b32 s58, 1024, {36*896}
    s_cselect_b32 s59, 1024, {(-48*896)&0xffffffff}
    s_cselect_b32 s60, 0, {((-48*896)&0xffffffff)^(8*896)}
    v_lshrrev_b32 v4, 5, v1
    v_mul_u32_u24 v4, {28*896}, v4
    v_add_u32 v4, v3, v4
    v_cndmask_b32 v14, v3, v15, vcc
    v_cndmask_b32 v16, v4, v15, vcc
    s_mul_i32 s48, s48, s45
    s_mul_i32 s49, s49, s44
    s_add_u32 s48, s48, s49
    s_mov_b32 m0, s50
    s_mov_b32 s51, 0
    s_waitcnt lgkmcnt(0)
    s_add_u32 s54, s12, {KV_OFF}
    s_addc_u32 s55, s13, 0
    s_cmp_eq_u32 s46, 0
    s_cselect_b32 s{SD}, s54, s8
    s_cselect_b32 s{SD+1}, s55, s9
    s_cselect_b32 s{SD+2}, {16*3584}, {448*896}
    s_mov_b32 s{SD+3}, 0x20000
    K2_LL:''')
    for n in range(7): e(f'buffer_load_dwordx4 v{16 if n==3 else 14}, s[{SD}:{SD+3}], s48 offen lds\ns_add_u32 m0, m0, 1024\ns_add_u32 s48, s48, s{58 if n==3 else 59 if n==6 else 47}')
    e('s_xor_b32 s59, s59, s60')
    D2=OPT.get('D2',2)
    e(f's_add_u32 s51, s51, 1\ns_cmp_lt_u32 s51, {D2}\ns_cbranch_scc1 K2_LL')
    e(f's_waitcnt vmcnt({7*(D2-1)})\ns_barrier\ns_cmp_lt_u32 s51, 4\ns_cbranch_scc1 K2_LL')
    for r in range(D2-2,-1,-1): e(f's_waitcnt vmcnt({7*r})\ns_barrier')
    e('s_endpgm')
    e('K2_C:')
    e(f'''s_and_b32 s43, s42, 3
    s_lshl_b32 s41, s41, 2
    s_add_u32 s43, s43, s41
    s_lshl_b32 s51, s43, 1
    s_add_u32 s51, s51, s45
    s_lshl_b32 s52, s51, 4
    s_lshl_b32 s53, s46, 3
    s_add_u32 s52, s52, s53
    s_mul_i32 s52, s52, 3584
    s_add_u32 s57, s52, 4096
    s_waitcnt lgkmcnt(0)''')
    stamp(A,1)
    srd(A,SPH,12,64*16*3584,PHIQ_OFF)
    PHI=144; vF16=15
    def loads(s):
        L=[]
        for n in range(7):
            x=f'buffer_load_dwordx4 {vr(PHI+28*s+4*n,4)}, v{vF16}, s[{SPH}:{SPH+3}], s{52 if n<4 else 57} offen offset:{1024*(n&3)}'
            if n==6: x+='\ns_add_u32 s52, s52, 7168\ns_add_u32 s57, s57, 7168'
            L.append(x)
        return L
    for x in loads(0)+loads(1): e(x)
    srd(A,SO,10,2048*1792)
    e(LANE)
    vK,vN0,vN1,vS0,vS1=17,18,19,20,21
    e(f'''s_mul_i32 s53, s46, 28672
    v_lshlrev_b32 v3, 2, v1
    v_add_u32 v{vK}, s53, v3
    s_add_u32 s53, s53, 57344
    v_lshl_add_u32 v3, v9, 2, v10
    v_lshlrev_b32 v3, 7, v3
    v_lshrrev_b32 v4, 1, v10
    v_lshl_add_u32 v3, v4, 6, v3
    v_add3_u32 v{vN0}, v3, v11, s53
    v_xor_b32 v{vN1}, 64, v{vN0}
    v_lshlrev_b32 v3, 1, v9
    v_xor_b32 v3, v3, v10
    v_lshrrev_b32 v4, 1, v3
    v_lshlrev_b32 v3, 7, v3
    v_lshl_add_u32 v3, v4, 6, v3
    v_add3_u32 v{vS0}, v3, v11, s53
    v_xor_b32 v{vS1}, 64, v{vS0}
    s_lshl_b32 s53, s{sWV}, 12
    s_add_u32 s53, s53, 114688
    v_add_u32 v6, s53, v{vF16}
    s_xor_b32 s53, s53, 8192
    v_add_u32 v7, s53, v{vF16}
    s_lshl_b32 s51, s51, 5
    v_add_u32 v5, s51, v8
    v_mul_u32_u24 v5, 1792, v5
    v_lshl_add_u32 v5, v9, 4, v5
    s_lshl_b32 s54, s44, 7
    s_lshl_b32 s55, s46, 6
    s_add_u32 s54, s54, s55
    s_add_u32 s54, s54, 896''')
    KF=[24,40]; WFR=56; NUM=[72,88]; OP=104; OUT=[112,128]
    e(f'v_mov_b64 {vr(KF[0]+14,2)}, 0\nv_mov_b64 {vr(KF[1]+12,2)}, 0')
    e(f'v_mov_b32 v{OP+7}, 0\ns_mov_b32 s56, {f2u(1e-6)}')
    def rdkv(hl):
        return [f'ds_read2st64_b32 {vr(KF[hl&1]+2*p+(2 if (p==6 and hl&1) else 0),2)}, v{vK} offset0:{14*hl+2*p} offset1:{14*hl+2*p+1}' for p in range(7)]
    def rdwo(hl):
        L=[]
        for q in range(4):
            for mt in range(2):
                if q<3: L.append(f'ds_read_b64_tr_b16 {vr(WFR+8*mt+2*q,2)}, v{(vN0,vN1)[mt]} offset:{3584*hl+1024*q}')
                else: L.append(f'ds_read_b64_tr_b16 {vr(WFR+8*mt+6,2)}, v{(vS0,vS1)[mt]} offset:{3584*hl+3072}')
        return L
    def num(hl):
        base=PHI+28*(hl>>1)
        ph=[base+12*(hl&1)+4*s for s in range(3)]+[base+24]
        return [MF(NUM[hl&1],KF[hl&1]+4*s,ph[s],NUM[hl&1] if s else None) for s in range(4)]
    def fin(hl):
        N=NUM[hl&1]
        L=[f'v_add_f32 v22, s56, v{N+14}','v_rcp_f32 v22, v22']
        L+=[f'v_mul_f32 v{N+j}, v22, v{N+j}' for j in range(14)]
        L+=[f'v_cvt_pk_bf16_f32 v{OP+j}, v{N+2*j}, v{N+2*j+1}' for j in range(7)]
        return L
    def outm(hl):
        return [MF(OUT[mt],WFR+8*mt+4*sp,OP+4*sp,None if (hl==0 and sp==0) else OUT[mt]) for sp in range(2) for mt in range(2)]
    e('s_barrier')
    stamp(A,3)
    for x in rdkv(0): e(x)
    later=loads(2)+loads(3)
    for h in range(9):
        if h==6: stamp(A,4)
        if h<8:
            w='s_waitcnt lgkmcnt(0)'
            if h%2==0: w+=' vmcnt(%d)'%(7 if h<6 else 0)
            e(w)
        N=num(h) if h<8 else []
        W=rdwo(h-1) if h>0 else []
        Fv=fin(h-1) if h>0 else []
        K=rdkv(h+1) if h<7 else []
        if h<7 and h%2==1: K=['s_barrier']+K
        fill=[W[:8]+Fv[:1],Fv[1:12],Fv[12:],K]
        for i in range(4):
            if N: e(N[i])
            for x in fill[i]: e(x)
        if h>0:
            e('s_waitcnt lgkmcnt(%d)'%(7 if h<7 else 0))
            O=outm(h-1)
        else: O=[]
        Ld=later[(7*h)//2:(7*(h+1))//2] if h<4 else []
        for i in range(4):
            if O: e(O[i])
            if i<len(Ld): e(Ld[i])
    stamp(A,5)
    e('s_nop 7\ns_cmp_eq_u32 s46, 0\ns_cbranch_scc1 K2_X0')
    for q in range(4): e(f'ds_write_b128 v6, {vr(OUT[0]+4*q,4)} offset:{1024*q}')
    for j in range(0,16,2): e(f'v_mov_b64 {vr(OUT[0]+j,2)}, {vr(OUT[1]+j,2)}')
    e('s_branch K2_X1\nK2_X0:\ns_nop 1')
    for q in range(4): e(f'ds_write_b128 v6, {vr(OUT[1]+4*q,4)} offset:{1024*q}')
    e('K2_X1:\ns_waitcnt lgkmcnt(0)\ns_barrier')
    for q in range(4): e(f'ds_read_b128 {vr(24+4*q,4)}, v7 offset:{1024*q}')
    st=OPT['st_out']
    for i in range(2):
        e(f's_waitcnt lgkmcnt({2-2*i})')
        for j in range(0,8,2): e(f'v_pk_add_f32 {vr(OUT[0]+8*i+j,2)}, {vr(OUT[0]+8*i+j,2)}, {vr(24+8*i+j,2)}')
        for j in range(4): e(f'v_cvt_pk_bf16_f32 v{56+4*i+j}, v{OUT[0]+8*i+2*j}, v{OUT[0]+8*i+2*j+1}')
        e(f'buffer_store_dwordx4 {vr(56+4*i,4)}, v5, s[{SO}:{SO+3}], s54 offen offset:{32*i} {st}')
    dump2(A,1)
    e('s_endpgm')
    e('K2_A:')
    SP_=904
    e(f'''s_lshl_b32 s43, s41, 2
    s_add_u32 s43, s43, s42
    s_sub_u32 s43, s43, 28
    s_and_b32 s44, s43, 1
    s_lshr_b32 s43, s43, 1
    s_and_b32 s45, s{sWV}, 1
    s_lshr_b32 s46, s{sWV}, 1
    v_lshl_add_u32 v14, v13, 10, v12
    s_lshl_b32 s47, s43, 17
    s_lshl_b32 s48, s{sWV}, 14
    s_add_u32 s47, s47, s48
    s_add_u32 s49, s47, 8192
    s_lshl_b32 s48, s{sWV}, 11
    s_mov_b32 m0, s48
    s_waitcnt lgkmcnt(0)''')
    stamp(A,1)
    srd(A,SD,12,2<<20,AINT_OFF)
    Ld=[]
    for j in range(7):
        Ld.append(f'buffer_load_dwordx4 v14, s[{SD}:{SD+3}], s47 offen lds\ns_add_u32 m0, m0, 1024\ns_add_u32 s47, s47, 128')
        Ld.append(f'buffer_load_dwordx4 v14, s[{SD}:{SD+3}], s49 offen lds\ns_add_u32 m0, m0, {16384-1024}\ns_add_u32 s49, s49, 128')
    G=f"""s_sub_u32 s58, 32, s43
    s_mov_b32 s57, s43
    s_cmp_eq_u32 s43, 0
    s_cselect_b32 s58, 16, s58
    s_cselect_b32 s53, 0, -1
    s_cselect_b32 s54, 8192, 0
    s_mul_i32 s54, s54, s45
    s_lshl_b32 s56, s44, 10
    s_add_u32 s57, s57, s56
    s_add_u32 s58, s58, s56
    s_cmp_eq_u32 s45, 0
    s_cselect_b32 s50, s57, s58
    s_cselect_b32 s51, 0x80008000, 0
    s_cselect_b32 s52, 0, 0x80008000""".split('\n')
    npre=len(G)
    G+=LANE.split('\n')
    G+=f"""v_lshlrev_b32 v3, 5, v8
    v_add_u32 v3, s50, v3
    v_cvt_f32_u32 v4, v3
    v_mul_f32 v4, {f2u(1/2048)}, v4
    v_cvt_f32_u32 v5, v9
    v_mul_f32 v5, {f2u(8.0)}, v5
    v_mul_f32 v5, v4, v5
    v_mov_b32 v6, s53""".split('\n')
    C,S,S2,C2=24,40,56,72; TT=88
    for ks in range(4):
        for j in range(8): G.append(f'v_fmamk_f32 v{TT+j}, v4, {f2u(16.*ks+j)}, v5')
        for j in range(8): G+=[f'v_sin_f32 v{TT+8+j}, v{TT+j}',f'v_cos_f32 v{TT+j}, v{TT+j}']
        for j in range(4): G+=[f'v_cvt_pk_bf16_f32 v{C+4*ks+j}, v{TT+2*j}, v{TT+2*j+1}',f'v_cvt_pk_bf16_f32 v{S+4*ks+j}, v{TT+8+2*j}, v{TT+8+2*j+1}']
    for j in range(16):
        G+=[f'v_bitop3_b32 v{S2+j}, v{S+j}, s51, v6 bitop3:0x28',f'v_bitop3_b32 v{C2+j}, v{C+j}, s52, v6 bitop3:0x28']
    for x in Ld[:4]: e(x)
    for x in G[:npre]: e(x)
    k=4
    for i,x in enumerate(G[npre:]):
        e(x)
        if i%8==7 and k<len(Ld): e(Ld[k]); k+=1
    while k<len(Ld): e(Ld[k]); k+=1
    srd(A,SO,10,2048*1792)
    aR,aS,bS,bR=16,17,18,19
    e(f"""v_lshl_add_u32 v3, v9, 3, v10
    v_lshlrev_b32 v3, 7, v3
    v_lshrrev_b32 v4, 1, v10
    v_lshl_add_u32 v3, v4, 6, v3
    s_lshl_b32 s55, s46, 14
    v_add3_u32 v3, v3, v11, s55
    v_add_u32 v{aR}, s54, v3
    v_add_u32 v{aS}, 8192, v3
    v_xor_b32 v{bR}, 64, v{aR}
    v_xor_b32 v{bS}, 64, v{aS}
    s_mul_i32 s59, s45, {32*SP_}
    v_mul_u32_u24 v22, {SP_}, v8
    v_add_u32 v22, s59, v22
    s_lshl_b32 s60, s46, 6
    v_lshl_add_u32 v3, v9, 4, s60
    v_add_u32 v20, v22, v3
    v_sub_u32 v21, v22, v3
    v_add_u32 v21, 850, v21
    s_mov_b32 s62, s46""")
    FR=88; PA=152; QA=168; PX=184; PK=200; PS=23
    stamp(A,3)
    e('s_waitcnt vmcnt(6)\ns_barrier')
    stamp(A,4)
    e('K2A_LOOP:')
    srcs=[(aR,C,PA),(aS,S2,PA),(bS,C2,QA),(bR,S,QA)]
    seq=[(ks,q) for ks in range(4) for q in (0,2,1,3)]
    def rdA(n):
        ks,q=seq[n]
        for jj in range(2): e(f'ds_read_b64_tr_b16 {vr(FR+4*n+2*jj,2)}, v{srcs[q][0]} offset:{2048*ks+512*jj}')
    for n in range(6): rdA(n)
    for n in range(16):
        if n+6<16: rdA(n+6); e('s_waitcnt lgkmcnt(12)')
        else: e(f's_waitcnt lgkmcnt({2*(15-n)})')
        ks,q=seq[n]
        e(MF(srcs[q][2],FR+4*n,srcs[q][1]+4*ks,None if n<2 else srcs[q][2]))
    for r in (aR,aS,bS,bR): e(f'v_add_u32 v{r}, 65536, v{r}')
    e('s_nop 5\ns_cmp_eq_u32 s62, 0\ns_cbranch_scc0 K2A_NS')
    for ks in range(4):
        e(MF(PX,FR+4*(4*ks+3),C+4*ks,PX if ks else None)); e(MF(PX,FR+4*(4*ks+1),S2+4*ks,PX))
    e('s_mov_b32 exec_hi, 0')
    e(f'v_mov_b32 v{QA}, 0\nv_cvt_pk_bf16_f32 v{PS}, v{PX}, v{PX}')
    e('s_mov_b32 exec_hi, -1')
    e('K2A_NS:')
    for j in range(0,16,2):
        e(f'v_pk_add_f32 {vr(PX+j,2)}, {vr(PA+j,2)}, {vr(QA+j,2)}')
        e(f'v_pk_add_f32 {vr(PA+j,2)}, {vr(PA+j,2)}, {vr(QA+j,2)} neg_lo:[0,1] neg_hi:[0,1]')
    for j in range(8): e(f'v_cvt_pk_bf16_f32 v{PK+j}, v{PA+2*j}, v{PA+2*j+1}')
    for i in range(2):
        b=PX+8*i
        e(f'v_cvt_pk_bf16_f32 v{PK+8+4*i}, v{b+7}, v{b}\nv_cvt_pk_bf16_f32 v{PK+9+4*i}, v{b+6}, v{b+5}\nv_cvt_pk_bf16_f32 v{PK+10+4*i}, v{b+4}, v{b+3}\nv_cvt_pk_bf16_f32 v{PK+11+4*i}, v{b+2}, v{b+1}')
    e("""s_cmp_lt_u32 s62, 4
    s_cbranch_scc0 K2A_WR
    s_waitcnt vmcnt(0)
    s_barrier
    s_cmp_eq_u32 s62, 0
    s_cbranch_scc0 K2A_WR
    s_mov_b32 exec_hi, 0""")
    e(f'ds_write_b16 v20, v{PS} offset:448\ns_mov_b32 exec_hi, -1\nK2A_WR:')
    for i in range(2):
        e(f'ds_write2_b64 v20, {vr(PK+4*i,2)}, {vr(PK+4*i+2,2)} offset0:{4*i} offset1:{4*i+1}')
        o=32-32*i; r=PK+8+4*i
        e(f'ds_write_b16 v21, v{r} offset:{o}\nds_write_b32 v21, v{r+1} offset:{o+2}\nds_write_b64 v21, {vr(r+2,2)} offset:{o+6}\nds_write_b16_d16_hi v21, v{r} offset:{o+14}')
    e("""v_add_u32 v20, 256, v20
    v_subrev_u32 v21, 256, v21
    s_add_u32 s62, s62, 4
    s_cmp_lt_u32 s62, 7
    s_cbranch_scc1 K2A_LOOP""")
    stamp(A,5)
    e(f"""s_cmp_lt_u32 s{sWV}, 4
    s_cselect_b32 s50, s57, s58
    s_and_b32 s56, s{sWV}, 3
    s_lshl_b32 s56, s56, 8
    s_add_u32 s50, s50, s56
    s_mul_i32 s50, s50, 1792
    s_mul_i32 s56, s{sWV}, {8*SP_}
    v_add_u32 v4, s56, v15
    s_waitcnt lgkmcnt(0)
    s_barrier
    s_mov_b32 exec_hi, 0x00ffffff""")
    for i in range(8):
        if i%2==0 and i: e(f'v_add_u32 v4, {2*SP_}, v4')
        e(f'ds_read2_b64 {vr(24+4*i,4)}, v4 offset0:{113*(i&1)} offset1:{113*(i&1)+1}')
    for i in range(8):
        e(f's_waitcnt lgkmcnt({7-i})')
        e(f'buffer_store_dwordx4 {vr(24+4*i,4)}, v15, s[{SO}:{SO+3}], s50 offen {st}')
        e(f's_add_u32 s50, s50, {32*1792}')
    dump2(A,3)
    e('K2_END:\ns_endpgm')

def k3(A):
    e=A.e
    kk,si,role,stat,scale=[int(x) for x in OPT['x'].split(',')]
    e('k3_kernel:')
    e('s_cmp_ge_u32 s2, 1\ns_cbranch_scc1 K3_END')
    e('s_load_dwordx2 s[4:5], s[0:1], 88\nv_lshlrev_b32 v1, 6, v0\nv_mov_b32 v2, 0\nv_mov_b32 v3, -1\nv_mov_b32 v4, 0')
    e('ds_write_b32 v2, v3\nds_write_b32 v2, v4 offset:4\nds_write_b32 v2, v4 offset:8\ns_waitcnt lgkmcnt(0)\ns_barrier')
    e('s_add_u32 s8, s4, 0x800000\ns_addc_u32 s9, s5, 0\ns_mov_b32 s10, 0x20000\ns_mov_b32 s11, 0x20000')
    e(f'buffer_load_dword v5, v1, s[8:11], 0 offen\ns_mov_b32 s12, {0x10000*kk}')
    e(f'buffer_load_dword v6, v1, s[8:11], s12 offen offset:{4*si}\nbuffer_load_dword v7, v1, s[8:11], s12 offen offset:40\ns_waitcnt vmcnt(0)')
    e('ds_min_u32 v2, v5\ns_waitcnt lgkmcnt(0)\ns_barrier\nds_read_b32 v8, v2\ns_waitcnt lgkmcnt(0)\nv_sub_u32 v6, v6, v8')
    e(f'v_cmp_eq_u32 vcc, {role}, v7\nv_cndmask_b32 v6, 0, v6, vcc\nv_cndmask_b32 v9, 0, 1, vcc')
    e(('ds_max_u32 v2, v6 offset:4' if stat==0 else 'ds_add_u32 v2, v6 offset:4')+'\nds_add_u32 v2, v9 offset:8\ns_waitcnt lgkmcnt(0)\ns_barrier')
    e('ds_read_b32 v6, v2 offset:4\nds_read_b32 v9, v2 offset:8\ns_waitcnt lgkmcnt(0)')
    e(f'v_cvt_f32_u32 v6, v6\nv_mul_f32 v6, {f2u(float(scale))}, v6')
    if stat==1: e('v_cvt_f32_u32 v9, v9\nv_rcp_f32 v9, v9\nv_mul_f32 v6, v6, v9')
    e('v_cvt_u32_f32 v6, v6\nv_min_u32 v6, 100000, v6\nv_readfirstlane_b32 s14, v6')
    e('s_memrealtime s[16:17]\ns_waitcnt lgkmcnt(0)\nK3_L:\ns_memrealtime s[18:19]\ns_waitcnt lgkmcnt(0)\ns_sub_u32 s20, s18, s16\ns_cmp_lt_u32 s20, s14\ns_cbranch_scc1 K3_L')
    e('K3_END:\ns_endpgm')

def desc(name,vgpr,sgpr,acc):
    return f'''.amdhsa_kernel {name}
  .amdhsa_next_free_vgpr {vgpr}
  .amdhsa_next_free_sgpr {sgpr}
  .amdhsa_accum_offset {acc}
  .amdhsa_group_segment_fixed_size 0
  .amdhsa_kernarg_size 96
  .amdhsa_user_sgpr_count 2
  .amdhsa_user_sgpr_kernarg_segment_ptr 1
  .amdhsa_system_sgpr_workgroup_id_x 1
.end_amdhsa_kernel
'''
def main():
    A1=Asm(); k1(A1); A2=Asm(); k2(A2)
    assert A1.verify_branches()==0 and A2.verify_branches()==0
    v1=A1.maxreg('v')+1; v2=A2.maxreg('v')+1; a2=A2.maxreg('a')+1
    r4=lambda x:(x+3)//4*4
    hdr=open('concat_heads__spectral_fnet__linear_kernel_hedgehog__prompt.s.ref').read().split('; Override')[0]
    out=hdr+'; @launch kernel=k1_kernel grid=(256,1,1) block=(512,1,1) lds=163840\n; @launch kernel=k2_kernel grid=(256,1,1) block=(512,1,1) lds=131072\n'
    ks=[('k1_kernel',A1),('k2_kernel',A2)]
    if 'x' in OPT:
        A3=Asm(); k3(A3); ks.append(('k3_kernel',A3)); out+='; @launch kernel=k3_kernel grid=(1,1,1) block=(256,1,1) lds=64\n'
    out+='.amdgcn_target "amdgcn-amd-amdhsa--gfx950"\n.text\n'
    for n,A in ks:
        out+=f'.globl {n}\n.p2align 8\n.type {n},@function\n'+A.text()
    out+='.section .rodata,"a"\n.p2align 6\n'+desc('k1_kernel',v1,102,r4(v1))+'.p2align 6\n'+desc('k2_kernel',v2,102,r4(v2))
    if 'x' in OPT: out+='.p2align 6\n'+desc('k3_kernel',16,32,16)
    open(sys.argv[1],'w').write(out)
    print('k1 vgpr',v1,'k2 vgpr',v2,'agpr',a2, 'k1 sgpr',A1.maxreg('s')+1,'k2 sgpr',A2.maxreg('s')+1)
main()
```

```python
import sys, math
from asmlib import *

PHIQ_OFF=0; KV_OFF=0x400000; AINT_OFF=0x500000
LOG2E=1.4426950408889634
OPT=dict(st_phi='sc1', st_aint='sc1', st_out='', prof=0, rot=1, ldx='nt', lda='nt', D=2, apf=1, wpf=1, cpf=1, bpf=1, ob=4, eb=1)
for a in sys.argv[2:]:
    k,v=a.split('='); OPT[k]=int(v) if v.lstrip('-').isdigit() else v

def srd(A,d,base,nbytes,off=0):
    if off: A.e(f's_add_u32 s{d}, s{base}, {hex(off)}\ns_addc_u32 s{d+1}, s{base+1}, 0')
    else: A.e(f's_mov_b32 s{d}, s{base}\ns_mov_b32 s{d+1}, s{base+1}')
    A.e(f's_mov_b32 s{d+2}, {hex(nbytes)}\ns_mov_b32 s{d+3}, 0x20000')

NST=[0]
def stamp(A,i):
    if OPT.get('lp') and 1<=i<=6 and not OPT.get('k2'): return
    if OPT.get('kl') and 1<=i<=6 and OPT.get('k2'): return
    if OPT['prof']:
        A.e(f's_memrealtime s[{80+2*i}:{81+2*i}]')
        if i==0: A.e('s_memtime s[98:99]')
def dump(A,role,ws,ko):
    if not OPT['prof']: return
    NST[0]+=1; L=f'PD{NST[0]}'
    A.e(f's_memrealtime s[94:95]\ns_waitcnt vmcnt(0) lgkmcnt(0)\ns_memrealtime s[96:97]\ns_memtime s[78:79]\ns_waitcnt lgkmcnt(0)')
    A.e(f's_cmp_eq_u32 s40, {OPT.get("pw",0)}\ns_cbranch_scc0 {L}')
    A.e(f's_add_u32 s72, s{ws}, {ko}\ns_addc_u32 s73, s{ws+1}, 0\ns_mov_b32 s74, 0x10000\ns_mov_b32 s75, 0x20000\ns_mov_b64 exec, 1\ns_lshl_b32 s76, s2, 6\ns_sub_u32 s78, s78, s98')
    for i in range(9): A.e(f'v_mov_b32 v0, s{80+2*i}\nbuffer_store_dword v0, off, s[72:75], s76 offset:{4*i}')
    A.e(f'v_mov_b32 v0, s78\nbuffer_store_dword v0, off, s[72:75], s76 offset:36\nv_mov_b32 v0, {role}\nbuffer_store_dword v0, off, s[72:75], s76 offset:40')
    A.e(f'{L}:')
def dump1(A,role): dump(A,role,18,0x800000)
def dump2(A,role): dump(A,role,12,0x810000)

def MF(d,a,b,c=None):
    cc='0' if c is None else vr(c,16)
    return f'v_mfma_f32_32x32x16_bf16 {vr(d,16)}, {vr(a,4)}, {vr(b,4)}, {cc}'

def k1(A):
    e=A.e
    SX,SW,SP,SWS,SDB=20,24,28,32,36
    sWV=40
    e('k1_kernel:')
    e('s_cmp_ge_u32 s2, 256\ns_cbranch_scc1 K1_END')
    stamp(A,0)
    e('s_load_dwordx8 s[8:15], s[0:1], 40\ns_load_dwordx4 s[16:19], s[0:1], 80\ns_load_dwordx2 s[4:5], s[0:1], 0')
    e('v_and_b32 v1, 63, v0\nv_lshrrev_b32 v2, 6, v0')
    e('s_and_b32 s41, s2, 7\ns_lshr_b32 s42, s2, 3')
    e(f'v_readfirstlane_b32 s{sWV}, v2')
    e('s_cmp_ge_u32 s42, 24\ns_cbranch_scc1 K1_A')
    e('''s_and_b32 s43, s42, 1
    s_lshl_b32 s50, s41, 1
    s_add_u32 s43, s43, s50
    s_lshr_b32 s50, s42, 1
    s_and_b32 s50, s50, 7
    s_lshr_b32 s44, s42, 4
    s_add_u32 s53, s44, 1
    s_lshl_b32 s49, s50, s53''')
    vRX=10; vRW,vRB,vX0,vX1,vW,vP,vSA,vFL,vW0,vW1=14,15,16,17,18,19,20,21,22,23
    TM=24; WF=[32,48]; ACC0,ACC1=64,80; WPH=96; QB=112; EN=120; XF=144
    SLOT=24576; WBL=98304; WPL=155648
    e(f"""s_cmp_eq_u32 s44, 1
    s_cselect_b32 s46, 112, 896
    s_cselect_b32 s51, 224, 112
    s_cselect_b32 s52, 0, 896
    s_mul_i32 s45, s50, s51
    s_add_u32 s45, s45, s52
    v_lshrrev_b32 v3, 3, v1
    v_lshrrev_b32 v4, 4, v1
    v_and_b32 v5, 7, v1
    v_xor_b32 v6, v5, v4
    v_lshlrev_b32 v6, 4, v6
    v_mul_u32_u24 v7, 896, v3
    v_add_u32 v{vX0}, v7, v6
    v_xor_b32 v{vX1}, 64, v{vX0}
    v_add_u32 v{vX1}, {8*896}, v{vX1}
    v_and_b32 v4, 1, v4
    v_lshlrev_b32 v4, 2, v4
    v_xor_b32 v5, v5, v4
    v_min_u32 v5, 6, v5
    v_mul_u32_u24 v7, 2688, v3
    v_lshl_add_u32 v{vW}, v5, 4, v7
    v_lshlrev_b32 v3, 4, v0
    s_lshl_b32 s54, s43, 3
    s_add_u32 s54, s54, s{sWV}
    s_mul_i32 s54, s54, {16*896}
    s_mul_i32 s62, s{sWV}, {8*2688}
    s_add_u32 s62, s62, s45
    s_lshl_b32 s56, s{sWV}, 11
    s_lshl_b32 s61, s{sWV}, 10
    s_mul_i32 s57, s49, 1568
    s_add_u32 m0, s61, {WPL}""")
    if OPT['rot']:
        e(f"""s_min_u32 s58, s41, 6
        s_lshl_b32 s60, s58, 7
        s_add_u32 s54, s54, s60
        s_mul_i32 s55, s58, {64*2688}
        s_add_u32 s55, s55, s62""")
    else: e('s_mov_b32 s58, 0\ns_mov_b32 s55, s62')
    e('s_add_u32 s59, s55, s46\ns_mov_b32 s63, s58\ns_add_u32 s47, s62, s46')
    e('s_waitcnt lgkmcnt(0)')
    stamp(A,1)
    srd(A,SX,8,2048*896); srd(A,SW,10,448*2688); srd(A,SP,12,16*1568)
    lx=OPT['ldx']
    def issue(st):
        sl=SLOT*(st%4)
        return [f's_add_u32 m0, s56, {sl}\ns_add_u32 s58, s58, 1\nbuffer_load_dwordx4 v{vX0}, s[{SX}:{SX+3}], s54 offen {lx} lds',
                f's_add_u32 m0, s61, {sl+16384}\ns_cmp_eq_u32 s58, 7\nbuffer_load_dwordx4 v{vW}, s[{SW}:{SW+3}], s55 offen lds\ns_cselect_b32 s60, {128-896+(1<<32)}, 128\ns_cselect_b32 s55, {-64*2688*6+(1<<32)}, {64*2688}'.replace('s_cselect_b32 s55','s_cselect_b32 s64'),
                f's_add_u32 m0, s56, {sl+1024}\ns_add_u32 s55, s55, s64\nbuffer_load_dwordx4 v{vX1}, s[{SX}:{SX+3}], s54 offen {lx} lds\ns_add_u32 s54, s54, s60']
    def issueB(t):
        return [f's_add_u32 m0, s61, {WBL+8192*t}\ns_add_u32 s63, s63, 1\nbuffer_load_dwordx4 v{vW}, s[{SW}:{SW+3}], s59 offen lds\ns_add_u32 s59, s59, {64*2688}\ns_cmp_eq_u32 s63, 7\ns_cselect_b32 s59, s47, s59']
    D=OPT['D']
    e(f'buffer_load_dwordx4 v3, s[{SP}:{SP+3}], s57 offen lds')
    for st in range(D):
        for x in issue(st): e(x)
    e(f"""v_and_b32 v3, 3, v2
    v_and_b32 v4, 31, v1
    v_lshl_add_u32 v8, v3, 5, v4
    v_lshrrev_b32 v9, 5, v1
    v_bfe_u32 v5, v8, 1, 3
    v_xor_b32 v5, v5, v9
    v_lshlrev_b32 v5, 4, v5
    v_lshl_add_u32 v{vRX}, v8, 7, v5
    v_bfe_u32 v3, v1, 4, 1
    v_and_b32 v4, 3, v1
    v_lshl_add_u32 v3, v3, 2, v4
    v_min_u32 v3, 6, v3
    v_lshlrev_b32 v7, 3, v3
    v_lshrrev_b32 v2, 2, v2
    v_mad_u32_u24 v3, v2, 56, v7
    v_bfe_u32 v0, v1, 2, 2
    v_lshl_add_u32 v5, v9, 3, v0
    v_lshlrev_b32 v5, 7, v5
    v_bfe_u32 v4, v1, 3, 1
    v_lshlrev_b32 v4, 6, v4
    v_xor_b32 v6, v3, v4
    v_add_u32 v5, v5, v6
    v_add_u32 v{vRW}, 16384, v5
    v_add_u32 v{vRB}, {WBL}, v5
    v_lshl_add_u32 v4, v9, 2, v0
    v_mul_u32_u24 v4, 56, v4
    v_mul_u32_u24 v5, 1568, v2
    v_add3_u32 v3, v7, v4, v5
    v_add_u32 v{vP}, {WPL}, v3""")
    for ks in range(1,4): e(f'v_xor_b32 v{vRX+ks}, {32*ks}, v{vRX}')
    srd(A,SDB,16,256)
    e(f"""s_cmp_eq_u32 s44, 1
    s_cselect_b32 s60, {PHIQ_OFF}, {KV_OFF}
    s_cselect_b32 s{SWS+2}, {64*16*3584}, {16*3584}
    s_add_u32 s{SWS}, s18, s60
    s_addc_u32 s{SWS+1}, s19, 0
    s_mov_b32 s{SWS+3}, 0x20000
    s_and_b32 s65, s{sWV}, 3
    s_lshl_b32 s66, s43, 2
    s_add_u32 s65, s65, s66
    s_lshl_b32 s65, s65, 4
    s_lshr_b32 s66, s{sWV}, 2
    s_lshl_b32 s67, s66, 1
    s_add_u32 s65, s65, s67
    s_add_u32 s65, s65, s49
    s_mul_i32 s65, s65, 3584
    v_lshlrev_b32 v{vSA}, 4, v1
    s_mul_i32 s67, s66, 24576
    v_mul_u32_u24 v3, 192, v8
    v_bfe_u32 v4, v8, 1, 2
    v_lshlrev_b32 v5, 1, v9
    v_xor_b32 v4, v4, v5
    v_lshl_add_u32 v3, v4, 4, v3
    v_add_u32 v{vW0}, s67, v3
    v_xor_b32 v{vW1}, 16, v{vW0}
    s_mov_b32 s68, {f2u(LOG2E)}""")
    def rdW(ad,buf,off):
        return [f'ds_read_b64_tr_b16 {vr(WF[buf]+4*ks+2*jj,2)}, v{ad} offset:{off+2048*ks+512*jj}' for ks in range(4) for jj in range(2)]
    def shift():
        e(('s_memtime' if OPT.get('cyc') else 's_memrealtime')+' s[76:77]\ns_waitcnt lgkmcnt(0)')
        for i in range(1,7): e(f's_mov_b32 s{80+2*i}, s{82+2*i}')
        e('s_mov_b32 s92, s76')
    stamp(A,2)
    issued=[('p',1)]+[(k,3) for k in range(D)]
    def younger(tag):
        n=0
        for t,c in reversed(issued):
            if t==tag: return n
            n+=c
        raise
    nB=0
    for s_ in range(7):
        e(f's_waitcnt vmcnt({younger(s_)}) lgkmcnt(0)\ns_barrier')
        if s_==0: stamp(A,3)
        elif OPT.get('lp')==1: shift()
        I=[]
        if s_+D<7: I=issue(s_+D); issued.append((s_+D,3))
        k=int(str(OPT.get('bs','0000043')).zfill(7)[s_])
        for t in range(nB,nB+k): I+=issueB(t); issued.append((f'B{t}',1))
        nB+=k
        R=[]
        for ks in range(4): R+=[f'ds_read_b128 {vr(XF+16*s_+4*ks,4)}, v{vRX+ks}']+rdW(vRW,s_&1,0)[2*ks:2*ks+2]
        if s_==0: R+=[f'ds_read_b64_tr_b16 {vr(WPH+8*u+2*q,2)}, v{vP} offset:{3136*u+448*q}' for u in range(2) for q in range(4)]
        M=[MF(ACC0,WF[(s_-1)&1]+4*ks,XF+16*(s_-1)+4*ks,ACC0 if (s_>1 or ks) else None) for ks in range(4)] if s_ else []
        d=SLOT if (s_+1)%4 else -3*SLOT
        V=[f'v_add_u32 v{r}, {d&0xffffffff}, v{r}' for r in (vRX,vRX+1,vRX+2,vRX+3,vRW)] if s_<6 else []
        for i in range(4):
            if M: e(M[i])
            for x in R[i*len(R)//4:(i+1)*len(R)//4]: e(x)
            if i<len(I): e(I[i])
        for x in I[4:]: e(x)
        for x in V: e(x)
    P=ACC0; EP=ACC0
    PHR=[112+j for j in range(8)]+[136+j for j in range(4)]
    def unit(P,EN,PH,pk=1):
        U=[]
        mx,nm,t0,t1=TM,TM+1,TM+2,TM+3; EP=P
        U+=[f'v_permlane32_swap_b32 v{P+12}, v{P+14}',f'v_permlane32_swap_b32 v{P+13}, v{P+15}']
        U+=[f'v_max3_f32 v{mx}, v{P}, v{P+1}, v{P+2}',f'v_min3_f32 v{nm}, v{P}, v{P+1}, v{P+2}']
        for j in range(3,13,2): U+=[f'v_max3_f32 v{mx}, v{mx}, v{P+j}, v{P+j+1}',f'v_min3_f32 v{nm}, v{nm}, v{P+j}, v{P+j+1}']
        U+=[f'v_max_f32 v{mx}, v{mx}, v{P+13}',f'v_min_f32 v{nm}, v{nm}, v{P+13}']
        U+=[f'v_mul_f32 v{mx}, s68, v{mx}',f'v_mul_f32 v{nm}, {f2u(-LOG2E)}, v{nm}']
        U+=[f'v_permlane32_swap_b32 v{mx}, v{nm}',f'v_max_f32 v{t0}, v{mx}, v{nm}',f'v_max_f32 v{t1}, v{mx}, v{nm}',f'v_permlane32_swap_b32 v{t0}, v{t1}']
        if pk:
            for j in range(0,14,2):
                U+=[f'v_pk_fma_f32 {vr(EN+j,2)}, {vr(P+j,2)}, s[68:69], {vr(t0,2)} op_sel:[0,0,1] op_sel_hi:[1,0,1] neg_lo:[0,1,1] neg_hi:[0,1,1]',
                    f'v_pk_fma_f32 {vr(EP+j,2)}, {vr(P+j,2)}, s[68:69], {vr(t0,2)} op_sel_hi:[1,0,0] neg_lo:[0,0,1] neg_hi:[0,0,1]']
        else:
            for j in range(14): U+=[f'v_fma_f32 v{EN+j}, -v{P+j}, s68, -v{t1}',f'v_fma_f32 v{EP+j}, v{P+j}, s68, -v{t0}']
        for j in range(14): U+=[f'v_exp_f32 v{EP+j}, v{EP+j}',f'v_exp_f32 v{EN+j}, v{EN+j}']
        sp,sn=TM+4,TM+6
        if pk:
            U+=[f'v_pk_add_f32 {vr(sp,2)}, {vr(EP,2)}, {vr(EP+2,2)}',f'v_pk_add_f32 {vr(sn,2)}, {vr(EN,2)}, {vr(EN+2,2)}']
            for j in range(4,14,2): U+=[f'v_pk_add_f32 {vr(sp,2)}, {vr(sp,2)}, {vr(EP+j,2)}',f'v_pk_add_f32 {vr(sn,2)}, {vr(sn,2)}, {vr(EN+j,2)}']
            U+=[f'v_add_f32 v{mx}, v{sp}, v{sp+1}',f'v_add_f32 v{nm}, v{sn}, v{sn+1}']
        else:
            U+=[f'v_add_f32 v{mx}, v{EP}, v{EP+1}',f'v_add_f32 v{nm}, v{EN}, v{EN+1}']
            for j in range(2,14): U+=[f'v_add_f32 v{mx}, v{mx}, v{EP+j}',f'v_add_f32 v{nm}, v{nm}, v{EN+j}']
        U+=[f'v_permlane32_swap_b32 v{mx}, v{nm}',f'v_add_f32 v{t0}, v{mx}, v{nm}',f'v_rcp_f32 v{t0}, v{t0}',f'v_mov_b32 v{t1}, v{t0}',f'v_permlane32_swap_b32 v{t0}, v{t1}']
        if pk: U+=[f'v_pk_mul_f32 {vr(EP+j,2)}, {vr(EP+j,2)}, {vr(t0,2)} op_sel_hi:[1,0]' for j in range(0,14,2)]
        else: U+=[f'v_mul_f32 v{EP+j}, v{t0}, v{EP+j}' for j in range(14)]
        U+=[f'v_cvt_pk_bf16_f32 v{PH[j]}, v{EP+2*j}, v{EP+2*j+1}' for j in range(7)]
        if pk: U+=[f'v_pk_mul_f32 {vr(EN+j,2)}, {vr(EN+j,2)}, {vr(t0,2)} op_sel:[0,1] op_sel_hi:[1,1]' for j in range(0,14,2)]
        else: U+=[f'v_mul_f32 v{EN+j}, v{t1}, v{EN+j}' for j in range(14)]
        U+=[f'v_cvt_pk_bf16_f32 v{PH[7+j]}, v{EN+2*j}, v{EN+2*j+1}' for j in range(7)]
        return U
    e('s_waitcnt lgkmcnt(0)')
    for ks in range(4): e(MF(ACC0,WF[0]+4*ks,XF+96+4*ks,ACC0))
    e('v_cmp_gt_u32 vcc, 32, v1')
    for j in (6,7,14,15): e(f'v_cndmask_b32 v{WPH+j}, 0, v{WPH+j}, vcc')
    for j in range(8): e(f'v_cvt_pk_bf16_f32 v{QB+j}, v{ACC0+2*j}, v{ACC0+2*j+1}')
    e(MF(P,WPH,QB)); e(MF(P,WPH+4,QB+4,P))
    n1=OPT.get('n1',40)
    Ua=unit(P,EN,PHR+[140,141],1); Ub=unit(P,EN,PHR+[140,141],0)
    cutA=22+14; cutB=22+28
    U=Ua[:cutA]+Ub[cutB:]
    for x in U[:n1]: e(x)
    e(f's_waitcnt vmcnt({younger("B2")})\ns_barrier')
    stamp(A,4)
    if OPT.get('oc'): e('s_memtime s[82:83]')
    for x in rdW(vRB,1,0)+rdW(vRB,0,8192): e(x)
    gaps=[1]*27+[0]
    cost=lambda x: 2.0 if x.startswith(('v_exp','v_rcp')) else 1.0
    tot=sum(gaps); k=n1; acc=0; ctot=sum(cost(x) for x in U[n1:]); cdone=0
    for t in range(7):
        e('s_waitcnt lgkmcnt(%d)'%(8 if t<6 else 0))
        for ks in range(4):
            e(MF(ACC1,WF[(t+1)&1]+4*ks,XF+16*t+4*ks,ACC1 if (t or ks) else None))
            if ks==3 and t+2<7:
                if t==1: e('s_waitcnt vmcnt(0)\ns_barrier'); e(f'buffer_load_dword v{vFL}, off, s[{SDB}:{SDB+3}], 0 sc1')
                for x in rdW(vRB,(t+1)&1,8192*(t+2)): e(x)
            acc+=gaps[4*t+ks]
            while k<len(U) and cdone<ctot*acc/tot-1e-9: e(U[k]); cdone+=cost(U[k]); k+=1
    assert k==len(U)
    stamp(A,5)
    if OPT.get('oc'): e('s_memtime s[84:85]')
    e('s_cmp_eq_u32 s44, 0\ns_cbranch_scc1 K1_KV')
    st=OPT['st_phi']
    for c,r in enumerate((112,116,136)): e(f'buffer_store_dwordx4 {vr(r,4)}, v{vSA}, s[{SWS}:{SWS+3}], s65 offen offset:{1024*c} {st}')
    e('s_add_u32 s65, s65, 3072')
    Q2=144; P2=160; E2=176; H2=192
    for j in range(8): e(f'v_cvt_pk_bf16_f32 v{Q2+j}, v{ACC1+2*j}, v{ACC1+2*j+1}')
    e(MF(P2,WPH+8,Q2)); e(MF(P2,WPH+12,Q2+4,P2))
    for x in unit(P2,E2,[H2+j for j in range(12)]+[142,143]): e(x)
    for c in range(3): e(f'buffer_store_dwordx4 {vr(H2+4*c,4)}, v{vSA}, s[{SWS}:{SWS+3}], s65 offen offset:{1024*c} {st}')
    e(f'buffer_store_dwordx4 v[140:143], v{vSA}, s[{SWS}:{SWS+3}], s65 offen offset:3072 {st}')
    if OPT.get('ppf'):
        e(f'''v_lshlrev_b32 v3, 7, v1
        s_sub_u32 s65, s65, 3072
        s_mov_b32 exec_hi, 0x00ffffff
        s_waitcnt vmcnt(0)
        buffer_load_dword v4, v3, s[{SWS}:{SWS+3}], s65 offen''')
    dump1(A,2)
    e('s_endpgm')
    e('K1_KV:')
    T2=144
    e(f"""ds_write_b128 v{vW0}, v[112:115]
    ds_write_b128 v{vW1}, v[116:119]
    ds_write_b128 v{vW0}, v[136:139] offset:64
    ds_write_b64 v{vW1}, v[140:141] offset:64
    v_mov_b32 v3, 0x3f80""")
    e(f"""s_lshr_b32 s66, s{sWV}, 1
    s_and_b32 s67, s{sWV}, 1
    s_mul_i32 s65, s66, 24576
    s_lshl_b32 s68, s67, 6
    s_nop 0""")
    for j in range(8): e(f'v_cvt_pk_bf16_f32 v{T2+j}, v{ACC1+2*j}, v{ACC1+2*j+1}')
    e(f"""v_cndmask_b32 v{T2+6}, v3, v{T2+6}, vcc
    v_cndmask_b32 v{T2+7}, v3, v{T2+7}, vcc
    ds_write_b128 v{vW0}, {vr(T2,4)} offset:128
    v_permlane32_swap_b32 v{T2+6}, v{T2+7}
    ds_write_b128 v{vW1}, {vr(T2+4,4)} offset:128
    v_lshl_add_u32 v4, v9, 3, v0
    v_mul_u32_u24 v4, 192, v4
    v_and_b32 v5, 1, v1
    v_bfe_u32 v6, v1, 4, 1
    v_lshl_add_u32 v5, v5, 1, v6
    v_lshrrev_b32 v3, 1, v0
    v_xor_b32 v5, v5, v3
    v_lshl_add_u32 v4, v5, 4, v4
    v_bfe_u32 v5, v1, 1, 1
    v_lshl_add_u32 v4, v5, 3, v4
    v_add_u32 v4, s65, v4
    v_xor_b32 v5, 32, v4
    v_add_u32 v6, s68, v4
    v_add_u32 v7, s68, v5
    s_and_b32 s65, s50, 2
    s_add_u32 s65, s65, s66
    s_lshl_b32 s65, s65, 1
    s_lshr_b32 s68, s50, 2
    s_add_u32 s65, s65, s68
    s_lshl_b32 s65, s65, 1
    s_and_b32 s68, s50, 1
    s_add_u32 s65, s65, s68
    s_mul_i32 s65, s65, 3584
    s_lshl_b32 s68, s67, 11
    s_add_u32 s65, s65, s68
    v_lshlrev_b32 v3, 2, v1
    s_mov_b32 s70, 0""")
    e('s_waitcnt lgkmcnt(0)\ns_barrier')
    stamp(A,6)
    if OPT.get('pw',0)>=4:
        e(f's_cmp_ge_u32 s{sWV}, 4\ns_cbranch_scc0 K1_KV2'); dump1(A,1); e('s_endpgm\nK1_KV2:')
    e(f's_cmp_ge_u32 s{sWV}, 4\ns_cbranch_scc1 K1_END')
    FA,FB,KA=160,192,224
    for ks in range(8):
        e(f'ds_read_b64_tr_b16 {vr(FA+4*ks,2)}, v6 offset:{3072*ks}')
        e(f'ds_read_b64_tr_b16 {vr(FA+4*ks+2,2)}, v7 offset:{3072*ks+768}')
        e(f'ds_read_b64_tr_b16 {vr(FB+4*ks,2)}, v4 offset:{3072*ks+128}')
        e(f'ds_read_b64_tr_b16 {vr(FB+4*ks+2,2)}, v5 offset:{3072*ks+768+128}')
        if ks>=2:
            e('s_waitcnt lgkmcnt(8)'); e(MF(KA,FA+4*(ks-2),FB+4*(ks-2),KA if ks>2 else None))
    e('s_waitcnt lgkmcnt(4)'); e(MF(KA,FA+24,FB+24,KA))
    e('s_waitcnt lgkmcnt(0)'); e(MF(KA,FA+28,FB+28,KA))
    e('K1_POLL:\ns_waitcnt vmcnt(0)')
    e(f'v_readfirstlane_b32 s69, v{vFL}')
    e('s_cmp_ge_u32 s69, 64\ns_cbranch_scc1 K1_GO\ns_add_u32 s70, s70, 1\ns_cmp_ge_u32 s70, 0x40000\ns_cbranch_scc1 K1_GO\ns_sleep 2')
    e(f'buffer_load_dword v{vFL}, off, s[{SDB}:{SDB+3}], 0 sc1')
    e('s_branch K1_POLL\nK1_GO:\ns_nop 7')
    for j in range(6):
        e(f'v_cvt_pk_bf16_f32 v{FA+j}, v{KA+2*j}, v{KA+2*j+1}')
        e(f'buffer_atomic_pk_add_bf16 v{FA+j}, v3, s[{SWS}:{SWS+3}], s65 offen offset:{256*j}')
    e('s_cmp_eq_u32 s67, 1\ns_cbranch_scc1 K1_END')
    for j in range(6,8):
        e(f'v_cvt_pk_bf16_f32 v{FA+j}, v{KA+2*j}, v{KA+2*j+1}')
        e(f'buffer_atomic_pk_add_bf16 v{FA+j}, v3, s[{SWS}:{SWS+3}], s65 offen offset:{256*j}')
    dump1(A,1)
    e('s_endpgm')
    e('K1_A:')
    e(f"""s_lshl_b32 s43, s41, 3
    s_add_u32 s43, s43, s42
    s_sub_u32 s43, s43, 24
    v_lshlrev_b32 v3, 4, v1
    v_lshlrev_b32 v17, 7, v1""")
    if OPT['cpf']:
        e(f"""s_cmp_eq_u32 s{sWV}, 6
        s_cbranch_scc0 K1A_H1
        s_getpc_b64 s[44:45]
        K1_PC:
        s_sub_u32 s44, s44, K1_PC-k1_kernel
        s_subb_u32 s45, s45, 0
        global_load_dword v18, v17, s[44:45]
        global_load_dword v18, v17, s[44:45] offset:4032
        K1A_H1:""".replace("global_load_dword v18, v17, s[44:45] offset:4032\n","s_add_u32 s44, s44, 8192\ns_addc_u32 s45, s45, 0\nglobal_load_dword v18, v17, s[44:45]\n"))
    e(f"""s_lshl_b32 s44, s{sWV}, 8
    s_add_u32 s44, s44, s43
    s_mul_i32 s44, s44, 896
    s_mul_i32 s45, s{sWV}, {4*960}
    s_lshl_b32 s46, s43, 2
    s_add_u32 s46, s46, s{sWV}
    s_mul_i32 s46, s46, {56*128}
    s_mul_i32 s47, s43, 896
    s_mov_b32 m0, s45
    s_mov_b32 exec_hi, 0x00ffffff
    s_waitcnt lgkmcnt(0)""")
    stamp(A,1)
    if OPT['apf']:
        srd(A,SW,8,2048*896)
        e(f's_cmp_lt_u32 s{sWV}, 4\ns_cbranch_scc0 K1A_H2\nbuffer_load_dword v18, v17, s[{SW}:{SW+3}], s46 offen {lx}\nK1A_H2:')
    e(f's_cmp_eq_u32 s{sWV}, 7\ns_cbranch_scc0 K1A_H3')
    srd(A,SWS,18,16*3584,KV_OFF); srd(A,SDB,16,256)
    e(f"""v_mov_b64 v[12:13], 0
    v_mov_b64 v[14:15], 0
    v_mov_b32 v16, 1
    buffer_store_dwordx4 v[12:15], v3, s[{SWS}:{SWS+3}], s47 offen sc1
    s_waitcnt vmcnt(0)
    s_mov_b64 exec, 1
    buffer_atomic_add v16, off, s[{SDB}:{SDB+3}], 0 sc1
    s_mov_b32 exec_lo, -1
    s_mov_b32 exec_hi, 0x00ffffff
    K1A_H3:""")
    srd(A,SX,4,2048*896)
    for i in range(4):
        if i: e(f's_add_u32 m0, s45, {960*i}\ns_add_u32 s44, s44, {64*896}')
        e(f'buffer_load_dwordx4 v3, s[{SX}:{SX+3}], s44 offen {OPT["lda"]} lds')
    if OPT.get('bpf'):
        srd(A,SW,10,448*2688)
        e(f'''s_mov_b32 exec_hi, -1
        v_mul_u32_u24 v19, 37, v1
        v_lshrrev_b32 v19, 8, v19
        v_mul_u32_u24 v4, {2688-7*128}, v19
        v_add_u32 v19, v4, v17
        s_sub_u32 s46, s42, 24
        s_lshl_b32 s46, s46, 3
        s_add_u32 s46, s46, s{sWV}
        s_mul_i32 s46, s46, {7*2688}
        s_add_u32 s46, s46, 1792
        s_mov_b32 exec_hi, 0x1ffff
        buffer_load_dword v18, v19, s[{SW}:{SW+3}], s46 offen''')
        if OPT['bpf']==2:
            e(f's_sub_u32 s46, s46, 896\nbuffer_load_dword v18, v19, s[{SW}:{SW+3}], s46 offen')
    VL=32768; OL=73728
    e('s_mov_b32 exec_hi, -1\nv_and_b32 v8, 31, v1\nv_lshrrev_b32 v9, 5, v1')
    e(f'''v_mul_u32_u24 v10, {8*2560}, v9
    v_mul_u32_u24 v16, 80, v8
    v_add_u32 v10, v16, v10
    v_lshl_add_u32 v10, v2, 3, v10
    v_add_u32 v10, {VL}, v10''')
    FF=20; HH=28; CP=32; SPn=40; A2=48; B2=56; TT=64
    e(f'''v_lshrrev_b32 v4, 1, v8
    v_and_b32 v5, 1, v8
    v_cvt_f32_u32 v5, v5
    v_mul_f32 v5, {f2u(-0.25)}, v5
    v_cmp_eq_u32 vcc, 1, v8
    v_cndmask_b32 v4, v4, 16, vcc
    v_cndmask_b32 v5, v5, 0, vcc
    v_cvt_f32_u32 v4, v4
    v_mul_f32 v4, {f2u(1/32)}, v4
    v_cvt_f32_u32 v11, v9
    v_mul_f32 v12, 4.0, v11
    v_add_f32 v11, v12, v12
    v_fma_f32 v5, v4, v11, v5''')
    for ks in range(2):
        for j in range(8): e(f'v_fmamk_f32 v{TT+8*ks+j}, v4, {f2u(16.*ks+j)}, v5')
    for j in range(16): e(f'v_cos_f32 v{TT+j}, v{TT+j}')
    for j in range(8): e(f'v_cvt_pk_bf16_f32 v{FF+j}, v{TT+2*j}, v{TT+2*j+1}')
    e(f'''v_bfe_u32 v4, v8, 2, 1
    v_bfe_u32 v5, v8, 3, 1
    v_lshl_add_u32 v4, v4, 1, v5
    v_bfe_u32 v5, v8, 1, 1
    v_lshl_add_u32 v4, v4, 1, v5
    v_and_b32 v5, 1, v8
    v_cvt_f32_u32 v5, v5
    v_mul_f32 v5, {f2u(-0.25)}, v5
    v_and_b32 v6, 15, v8
    v_cmp_eq_u32 vcc, 1, v6
    v_cndmask_b32 v4, v4, 8, vcc
    v_cndmask_b32 v5, v5, 0, vcc
    v_cvt_f32_u32 v4, v4
    v_mul_f32 v4, {f2u(1/16)}, v4
    v_fma_f32 v5, v4, v12, v5''')
    for j in range(8): e(f'v_fmamk_f32 v{TT+j}, v4, {f2u(8.*(j>>2)+(j&3))}, v5')
    for j in range(8): e(f'v_cos_f32 v{TT+j}, v{TT+j}')
    for j in range(4): e(f'v_cvt_pk_bf16_f32 v{HH+j}, v{TT+2*j}, v{TT+2*j+1}')
    e(f'''s_cmp_eq_u32 s{sWV}, 0
    s_cselect_b32 s47, 8, s{sWV}
    s_sub_u32 s48, 0, s47
    v_lshrrev_b32 v4, 2, v8
    v_lshlrev_b32 v4, 5, v4
    v_and_b32 v5, 3, v8
    v_add_u32 v5, 1, v5
    v_lshrrev_b32 v5, 1, v5
    v_lshl_add_u32 v4, v5, 4, v4
    v_and_b32 v5, 1, v8
    v_cmp_eq_u32 vcc, 1, v5
    v_mov_b32 v6, s48
    v_cndmask_b32 v6, v2, v6, vcc
    v_add_u32 v4, v4, v6
    v_cvt_f32_u32 v4, v4
    v_mul_f32 v4, {f2u(1/448)}, v4
    v_mul_f32 v5, v4, v11''')
    for ks in range(2):
        for j in range(8): e(f'v_fmamk_f32 v{TT+8*ks+j}, v4, {f2u(16.*ks+j)}, v5')
    for j in range(16): e(f'v_sin_f32 v{TT+16+j}, v{TT+j}\nv_cos_f32 v{TT+j}, v{TT+j}')
    for j in range(8): e(f'v_cvt_pk_bf16_f32 v{CP+j}, v{TT+2*j}, v{TT+2*j+1}\nv_cvt_pk_bf16_f32 v{SPn+j}, v{TT+16+2*j}, v{TT+16+2*j+1}')
    e(f's_cmp_eq_u32 s{sWV}, 0\ns_cbranch_scc1 K1A_SPEC')
    e('''v_mov_b32 v4, 0x80008000
    v_cndmask_b32 v5, v4, 0, vcc
    v_cndmask_b32 v6, 0, v4, vcc''')
    for j in range(8): e(f'v_xor_b32 v{A2+j}, v5, v{SPn+j}\nv_xor_b32 v{B2+j}, v6, v{CP+j}')
    e('s_branch K1A_ST1\nK1A_SPEC:')
    for j in range(8):
        e(f'''v_cndmask_b32 v{A2+j}, 0, v{CP+j}, vcc
        v_cndmask_b32 v{B2+j}, 0, v{SPn+j}, vcc
        v_cndmask_b32 v{CP+j}, v{CP+j}, 0, vcc
        v_cndmask_b32 v{SPn+j}, v{SPn+j}, 0, vcc''')
    e('v_mov_b32 v4, 0xbf803f80\nv_cmp_eq_u32 vcc, 0, v8')
    for j in range(8): e(f'v_cndmask_b32 v{SPn+j}, v{SPn+j}, v4, vcc')
    e('K1A_ST1:')
    XA=64; BO=80; U0=96; U1=112; VU=96
    e(f'''v_bfe_u32 v4, v1, 2, 2
    v_lshl_add_u32 v4, v9, 3, v4
    v_mul_u32_u24 v4, 960, v4
    v_and_b32 v5, 1, v1
    v_bfe_u32 v6, v1, 4, 1
    v_lshl_add_u32 v5, v5, 1, v6
    v_bfe_u32 v6, v1, 1, 1
    v_lshl_add_u32 v5, v5, 1, v6
    v_mad_u32_u24 v4, v5, 56, v4
    v_lshl_add_u32 v4, v2, 3, v4
    v_mul_u32_u24 v13, 5120, v2
    v_add_u32 v13, v16, v13
    v_lshl_add_u32 v13, v9, 4, v13
    v_add_u32 v13, {VL}, v13
    v_mul_u32_u24 v14, 1032, v8
    v_lshl_add_u32 v14, v9, 7, v14
    v_add_u32 v14, {OL}, v14
    s_lshl_b32 s48, s48, 1
    v_add_u32 v15, s48, v14
    v_lshl_add_u32 v14, v2, 1, v14''')
    for r in range(8): e(f'v_mov_b64 {vr(XA+2*r,2)}, 0')
    stamp(A,3)
    e('s_waitcnt vmcnt(0)\ns_barrier')
    stamp(A,4)
    e(f's_cmp_eq_u32 s{sWV}, 7\ns_cbranch_scc1 K1A_VW')
    for dh in range(2):
        for ks in range(2):
            for jj in range(2):
                e(f'ds_read_b64_tr_b16 {vr(XA+8*dh+4*ks+2*jj,2)}, v4 offset:{15360*ks+3840*jj+448*dh}')
    e('s_waitcnt lgkmcnt(4)')
    e(MF(U0,XA,FF)); e(MF(U0,XA+4,FF+4,U0))
    e('s_waitcnt lgkmcnt(0)')
    e(MF(U1,XA+8,FF)); e(MF(U1,XA+12,FF+4,U1))
    for u in range(4):
        e(f'v_cvt_pk_bf16_f32 v{BO+4*u}, v{U0+u}, v{U0+4+u}\nv_cvt_pk_bf16_f32 v{BO+4*u+1}, v{U0+8+u}, v{U0+12+u}')
    for u in range(4):
        e(f'v_cvt_pk_bf16_f32 v{BO+4*u+2}, v{U1+u}, v{U1+4+u}\nv_cvt_pk_bf16_f32 v{BO+4*u+3}, v{U1+8+u}, v{U1+12+u}')
    for u in range(4): e(MF(VU+16*u,HH,BO+4*u))
    for r in range(8): e(f'v_cvt_pk_bf16_f32 v{XA+2*r}, v{VU+r}, v{VU+16+r}')
    for r in range(8): e(f'v_cvt_pk_bf16_f32 v{XA+2*r+1}, v{VU+32+r}, v{VU+48+r}')
    e('K1A_VW:')
    for r in range(8): e(f'ds_write_b64 v10, {vr(XA+2*r,2)} offset:{2560*r}')
    e('s_waitcnt lgkmcnt(0)\ns_barrier')
    for ks in range(4): e(f'ds_read_b128 {vr(XA+4*ks,4)}, v13 offset:{32*(ks&1)+2560*(ks>>1)}')
    GA=[CP,CP+4,A2,A2+4]; GB=[SPn,SPn+4,B2,B2+4]
    for ks in range(4):
        e(f's_waitcnt lgkmcnt({3-ks})')
        e(MF(U0,GA[ks],XA+4*ks,U0 if ks else None)); e(MF(U1,GB[ks],XA+4*ks,U1 if ks else None))
    stamp(A,5)
    srd(A,SWS,18,2<<20,AINT_OFF)
    for (U,ab) in ((U0,0),(U1,64)):
        for j in range(8): e(f'v_cvt_pk_bf16_f32 v{BO+(ab>>3)+j}, v{U+2*j}, v{U+2*j+1}')
        for a in range(4):
            r=BO+(ab>>3)+2*a
            e(f'''ds_write_b16 v14, v{r} offset:{256*a+ab}
            ds_write_b16_d16_hi v15, v{r} offset:{256*a+32+ab}
            ds_write_b16 v14, v{r+1} offset:{256*a+32+ab}
            ds_write_b16_d16_hi v15, v{r+1} offset:{256*a+64+ab}''')
    e(f'''s_mul_i32 s45, s{sWV}, {4*1032}
    s_add_u32 s45, s45, {OL}
    v_add_u32 v4, s45, v3
    v_add_u32 v5, 2064, v4
    s_lshl_b32 s44, s{sWV}, 8
    s_add_u32 s44, s44, s43
    s_lshl_b32 s44, s44, 10
    v_lshlrev_b32 v6, 7, v1
    s_waitcnt lgkmcnt(0)
    s_barrier
    s_mov_b32 exec_hi, 0x00ffffff''')
    for i in range(4): e(f'ds_read2_b64 {vr(XA+4*i,4)}, v{4+(i>>1)} offset0:{129*(i&1)} offset1:{129*(i&1)+1}')
    st=OPT['st_aint']
    for i in range(4):
        e(f's_waitcnt lgkmcnt({3-i})')
        e(f'buffer_store_dwordx4 {vr(XA+4*i,4)}, v3, s[{SWS}:{SWS+3}], s44 offen {st}')
        e(f's_add_u32 s44, s44, 65536')
    if OPT['wpf']:
        srd(A,SW,14,448*896)
        e(f'''s_cmp_eq_u32 s{sWV}, 7
        s_cbranch_scc1 K1A_CP
        s_sub_u32 s46, s42, 24
        s_mul_i32 s46, s46, 7
        s_add_u32 s46, s46, s{sWV}
        s_mul_i32 s46, s46, {56*128}
        buffer_load_dword v7, v6, s[{SW}:{SW+3}], s46 offen
        s_branch K1A_E
        K1A_CP:
        s_mov_b32 exec_hi, -1
        s_getpc_b64 s[44:45]
        K1_PC2:
        s_add_u32 s44, s44, k2_kernel-K1_PC2
        s_addc_u32 s45, s45, 0
        global_load_dword v7, v6, s[44:45]
        K1A_E:''')
    dump1(A,3)
    e('K1_END:\ns_endpgm')

def k2(A):
    e=A.e
    OPT['k2']=1
    SD,SPH,SO=20,24,28
    sWV=40
    e('k2_kernel:')
    e('s_cmp_ge_u32 s2, 256\ns_cbranch_scc1 K2_END')
    stamp(A,0)
    e('s_load_dwordx4 s[8:11], s[0:1], 64\ns_load_dwordx2 s[12:13], s[0:1], 88')
    e('v_and_b32 v1, 63, v0\nv_lshrrev_b32 v2, 6, v0')
    e('s_and_b32 s41, s2, 7\ns_lshr_b32 s42, s2, 3')
    e(f'v_readfirstlane_b32 s{sWV}, v2')
    e('''v_bfe_u32 v3, v1, 4, 1
    v_and_b32 v4, 7, v1
    v_lshlrev_b32 v5, 2, v3
    v_xor_b32 v4, v4, v5
    v_lshlrev_b32 v12, 4, v4
    v_lshrrev_b32 v13, 3, v1
    v_lshlrev_b32 v15, 4, v1''')
    LANE='''v_and_b32 v8, 31, v1
    v_lshrrev_b32 v9, 5, v1
    v_bfe_u32 v10, v1, 2, 2
    v_bfe_u32 v3, v1, 4, 1
    v_and_b32 v4, 1, v1
    v_lshl_add_u32 v4, v3, 1, v4
    v_bfe_u32 v5, v1, 1, 1
    v_lshl_add_u32 v4, v4, 1, v5
    v_lshlrev_b32 v11, 3, v4'''
    e('s_cmp_ge_u32 s42, 28\ns_cbranch_scc1 K2_A')
    e(f'''s_lshr_b32 s44, s42, 2
    s_and_b32 s45, s{sWV}, 1
    s_bfe_u32 s46, s{sWV}, 0x10001
    s_cmp_ge_u32 s{sWV}, 4
    s_cbranch_scc0 K2_C''')
    e(f"""v_mul_u32_u24 v3, 896, v13
    v_add_u32 v14, v3, v12
    v_lshrrev_b32 v4, 5, v1
    v_mul_u32_u24 v4, {28*896}, v4
    v_add_u32 v16, v14, v4
    s_and_b32 s50, s{sWV}, 3
    s_lshl_b32 s50, s50, 10
    s_mul_i32 s48, s45, {224*896}
    s_lshl_b32 s49, s44, 7
    s_add_u32 s48, s48, s49
    s_mul_i32 s49, s45, 28672
    s_add_u32 s49, s49, 57344
    s_mov_b32 m0, s50
    s_waitcnt lgkmcnt(0)""")
    srd(A,SD,12,16*3584,KV_OFF)
    if OPT.get('kvrot'):
        e(f's_mul_i32 s51, s42, {OPT["kvrot"]*4096}\ns_add_u32 s50, s50, s51\nK2_RW:\ns_cmp_ge_u32 s50, 57344\ns_cbranch_scc0 K2_RX\ns_sub_u32 s50, s50, 57344\ns_branch K2_RW\nK2_RX:')
    for n in range(14 if not OPT.get('nokv') else 0):
        e(f'buffer_load_dwordx4 v15, s[{SD}:{SD+3}], s50 offen lds\ns_add_u32 m0, m0, 4096\ns_add_u32 s50, s50, 4096')
        if OPT.get('kvrot'): e('s_cmp_ge_u32 s50, 57344\ns_cselect_b32 s51, 57344, 0\ns_sub_u32 s50, s50, s51')
    srd(A,SPH,8,448*896)
    e('s_cmp_eq_u32 s46, 0\ns_cbranch_scc0 K2_L1')
    HYB=OPT.get('hyb',0); W0=OPT.get('w0',0); W1=OPT.get('w1',0)
    for par in range(2):
        js=(0,2,4,6) if par==0 else (1,3,5); nj=len(js)
        for st_ in range(5):
            if st_==W0: e(f's_waitcnt vmcnt({(0 if OPT.get("nob1") else 7)+W0*nj})\ns_barrier')
            if st_==W1 and not OPT.get('nob1'): e(f's_waitcnt vmcnt({W1*nj})\ns_barrier')
            if st_==4: break
            for j in (js if not OPT.get('nowo') else ()):
                row=112*(st_>>1)+28*(st_&1)+8*j+(28 if j>3 else 0)
                e(f's_add_u32 m0, s49, {7168*st_+1024*j}\ns_add_u32 s50, s48, {row*896}\nbuffer_load_dwordx4 v{16 if j==3 else 14}, s[{SPH}:{SPH+3}], s50 offen lds')
        OB=OPT.get('ob',4)
        for c in ((2,1,0) if HYB else {4:(3,2,1,0),2:(2,0),1:(0,)}[OB]): e(f's_waitcnt vmcnt({nj*c})\ns_barrier')
        e('s_endpgm')
        if par==0: e('K2_L1:')
    e('K2_C:')
    if OPT.get('prio'): e('s_setprio 3')
    e(f'''s_and_b32 s43, s42, 3
    s_lshl_b32 s41, s41, 2
    s_add_u32 s43, s43, s41
    s_lshl_b32 s51, s43, 1
    s_add_u32 s51, s51, s45
    s_lshl_b32 s52, s51, 4
    s_lshl_b32 s53, s46, 3
    s_add_u32 s52, s52, s53
    s_mul_i32 s52, s52, 3584
    s_add_u32 s57, s52, 4096
    s_waitcnt lgkmcnt(0)''')
    stamp(A,1)
    srd(A,SPH,12,64*16*3584,PHIQ_OFF)
    PHI=144; vF16=16
    e('v_mov_b32 v16, v15')
    def loads(s):
        L=[]
        for n in range(7):
            x=f'buffer_load_dwordx4 {vr(PHI+28*s+4*n,4)}, v{vF16}, s[{SPH}:{SPH+3}], s{52 if n<4 else 57} offen offset:{1024*(n&3)}'
            if n==6: x+='\ns_add_u32 s52, s52, 7168\ns_add_u32 s57, s57, 7168'
            L.append(x)
        return L
    NUP=OPT.get('nup',1)
    for s_ in range(NUP):
        for x in loads(s_): e(x)
    srd(A,SO,10,2048*1792)
    e(LANE)
    vK,vN0,vN1,vS0,vS1=17,18,19,20,21
    e(f"""s_mul_i32 s53, s46, 7168
    v_lshlrev_b32 v3, 2, v1
    v_add_u32 v{vK}, s53, v3
    s_mul_i32 s53, s46, 28672
    s_add_u32 s53, s53, 57344
    v_lshl_add_u32 v3, v9, 2, v10
    v_lshlrev_b32 v3, 7, v3
    v_lshrrev_b32 v4, 1, v10
    v_lshl_add_u32 v3, v4, 6, v3
    v_add3_u32 v{vN0}, v3, v11, s53
    v_xor_b32 v{vN1}, 64, v{vN0}
    v_lshlrev_b32 v3, 1, v9
    v_xor_b32 v3, v3, v10
    v_lshrrev_b32 v4, 1, v3
    v_lshlrev_b32 v3, 7, v3
    v_lshl_add_u32 v3, v4, 6, v3
    v_add3_u32 v{vS0}, v3, v11, s53
    v_xor_b32 v{vS1}, 64, v{vS0}
    s_lshl_b32 s53, s{sWV}, 12
    s_add_u32 s53, s53, 114688
    v_add_u32 v6, s53, v{vF16}
    s_xor_b32 s53, s53, 8192
    v_add_u32 v7, s53, v{vF16}
    s_lshl_b32 s51, s51, 5
    v_add_u32 v5, s51, v8
    v_mul_u32_u24 v5, 1792, v5
    v_lshl_add_u32 v5, v9, 4, v5
    s_lshl_b32 s54, s44, 7
    s_lshl_b32 s55, s46, 6
    s_add_u32 s54, s54, s55
    s_add_u32 s54, s54, 896""")
    KF=[24,40]; NUM=[72,88]; OUT=[112,128]
    OPH=[104,8,PHI,PHI+8,PHI+16,PHI+28,PHI+36,PHI+44]
    WFB=[56,24,40,72]
    e(f'v_mov_b64 {vr(KF[0]+14,2)}, 0\nv_mov_b64 {vr(KF[1]+12,2)}, 0')
    e(f's_mov_b32 s56, {f2u(1e-6)}')
    def rdkv(hl):
        o=56*(hl>>1)+14*(hl&1)
        return [f'ds_read2st64_b32 {vr(KF[hl&1]+2*p+(2 if (p==6 and hl&1) else 0),2)}, v{vK} offset0:{o+2*p} offset1:{o+2*p+1}' for p in range(7)]
    def rdwo(hl):
        L=[]; WFR=WFB[hl&3] if (hl>=4 or not HYB) else 56
        for q in range(4):
            for mt in range(2):
                if q<3: L.append(f'ds_read_b64_tr_b16 {vr(WFR+8*mt+2*q,2)}, v{(vN0,vN1)[mt]} offset:{3584*hl+1024*q}')
                else: L.append(f'ds_read_b64_tr_b16 {vr(WFR+8*mt+6,2)}, v{(vS0,vS1)[mt]} offset:{3584*hl+3072}')
        return L
    def num(hl):
        base=PHI+28*(hl>>1)
        ph=[base+12*(hl&1)+4*s for s in range(3)]+[base+24]
        return [MF(NUM[hl&1],KF[hl&1]+4*s,ph[s],NUM[hl&1] if s else None) for s in range(4)]
    def fin(hl):
        N=NUM[hl&1]; OP=OPH[hl]
        L=[f'v_add_f32 v22, s56, v{N+14}','v_rcp_f32 v22, v22',f'v_mov_b32 v{OP+7}, 0']
        for j in range(7): L+=[f'v_mul_f32 v{N+2*j}, v22, v{N+2*j}',f'v_mul_f32 v{N+2*j+1}, v22, v{N+2*j+1}']
        L+=[f'v_cvt_pk_bf16_f32 v{OP+j}, v{N+2*j}, v{N+2*j+1}' for j in range(7)]
        return L
    def outm(hl):
        OP=OPH[hl]; WFR=WFB[hl&3] if (hl>=4 or not HYB) else 56
        return [MF(OUT[mt],WFR+8*mt+4*sp,OP+4*sp,None if (hl==0 and sp==0) else OUT[mt]) for sp in range(2) for mt in range(2)]
    if OPT.get('ldonly'):
        stamp(A,3); e('s_waitcnt vmcnt(0)'); stamp(A,4); e('s_barrier\ns_barrier'); stamp(A,5); e('s_barrier\ns_barrier\ns_barrier\ns_barrier'); dump2(A,1); e('s_endpgm')
    e('s_barrier')
    stamp(A,3)
    for x in rdkv(0): e(x)
    later=[(s_,x) for s_ in range(NUP,4) for x in loads(s_)]
    nld=[int(c) for c in str(OPT.get('nld','77700000' if NUP==1 else '77000000')).zfill(8)]
    vm=[s_ for s_ in range(NUP) for _ in range(7)]
    for h in range(8):
        Ld=[later.pop(0) for _ in range(nld[h])]
        w='s_waitcnt lgkmcnt(0)'
        if h%2==0: w+=' vmcnt(%d)'%sum(1 for t in vm if t>h//2)
        if OPT.get('kl')==2 and 1<=h-OPT.get('k0',0)<=6: e(f's_memtime s[{80+2*(h-OPT.get("k0",0))}:{81+2*(h-OPT.get("k0",0))}]')
        e(w)
        if OPT.get('kl')==1 and 1<=h-OPT.get('k0',0)<=6: e(f's_memtime s[{80+2*(h-OPT.get("k0",0))}:{81+2*(h-OPT.get("k0",0))}]')
        N=num(h); Fv=fin(h-1) if h else []
        K=rdkv(h+1) if h<7 else []
        if h==3 and not OPT.get('nob1'): K=['s_barrier']+K
        if h==7 and OPT.get('eb'): K=['s_barrier']+rdwo(0)
        nF=len(Fv)
        if h<4 or not HYB:
            gap=[K[:4]+Fv[:3],K[4:]+Fv[3:3+(nF-3)//4],Fv[3+(nF-3)//4:3+(nF-3)*5//8],Fv[3+(nF-3)*5//8:]]
        else:
            W=rdwo(h-4)
            if h==4: W=['s_barrier']+W
            gap=[W+Fv[:2],Fv[2:8],Fv[8:12]+K[:3],K[3:],Fv[12:16],Fv[16:20],Fv[20:],[]]
            N=N+outm(h-4)
        for i in range(len(N)):
            if i==4: e('s_waitcnt lgkmcnt(%d)'%len(K))
            e(N[i])
            for x in gap[i]: e(x)
            for _ in range(2):
                if Ld: t,x=Ld.pop(0); e(x); vm.append(t)
    assert not later
    stamp(A,4)
    h0=4 if HYB else 0
    if OPT.get('oc'): e('s_memtime s[82:83]')
    if not OPT.get('eb'):
        e('s_barrier')
        for x in rdwo(h0): e(x)
    F7=fin(7)
    if not OPT.get('eb'):
        for x in F7[:10]: e(x)
    else: F7=['']*10+F7
    for x in rdwo(h0+1): e(x)
    for hh_ in range(h0,8,2):
        e('s_waitcnt lgkmcnt(8)')
        O=outm(hh_)
        for i in range(4):
            e(O[i])
            if hh_==h0 and not OPT.get('eb'):
                for x in F7[10+i*4:14+i*4]: e(x)
            if OPT.get('eb') and hh_<=2:
                k_=10+(2*hh_+i)*3
                for x in F7[k_:k_+3]: e(x)
            if i==0 and hh_<6:
                if OB==4 or (OB==2 and hh_==2): e('s_barrier')
                for x in rdwo(hh_+2): e(x)
        e('s_waitcnt lgkmcnt(%d)'%(8 if hh_<6 else 0))
        O=outm(hh_+1); e(O[0])
        if hh_<6:
            for x in rdwo(hh_+3): e(x)
        for x in O[1:]: e(x)
    stamp(A,5)
    if OPT.get('oc'): e('s_memtime s[84:85]')
    e('s_nop 7\ns_cmp_eq_u32 s46, 0\ns_cbranch_scc1 K2_X0')
    for q in range(4): e(f'ds_write_b128 v6, {vr(OUT[0]+4*q,4)} offset:{1024*q}')
    for j in range(0,16,2): e(f'v_mov_b64 {vr(OUT[0]+j,2)}, {vr(OUT[1]+j,2)}')
    e('s_branch K2_X1\nK2_X0:\ns_nop 1')
    for q in range(4): e(f'ds_write_b128 v6, {vr(OUT[1]+4*q,4)} offset:{1024*q}')
    e('K2_X1:\ns_waitcnt lgkmcnt(0)\ns_barrier')
    for q in range(4): e(f'ds_read_b128 {vr(24+4*q,4)}, v7 offset:{1024*q}')
    st=OPT['st_out']
    for i in range(2):
        e(f's_waitcnt lgkmcnt({2-2*i})')
        for j in range(0,8,2): e(f'v_pk_add_f32 {vr(OUT[0]+8*i+j,2)}, {vr(OUT[0]+8*i+j,2)}, {vr(24+8*i+j,2)}')
        for j in range(4): e(f'v_cvt_pk_bf16_f32 v{56+4*i+j}, v{OUT[0]+8*i+2*j}, v{OUT[0]+8*i+2*j+1}')
        e(f'buffer_store_dwordx4 {vr(56+4*i,4)}, v5, s[{SO}:{SO+3}], s54 offen offset:{32*i} {st}')
    dump2(A,1)
    e('s_endpgm')
    e('K2_A:')
    SP_=904
    e(f'''s_lshl_b32 s43, s41, 2
    s_add_u32 s43, s43, s42
    s_sub_u32 s43, s43, 28
    s_and_b32 s44, s43, 1
    s_lshr_b32 s43, s43, 1
    s_and_b32 s45, s{sWV}, 1
    s_lshr_b32 s46, s{sWV}, 1
    v_lshl_add_u32 v14, v13, 10, v12
    s_lshl_b32 s47, s43, 17
    s_lshl_b32 s48, s{sWV}, 14
    s_add_u32 s47, s47, s48
    s_add_u32 s49, s47, 8192
    s_lshl_b32 s48, s{sWV}, 11
    s_mov_b32 m0, s48
    s_waitcnt lgkmcnt(0)''')
    stamp(A,1)
    srd(A,SD,12,2<<20,AINT_OFF)
    Ld=[]
    for j in range(7):
        Ld.append(f'buffer_load_dwordx4 v14, s[{SD}:{SD+3}], s47 offen lds\ns_add_u32 m0, m0, 1024\ns_add_u32 s47, s47, 128')
        Ld.append(f'buffer_load_dwordx4 v14, s[{SD}:{SD+3}], s49 offen lds\ns_add_u32 m0, m0, {16384-1024}\ns_add_u32 s49, s49, 128')
    G=f"""s_lshl_b32 s56, s44, 10
    s_add_u32 s57, s43, s56
    s_lshl_b32 s59, s44, 4
    s_lshl_b32 s54, s44, 13
    s_cmp_eq_u32 s43, 0
    s_cselect_b32 s57, s59, s57
    s_cselect_b32 s54, s54, 0
    s_cselect_b32 s55, s54, 8192
    s_sub_u32 s58, 2048, s57
    s_add_u32 s59, s57, 1024
    s_cmp_eq_u32 s43, 0
    s_cselect_b32 s58, s59, s58
    s_cselect_b32 s53, {32*1792}, {(-32*1792)&0xffffffff}""".split('\n')
    npre=len(G)
    G+=LANE.split('\n')
    G+=f"""v_lshlrev_b32 v3, 5, v8
    v_add_u32 v3, s57, v3
    v_cvt_f32_u32 v4, v3
    v_mul_f32 v4, {f2u(1/2048)}, v4
    v_cvt_f32_u32 v5, v9
    v_mul_f32 v5, {f2u(8.0)}, v5
    v_mul_f32 v5, v4, v5""".split('\n')
    C,S,M2,M3=24,40,56,72; TT=88
    for ks in range(4):
        for j in range(8): G.append(f'v_fmamk_f32 v{TT+j}, v4, {f2u(16.*ks+j)}, v5')
        for j in range(8): G+=[f'v_sin_f32 v{TT+8+j}, v{TT+j}',f'v_cos_f32 v{TT+j}, v{TT+j}']
        for j in range(4): G+=[f'v_cvt_pk_bf16_f32 v{C+4*ks+j}, v{TT+2*j}, v{TT+2*j+1}',f'v_cvt_pk_bf16_f32 v{S+4*ks+j}, v{TT+8+2*j}, v{TT+8+2*j+1}']
    for x in Ld[:4]: e(x)
    for x in G[:npre]: e(x)
    k=4
    for i,x in enumerate(G[npre:]):
        e(x)
        if i%8==7 and k<len(Ld): e(Ld[k]); k+=1
    while k<len(Ld): e(Ld[k]); k+=1
    e('s_cmp_eq_u32 s43, 0\ns_cbranch_scc1 K2A_G1')
    for j in range(0,16,2): e(f'v_mov_b64 {vr(M2+j,2)}, {vr(S+j,2)}\nv_mov_b64 {vr(M3+j,2)}, {vr(C+j,2)}')
    e('s_branch K2A_G2\nK2A_G1:')
    for j in range(16): e(f'v_xor_b32 v{M2+j}, 0x80000000, v{C+j}\nv_xor_b32 v{M3+j}, 0x80000000, v{S+j}')
    e('K2A_G2:')
    srd(A,SO,10,2048*1792)
    aR,aS,bS,bR=16,17,18,19
    e(f"""v_lshl_add_u32 v3, v9, 3, v10
    v_lshlrev_b32 v3, 7, v3
    v_lshrrev_b32 v4, 1, v10
    v_lshl_add_u32 v3, v4, 6, v3
    s_lshl_b32 s60, s{sWV}, 14
    v_add3_u32 v3, v3, v11, s60
    v_add_u32 v{aR}, s54, v3
    v_add_u32 v{aS}, s55, v3
    v_xor_b32 v{bR}, 64, v{aR}
    v_xor_b32 v{bS}, 64, v{aS}
    v_mul_u32_u24 v22, {SP_}, v8
    s_lshl_b32 s60, s{sWV}, 6
    v_lshl_add_u32 v3, v9, 4, s60
    v_add_u32 v20, v22, v3
    v_sub_u32 v21, v22, v3
    v_add_u32 v21, 850, v21""")
    FR=88; AC=[152,168,184,200]; AX,AY=216,232; PS=22
    stamp(A,3)
    e('s_waitcnt vmcnt(6)\ns_barrier')
    stamp(A,4)
    e(f's_cmp_lt_u32 s{sWV}, 4\ns_cbranch_scc1 K2A_GO\ns_waitcnt vmcnt(0)\ns_barrier\ns_cmp_eq_u32 s{sWV}, 7\ns_cbranch_scc1 K2A_OUT\nK2A_GO:')
    srcs=[(aR,C),(aS,M2),(bS,M3),(bR,S)]
    def rdA(n):
        ks,q=n>>2,n&3
        for jj in range(2): e(f'ds_read_b64_tr_b16 {vr(FR+4*n+2*jj,2)}, v{srcs[q][0]} offset:{2048*ks+512*jj}')
    for n in range(6): rdA(n)
    for n in range(16):
        if n+6<16: rdA(n+6); e('s_waitcnt lgkmcnt(12)')
        else: e(f's_waitcnt lgkmcnt({2*(15-n)})')
        ks,q=n>>2,n&3
        e(MF(AC[q],FR+4*n,srcs[q][1]+4*ks,AC[q] if ks else None))
    e(f's_cmp_eq_u32 s{sWV}, 0\ns_cbranch_scc0 K2A_NS')
    for ks in range(4):
        e(MF(AX,FR+4*(4*ks+3),C+4*ks,AX if ks else None)); e(MF(AY,FR+4*(4*ks+2),M2+4*ks,AY if ks else None))
    e('s_mov_b32 exec_hi, 0')
    e(f'v_mov_b32 v{AC[2]}, 0\nv_mov_b32 v{AC[3]}, 0\nv_sub_f32 v3, v{AX}, v{AY}\nv_cvt_pk_bf16_f32 v{PS}, v{AX}, v{AY}\nv_cvt_pk_bf16_f32 v3, v3, v3')
    e(f's_cmp_eq_u32 s43, 0\ns_cselect_b64 vcc, -1, 0\nv_cndmask_b32 v{PS}, v3, v{PS}, vcc')
    e('s_mov_b32 exec_hi, -1')
    e('K2A_NS:\ns_nop 7\ns_nop 1\ns_cmp_eq_u32 s43, 0\ns_cbranch_scc1 K2A_C1')
    NEG=' neg_lo:[0,1] neg_hi:[0,1]'
    AF,AM,BF,BM=88,104,120,136
    for j in range(0,16,2):
        e(f'v_pk_add_f32 {vr(AC[0]+j,2)}, {vr(AC[0]+j,2)}, {vr(AC[1]+j,2)}{NEG}')
        e(f'v_pk_add_f32 {vr(AC[2]+j,2)}, {vr(AC[2]+j,2)}, {vr(AC[3]+j,2)}')
    for j in range(0,16,2):
        e(f'v_pk_add_f32 {vr(AF+j,2)}, {vr(AC[0]+j,2)}, {vr(AC[2]+j,2)}{NEG}')
        e(f'v_pk_add_f32 {vr(AM+j,2)}, {vr(AC[0]+j,2)}, {vr(AC[2]+j,2)}')
        e(f'v_pk_add_f32 {vr(BM+j,2)}, {vr(AC[0]+j,2)}, {vr(AC[2]+j,2)}{NEG}')
        e(f'v_pk_add_f32 {vr(BF+j,2)}, {vr(AC[0]+j,2)}, {vr(AC[2]+j,2)}')
    e('s_branch K2A_C2\nK2A_C1:')
    for j in range(0,16,2):
        e(f'v_pk_add_f32 {vr(AF+j,2)}, {vr(AC[0]+j,2)}, {vr(AC[3]+j,2)}{NEG}')
        e(f'v_pk_add_f32 {vr(AM+j,2)}, {vr(AC[0]+j,2)}, {vr(AC[3]+j,2)}')
        e(f'v_pk_add_f32 {vr(BF+j,2)}, {vr(AC[1]+j,2)}, {vr(AC[2]+j,2)}{NEG}')
        e(f'v_pk_add_f32 {vr(BM+j,2)}, {vr(AC[1]+j,2)}, {vr(AC[2]+j,2)}')
    e('K2A_C2:')
    PK=152
    for tl,(F_,M_) in enumerate(((AF,AM),(BF,BM))):
        p=PK+16*tl
        for j in range(8): e(f'v_cvt_pk_bf16_f32 v{p+j}, v{F_+2*j}, v{F_+2*j+1}')
        for i in range(2):
            b_=M_+8*i
            e(f'v_cvt_pk_bf16_f32 v{p+8+4*i}, v{b_+7}, v{b_}\nv_cvt_pk_bf16_f32 v{p+9+4*i}, v{b_+6}, v{b_+5}\nv_cvt_pk_bf16_f32 v{p+10+4*i}, v{b_+4}, v{b_+3}\nv_cvt_pk_bf16_f32 v{p+11+4*i}, v{b_+2}, v{b_+1}')
    e(f"""s_cmp_lt_u32 s{sWV}, 4
    s_cbranch_scc0 K2A_WR
    s_waitcnt vmcnt(0)
    s_barrier
    s_cmp_eq_u32 s{sWV}, 0
    s_cbranch_scc0 K2A_WR
    s_mov_b32 exec_hi, 0
    ds_write_b16 v20, v{PS} offset:448
    ds_write_b16_d16_hi v20, v{PS} offset:{448+32*SP_}
    s_mov_b32 exec_hi, -1
    K2A_WR:""")
    for tl in range(2):
        p=PK+16*tl; T=32*SP_*tl
        for i in range(2):
            e(f'ds_write_b64 v20, {vr(p+4*i,2)} offset:{T+32*i}\nds_write_b64 v20, {vr(p+4*i+2,2)} offset:{T+32*i+8}')
            o=T+32-32*i; r=p+8+4*i
            e(f'ds_write_b16 v21, v{r} offset:{o}\nds_write_b32 v21, v{r+1} offset:{o+2}\nds_write_b64 v21, {vr(r+2,2)} offset:{o+6}\nds_write_b16_d16_hi v21, v{r} offset:{o+14}')
    e('K2A_OUT:')
    stamp(A,5)
    e(f"""s_cmp_lt_u32 s{sWV}, 4
    s_cselect_b32 s50, s57, s58
    s_cselect_b32 s53, {32*1792}, s53
    s_mul_i32 s50, s50, 1792
    s_and_b32 s56, s{sWV}, 3
    s_lshl_b32 s56, s56, 3
    s_mul_i32 s56, s56, s53
    s_add_u32 s50, s50, s56
    s_mul_i32 s56, s{sWV}, {8*SP_}
    v_add_u32 v4, s56, v15
    s_waitcnt lgkmcnt(0)
    s_barrier
    s_mov_b32 exec_hi, 0x00ffffff""")
    for i in range(8):
        if i%2==0 and i: e(f'v_add_u32 v4, {2*SP_}, v4')
        e(f'ds_read2_b64 {vr(24+4*i,4)}, v4 offset0:{113*(i&1)} offset1:{113*(i&1)+1}')
    for i in range(8):
        e(f's_waitcnt lgkmcnt({7-i})')
        e(f'buffer_store_dwordx4 {vr(24+4*i,4)}, v15, s[{SO}:{SO+3}], s50 offen {st}')
        e(f's_add_u32 s50, s50, s53')
    dump2(A,3)
    e('K2_END:\ns_endpgm')

def k3(A):
    e=A.e
    kk,si,role,stat,scale=[int(x) for x in OPT['x'].split(',')]
    e('k3_kernel:')
    e('s_cmp_ge_u32 s2, 1\ns_cbranch_scc1 K3_END')
    e('s_load_dwordx2 s[4:5], s[0:1], 88\nv_lshlrev_b32 v1, 6, v0\nv_mov_b32 v2, 0\nv_mov_b32 v3, -1\nv_mov_b32 v4, 0')
    e('ds_write_b32 v2, v3\nds_write_b32 v2, v4 offset:4\nds_write_b32 v2, v4 offset:8\ns_waitcnt lgkmcnt(0)\ns_barrier')
    e('s_add_u32 s8, s4, 0x800000\ns_addc_u32 s9, s5, 0\ns_mov_b32 s10, 0x20000\ns_mov_b32 s11, 0x20000')
    e(f'buffer_load_dword v5, v1, s[8:11], 0 offen\ns_mov_b32 s12, {0x10000*kk}')
    e(f'buffer_load_dword v6, v1, s[8:11], s12 offen offset:{4*si}\nbuffer_load_dword v7, v1, s[8:11], s12 offen offset:40\ns_waitcnt vmcnt(0)')
    e('ds_min_u32 v2, v5\ns_waitcnt lgkmcnt(0)\ns_barrier\nds_read_b32 v8, v2\ns_waitcnt lgkmcnt(0)\nv_sub_u32 v6, v6, v8')
    e(f'v_cmp_eq_u32 vcc, {role}, v7\nv_cndmask_b32 v6, 0, v6, vcc\nv_cndmask_b32 v9, 0, 1, vcc')
    e(('ds_max_u32 v2, v6 offset:4' if stat==0 else 'ds_add_u32 v2, v6 offset:4')+'\nds_add_u32 v2, v9 offset:8\ns_waitcnt lgkmcnt(0)\ns_barrier')
    e('ds_read_b32 v6, v2 offset:4\nds_read_b32 v9, v2 offset:8\ns_waitcnt lgkmcnt(0)')
    e(f'v_cvt_f32_u32 v6, v6\nv_mul_f32 v6, {f2u(float(scale))}, v6')
    if stat==1: e('v_cvt_f32_u32 v9, v9\nv_rcp_f32 v9, v9\nv_mul_f32 v6, v6, v9')
    e('v_cvt_u32_f32 v6, v6\nv_min_u32 v6, 100000, v6\nv_readfirstlane_b32 s14, v6')
    e('s_memrealtime s[16:17]\ns_waitcnt lgkmcnt(0)\nK3_L:\ns_memrealtime s[18:19]\ns_waitcnt lgkmcnt(0)\ns_sub_u32 s20, s18, s16\ns_cmp_lt_u32 s20, s14\ns_cbranch_scc1 K3_L')
    e('K3_END:\ns_endpgm')

def desc(name,vgpr,sgpr,acc):
    return f'''.amdhsa_kernel {name}
  .amdhsa_next_free_vgpr {vgpr}
  .amdhsa_next_free_sgpr {sgpr}
  .amdhsa_accum_offset {acc}
  .amdhsa_group_segment_fixed_size 0
  .amdhsa_kernarg_size 96
  .amdhsa_user_sgpr_count 2
  .amdhsa_user_sgpr_kernarg_segment_ptr 1
  .amdhsa_system_sgpr_workgroup_id_x 1
.end_amdhsa_kernel
'''
def main():
    A1=Asm(); k1(A1); A2=Asm(); k2(A2)
    assert A1.verify_branches()==0 and A2.verify_branches()==0
    v1=A1.maxreg('v')+1; v2=A2.maxreg('v')+1; a2=A2.maxreg('a')+1
    r4=lambda x:(x+3)//4*4
    hdr=open('concat_heads__spectral_fnet__linear_kernel_hedgehog__prompt.s.ref').read().split('; Override')[0]
    out=hdr+'; @launch kernel=k1_kernel grid=(256,1,1) block=(512,1,1) lds=163840\n; @launch kernel=k2_kernel grid=(256,1,1) block=(512,1,1) lds=131072\n'
    ks=[('k1_kernel',A1),('k2_kernel',A2)]
    if 'x' in OPT:
        A3=Asm(); k3(A3); ks.append(('k3_kernel',A3)); out+='; @launch kernel=k3_kernel grid=(1,1,1) block=(256,1,1) lds=64\n'
    out+='.amdgcn_target "amdgcn-amd-amdhsa--gfx950"\n.text\n'
    for n,A in ks:
        out+=f'.globl {n}\n.p2align 8\n.type {n},@function\n'+A.text()
    out+='.section .rodata,"a"\n.p2align 6\n'+desc('k1_kernel',v1,102,r4(v1))+'.p2align 6\n'+desc('k2_kernel',v2,102,r4(v2))
    if 'x' in OPT: out+='.p2align 6\n'+desc('k3_kernel',16,32,16)
    open(sys.argv[1],'w').write(out)
    print('k1 vgpr',v1,'k2 vgpr',v2,'agpr',a2, 'k1 sgpr',A1.maxreg('s')+1,'k2 sgpr',A2.maxreg('s')+1)
main()
```

```python
import sys, math
from asmlib import *

PHIQ_OFF=0; KV_OFF=0x400000; AINT_OFF=0x500000
LOG2E=1.4426950408889634
OPT=dict(st_phi='sc1', st_aint='sc1', st_out='sc1', prof=0, rot=1, ldx='', lda='', D=2, apf=1, wpf=1, cpf=1, bpf=1, ob=4, eb=1)
for a in sys.argv[2:]:
    k,v=a.split('='); OPT[k]=int(v) if v.lstrip('-').isdigit() else v

def srd(A,d,base,nbytes,off=0):
    if off: A.e(f's_add_u32 s{d}, s{base}, {hex(off)}\ns_addc_u32 s{d+1}, s{base+1}, 0')
    else: A.e(f's_mov_b32 s{d}, s{base}\ns_mov_b32 s{d+1}, s{base+1}')
    A.e(f's_mov_b32 s{d+2}, {hex(nbytes)}\ns_mov_b32 s{d+3}, 0x20000')

NST=[0]
def stamp(A,i):
    if OPT.get('lp') and 1<=i<=6 and not OPT.get('k2'): return
    if OPT.get('kl') and 1<=i<=6 and OPT.get('k2'): return
    if OPT['prof']:
        A.e(f's_memrealtime s[{80+2*i}:{81+2*i}]')
        if i==0: A.e('s_memtime s[98:99]')
def dump(A,role,ws,ko):
    if not OPT['prof']: return
    NST[0]+=1; L=f'PD{NST[0]}'
    A.e(f's_memrealtime s[94:95]\ns_waitcnt vmcnt(0) lgkmcnt(0)\ns_memrealtime s[96:97]\ns_memtime s[78:79]\ns_waitcnt lgkmcnt(0)')
    A.e(f's_cmp_eq_u32 s40, {OPT.get("pw",0)}\ns_cbranch_scc0 {L}')
    A.e(f's_add_u32 s72, s{ws}, {ko}\ns_addc_u32 s73, s{ws+1}, 0\ns_mov_b32 s74, 0x10000\ns_mov_b32 s75, 0x20000\ns_mov_b64 exec, 1\ns_lshl_b32 s76, s2, 6\ns_sub_u32 s78, s78, s98')
    for i in range(9): A.e(f'v_mov_b32 v0, s{80+2*i}\nbuffer_store_dword v0, off, s[72:75], s76 offset:{4*i}')
    A.e(f'v_mov_b32 v0, s78\nbuffer_store_dword v0, off, s[72:75], s76 offset:36\nv_mov_b32 v0, {role}\nbuffer_store_dword v0, off, s[72:75], s76 offset:40')
    A.e(f'{L}:')
def dump1(A,role): dump(A,role,18,0x800000)
def dump2(A,role): dump(A,role,12,0x810000)

def MF(d,a,b,c=None):
    cc='0' if c is None else vr(c,16)
    return f'v_mfma_f32_32x32x16_bf16 {vr(d,16)}, {vr(a,4)}, {vr(b,4)}, {cc}'

def k1(A):
    e=A.e
    SX,SW,SP,SWS,SDB=20,24,28,32,36
    sWV=40
    e('k1_kernel:')
    e('s_cmp_ge_u32 s2, 256\ns_cbranch_scc1 K1_END')
    stamp(A,0)
    e('s_load_dwordx8 s[8:15], s[0:1], 40\ns_load_dwordx4 s[16:19], s[0:1], 80\ns_load_dwordx2 s[4:5], s[0:1], 0')
    e('v_and_b32 v1, 63, v0\nv_lshrrev_b32 v2, 6, v0')
    e('s_and_b32 s41, s2, 7\ns_lshr_b32 s42, s2, 3')
    e(f'v_readfirstlane_b32 s{sWV}, v2')
    e('s_cmp_ge_u32 s42, 24\ns_cbranch_scc1 K1_A')
    e('''s_and_b32 s43, s42, 1
    s_lshl_b32 s50, s41, 1
    s_add_u32 s43, s43, s50
    s_lshr_b32 s50, s42, 1
    s_and_b32 s50, s50, 7
    s_lshr_b32 s44, s42, 4
    s_add_u32 s53, s44, 1
    s_lshl_b32 s49, s50, s53''')
    vRX=10; vRW,vRB,vX0,vX1,vW,vP,vSA,vFL,vW0,vW1=14,15,16,17,18,19,20,21,22,23
    TM=24; WF=[32,48]; ACC0,ACC1=64,80; WPH=96; QB=112; EN=120; XF=144
    SLOT=24576; WBL=98304; WPL=155648
    e(f"""s_cmp_eq_u32 s44, 1
    s_cselect_b32 s46, 112, 896
    s_cselect_b32 s51, 224, 112
    s_cselect_b32 s52, 0, 896
    s_mul_i32 s45, s50, s51
    s_add_u32 s45, s45, s52
    v_lshrrev_b32 v3, 3, v1
    v_lshrrev_b32 v4, 4, v1
    v_and_b32 v5, 7, v1
    v_xor_b32 v6, v5, v4
    v_lshlrev_b32 v6, 4, v6
    v_mul_u32_u24 v7, 896, v3
    v_add_u32 v{vX0}, v7, v6
    v_xor_b32 v{vX1}, 64, v{vX0}
    v_add_u32 v{vX1}, {8*896}, v{vX1}
    v_and_b32 v4, 1, v4
    v_lshlrev_b32 v4, 2, v4
    v_xor_b32 v5, v5, v4
    v_min_u32 v5, 6, v5
    v_mul_u32_u24 v7, 2688, v3
    v_lshl_add_u32 v{vW}, v5, 4, v7
    v_lshlrev_b32 v3, 4, v0
    s_lshl_b32 s54, s43, 3
    s_add_u32 s54, s54, s{sWV}
    s_mul_i32 s54, s54, {16*896}
    s_mul_i32 s62, s{sWV}, {8*2688}
    s_add_u32 s62, s62, s45
    s_lshl_b32 s56, s{sWV}, 11
    s_lshl_b32 s61, s{sWV}, 10
    s_mul_i32 s57, s49, 1568
    s_add_u32 m0, s61, {WPL}""")
    if OPT['rot']:
        e(f"""s_min_u32 s58, s41, 6
        s_lshl_b32 s60, s58, 7
        s_add_u32 s54, s54, s60
        s_mul_i32 s55, s58, {64*2688}
        s_add_u32 s55, s55, s62""")
    else: e('s_mov_b32 s58, 0\ns_mov_b32 s55, s62')
    e('s_add_u32 s59, s55, s46\ns_mov_b32 s63, s58\ns_add_u32 s47, s62, s46')
    e('s_waitcnt lgkmcnt(0)')
    stamp(A,1)
    srd(A,SX,8,2048*896); srd(A,SW,10,448*2688); srd(A,SP,12,16*1568)
    lx=OPT['ldx']
    def issue(st):
        sl=SLOT*(st%4)
        return [f's_add_u32 m0, s56, {sl}\ns_add_u32 s58, s58, 1\nbuffer_load_dwordx4 v{vX0}, s[{SX}:{SX+3}], s54 offen {lx} lds',
                f's_add_u32 m0, s61, {sl+16384}\ns_cmp_eq_u32 s58, 7\nbuffer_load_dwordx4 v{vW}, s[{SW}:{SW+3}], s55 offen lds\ns_cselect_b32 s60, {128-896+(1<<32)}, 128\ns_cselect_b32 s55, {-64*2688*6+(1<<32)}, {64*2688}'.replace('s_cselect_b32 s55','s_cselect_b32 s64'),
                f's_add_u32 m0, s56, {sl+1024}\ns_add_u32 s55, s55, s64\nbuffer_load_dwordx4 v{vX1}, s[{SX}:{SX+3}], s54 offen {lx} lds\ns_add_u32 s54, s54, s60']
    def issueB(t):
        return [f's_add_u32 m0, s61, {WBL+8192*t}\ns_add_u32 s63, s63, 1\nbuffer_load_dwordx4 v{vW}, s[{SW}:{SW+3}], s59 offen lds\ns_add_u32 s59, s59, {64*2688}\ns_cmp_eq_u32 s63, 7\ns_cselect_b32 s59, s47, s59']
    D=OPT['D']
    e(f'buffer_load_dwordx4 v3, s[{SP}:{SP+3}], s57 offen lds')
    for st in range(D):
        for x in issue(st): e(x)
    e(f"""v_and_b32 v3, 3, v2
    v_and_b32 v4, 31, v1
    v_lshl_add_u32 v8, v3, 5, v4
    v_lshrrev_b32 v9, 5, v1
    v_bfe_u32 v5, v8, 1, 3
    v_xor_b32 v5, v5, v9
    v_lshlrev_b32 v5, 4, v5
    v_lshl_add_u32 v{vRX}, v8, 7, v5
    v_bfe_u32 v3, v1, 4, 1
    v_and_b32 v4, 3, v1
    v_lshl_add_u32 v3, v3, 2, v4
    v_min_u32 v3, 6, v3
    v_lshlrev_b32 v7, 3, v3
    v_lshrrev_b32 v2, 2, v2
    v_mad_u32_u24 v3, v2, 56, v7
    v_bfe_u32 v0, v1, 2, 2
    v_lshl_add_u32 v5, v9, 3, v0
    v_lshlrev_b32 v5, 7, v5
    v_bfe_u32 v4, v1, 3, 1
    v_lshlrev_b32 v4, 6, v4
    v_xor_b32 v6, v3, v4
    v_add_u32 v5, v5, v6
    v_add_u32 v{vRW}, 16384, v5
    v_add_u32 v{vRB}, {WBL}, v5
    v_lshl_add_u32 v4, v9, 2, v0
    v_mul_u32_u24 v4, 56, v4
    v_mul_u32_u24 v5, 1568, v2
    v_add3_u32 v3, v7, v4, v5
    v_add_u32 v{vP}, {WPL}, v3""")
    for ks in range(1,4): e(f'v_xor_b32 v{vRX+ks}, {32*ks}, v{vRX}')
    srd(A,SDB,16,256)
    e(f"""s_cmp_eq_u32 s44, 1
    s_cselect_b32 s60, {PHIQ_OFF}, {KV_OFF}
    s_cselect_b32 s{SWS+2}, {64*16*3584}, {16*3584}
    s_add_u32 s{SWS}, s18, s60
    s_addc_u32 s{SWS+1}, s19, 0
    s_mov_b32 s{SWS+3}, 0x20000
    s_and_b32 s65, s{sWV}, 3
    s_lshl_b32 s66, s43, 2
    s_add_u32 s65, s65, s66
    s_lshl_b32 s65, s65, 4
    s_lshr_b32 s66, s{sWV}, 2
    s_lshl_b32 s67, s66, 1
    s_add_u32 s65, s65, s67
    s_add_u32 s65, s65, s49
    s_mul_i32 s65, s65, 3584
    v_lshlrev_b32 v{vSA}, 4, v1
    s_mul_i32 s67, s66, 24576
    v_mul_u32_u24 v3, 192, v8
    v_bfe_u32 v4, v8, 1, 2
    v_lshlrev_b32 v5, 1, v9
    v_xor_b32 v4, v4, v5
    v_lshl_add_u32 v3, v4, 4, v3
    v_add_u32 v{vW0}, s67, v3
    v_xor_b32 v{vW1}, 16, v{vW0}
    s_mov_b32 s68, {f2u(LOG2E)}""")
    def rdW(ad,buf,off):
        return [f'ds_read_b64_tr_b16 {vr(WF[buf]+4*ks+2*jj,2)}, v{ad} offset:{off+2048*ks+512*jj}' for ks in range(4) for jj in range(2)]
    def shift():
        e(('s_memtime' if OPT.get('cyc') else 's_memrealtime')+' s[76:77]\ns_waitcnt lgkmcnt(0)')
        for i in range(1,7): e(f's_mov_b32 s{80+2*i}, s{82+2*i}')
        e('s_mov_b32 s92, s76')
    stamp(A,2)
    issued=[('p',1)]+[(k,3) for k in range(D)]
    def younger(tag):
        n=0
        for t,c in reversed(issued):
            if t==tag: return n
            n+=c
        raise
    nB=0
    for s_ in range(7):
        e(f's_waitcnt vmcnt({younger(s_)}) lgkmcnt(0)\ns_barrier')
        if s_==0: stamp(A,3)
        elif OPT.get('lp')==1: shift()
        I=[]
        if s_+D<7: I=issue(s_+D); issued.append((s_+D,3))
        k=int(str(OPT.get('bs','0000043')).zfill(7)[s_])
        for t in range(nB,nB+k): I+=issueB(t); issued.append((f'B{t}',1))
        nB+=k
        R=[]
        for ks in range(4): R+=[f'ds_read_b128 {vr(XF+16*s_+4*ks,4)}, v{vRX+ks}']+rdW(vRW,s_&1,0)[2*ks:2*ks+2]
        if s_==0: R+=[f'ds_read_b64_tr_b16 {vr(WPH+8*u+2*q,2)}, v{vP} offset:{3136*u+448*q}' for u in range(2) for q in range(4)]
        M=[MF(ACC0,WF[(s_-1)&1]+4*ks,XF+16*(s_-1)+4*ks,ACC0 if (s_>1 or ks) else None) for ks in range(4)] if s_ else []
        d=SLOT if (s_+1)%4 else -3*SLOT
        V=[f'v_add_u32 v{r}, {d&0xffffffff}, v{r}' for r in (vRX,vRX+1,vRX+2,vRX+3,vRW)] if s_<6 else []
        for i in range(4):
            if M: e(M[i])
            for x in R[i*len(R)//4:(i+1)*len(R)//4]: e(x)
            if i<len(I): e(I[i])
        for x in I[4:]: e(x)
        for x in V: e(x)
    P=ACC0; EP=ACC0
    PHR=[112+j for j in range(8)]+[136+j for j in range(4)]
    def unit(P,EN,PH,pk=1):
        U=[]
        mx,nm,t0,t1=TM,TM+1,TM+2,TM+3; EP=P
        U+=[f'v_permlane32_swap_b32 v{P+12}, v{P+14}',f'v_permlane32_swap_b32 v{P+13}, v{P+15}']
        U+=[f'v_max3_f32 v{mx}, v{P}, v{P+1}, v{P+2}',f'v_min3_f32 v{nm}, v{P}, v{P+1}, v{P+2}']
        for j in range(3,13,2): U+=[f'v_max3_f32 v{mx}, v{mx}, v{P+j}, v{P+j+1}',f'v_min3_f32 v{nm}, v{nm}, v{P+j}, v{P+j+1}']
        U+=[f'v_max_f32 v{mx}, v{mx}, v{P+13}',f'v_min_f32 v{nm}, v{nm}, v{P+13}']
        U+=[f'v_mul_f32 v{mx}, s68, v{mx}',f'v_mul_f32 v{nm}, {f2u(-LOG2E)}, v{nm}']
        U+=[f'v_permlane32_swap_b32 v{mx}, v{nm}',f'v_max_f32 v{t0}, v{mx}, v{nm}',f'v_max_f32 v{t1}, v{mx}, v{nm}',f'v_permlane32_swap_b32 v{t0}, v{t1}']
        if pk:
            for j in range(0,14,2):
                U+=[f'v_pk_fma_f32 {vr(EN+j,2)}, {vr(P+j,2)}, s[68:69], {vr(t0,2)} op_sel:[0,0,1] op_sel_hi:[1,0,1] neg_lo:[0,1,1] neg_hi:[0,1,1]',
                    f'v_pk_fma_f32 {vr(EP+j,2)}, {vr(P+j,2)}, s[68:69], {vr(t0,2)} op_sel_hi:[1,0,0] neg_lo:[0,0,1] neg_hi:[0,0,1]']
        else:
            for j in range(14): U+=[f'v_fma_f32 v{EN+j}, -v{P+j}, s68, -v{t1}',f'v_fma_f32 v{EP+j}, v{P+j}, s68, -v{t0}']
        for j in range(14): U+=[f'v_exp_f32 v{EP+j}, v{EP+j}',f'v_exp_f32 v{EN+j}, v{EN+j}']
        sp,sn=TM+4,TM+6
        if pk:
            U+=[f'v_pk_add_f32 {vr(sp,2)}, {vr(EP,2)}, {vr(EP+2,2)}',f'v_pk_add_f32 {vr(sn,2)}, {vr(EN,2)}, {vr(EN+2,2)}']
            for j in range(4,14,2): U+=[f'v_pk_add_f32 {vr(sp,2)}, {vr(sp,2)}, {vr(EP+j,2)}',f'v_pk_add_f32 {vr(sn,2)}, {vr(sn,2)}, {vr(EN+j,2)}']
            U+=[f'v_add_f32 v{mx}, v{sp}, v{sp+1}',f'v_add_f32 v{nm}, v{sn}, v{sn+1}']
        else:
            U+=[f'v_add_f32 v{mx}, v{EP}, v{EP+1}',f'v_add_f32 v{nm}, v{EN}, v{EN+1}']
            for j in range(2,14): U+=[f'v_add_f32 v{mx}, v{mx}, v{EP+j}',f'v_add_f32 v{nm}, v{nm}, v{EN+j}']
        U+=[f'v_permlane32_swap_b32 v{mx}, v{nm}',f'v_add_f32 v{t0}, v{mx}, v{nm}',f'v_rcp_f32 v{t0}, v{t0}',f'v_mov_b32 v{t1}, v{t0}',f'v_permlane32_swap_b32 v{t0}, v{t1}']
        if pk: U+=[f'v_pk_mul_f32 {vr(EP+j,2)}, {vr(EP+j,2)}, {vr(t0,2)} op_sel_hi:[1,0]' for j in range(0,14,2)]
        else: U+=[f'v_mul_f32 v{EP+j}, v{t0}, v{EP+j}' for j in range(14)]
        U+=[f'v_cvt_pk_bf16_f32 v{PH[j]}, v{EP+2*j}, v{EP+2*j+1}' for j in range(7)]
        if pk: U+=[f'v_pk_mul_f32 {vr(EN+j,2)}, {vr(EN+j,2)}, {vr(t0,2)} op_sel:[0,1] op_sel_hi:[1,1]' for j in range(0,14,2)]
        else: U+=[f'v_mul_f32 v{EN+j}, v{t1}, v{EN+j}' for j in range(14)]
        U+=[f'v_cvt_pk_bf16_f32 v{PH[7+j]}, v{EN+2*j}, v{EN+2*j+1}' for j in range(7)]
        return U
    e('s_waitcnt lgkmcnt(0)')
    for ks in range(4): e(MF(ACC0,WF[0]+4*ks,XF+96+4*ks,ACC0))
    e('v_cmp_gt_u32 vcc, 32, v1')
    for j in (6,7,14,15): e(f'v_cndmask_b32 v{WPH+j}, 0, v{WPH+j}, vcc')
    for j in range(8): e(f'v_cvt_pk_bf16_f32 v{QB+j}, v{ACC0+2*j}, v{ACC0+2*j+1}')
    e(MF(P,WPH,QB)); e(MF(P,WPH+4,QB+4,P))
    n1=OPT.get('n1',40)
    Ua=unit(P,EN,PHR+[140,141],1); Ub=unit(P,EN,PHR+[140,141],0)
    cutA=22+14; cutB=22+28
    U=Ua[:cutA]+Ub[cutB:]
    for x in U[:n1]: e(x)
    e(f's_waitcnt vmcnt({younger("B2")})\ns_barrier')
    stamp(A,4)
    if OPT.get('oc'): e('s_memtime s[82:83]')
    for x in rdW(vRB,1,0)+rdW(vRB,0,8192): e(x)
    gaps=[1]*27+[0]
    cost=lambda x: 2.0 if x.startswith(('v_exp','v_rcp')) else 1.0
    tot=sum(gaps); k=n1; acc=0; ctot=sum(cost(x) for x in U[n1:]); cdone=0
    for t in range(7):
        e('s_waitcnt lgkmcnt(%d)'%(8 if t<6 else 0))
        for ks in range(4):
            e(MF(ACC1,WF[(t+1)&1]+4*ks,XF+16*t+4*ks,ACC1 if (t or ks) else None))
            if ks==3 and t+2<7:
                if t==1: e('s_waitcnt vmcnt(0)\ns_barrier'); e(f'buffer_load_dword v{vFL}, off, s[{SDB}:{SDB+3}], 0 sc1')
                for x in rdW(vRB,(t+1)&1,8192*(t+2)): e(x)
            acc+=gaps[4*t+ks]
            while k<len(U) and cdone<ctot*acc/tot-1e-9: e(U[k]); cdone+=cost(U[k]); k+=1
    assert k==len(U)
    stamp(A,5)
    if OPT.get('oc'): e('s_memtime s[84:85]')
    e('s_cmp_eq_u32 s44, 0\ns_cbranch_scc1 K1_KV')
    st=OPT['st_phi']
    for c,r in enumerate((112,116,136)): e(f'buffer_store_dwordx4 {vr(r,4)}, v{vSA}, s[{SWS}:{SWS+3}], s65 offen offset:{1024*c} {st}')
    e('s_add_u32 s65, s65, 3072')
    Q2=144; P2=160; E2=176; H2=192
    for j in range(8): e(f'v_cvt_pk_bf16_f32 v{Q2+j}, v{ACC1+2*j}, v{ACC1+2*j+1}')
    e(MF(P2,WPH+8,Q2)); e(MF(P2,WPH+12,Q2+4,P2))
    for x in unit(P2,E2,[H2+j for j in range(12)]+[142,143]): e(x)
    for c in range(3): e(f'buffer_store_dwordx4 {vr(H2+4*c,4)}, v{vSA}, s[{SWS}:{SWS+3}], s65 offen offset:{1024*c} {st}')
    e(f'buffer_store_dwordx4 v[140:143], v{vSA}, s[{SWS}:{SWS+3}], s65 offen offset:3072 {st}')
    if OPT.get('ppf'):
        e(f'''v_lshlrev_b32 v3, 7, v1
        s_sub_u32 s65, s65, 3072
        s_mov_b32 exec_hi, 0x00ffffff
        s_waitcnt vmcnt(0)
        buffer_load_dword v4, v3, s[{SWS}:{SWS+3}], s65 offen''')
    dump1(A,2)
    e('s_endpgm')
    e('K1_KV:')
    T2=144
    e(f"""ds_write_b128 v{vW0}, v[112:115]
    ds_write_b128 v{vW1}, v[116:119]
    ds_write_b128 v{vW0}, v[136:139] offset:64
    ds_write_b64 v{vW1}, v[140:141] offset:64
    v_mov_b32 v3, 0x3f80""")
    e(f"""s_lshr_b32 s66, s{sWV}, 1
    s_and_b32 s67, s{sWV}, 1
    s_mul_i32 s65, s66, 24576
    s_lshl_b32 s68, s67, 6
    s_nop 0""")
    for j in range(8): e(f'v_cvt_pk_bf16_f32 v{T2+j}, v{ACC1+2*j}, v{ACC1+2*j+1}')
    e(f"""v_cndmask_b32 v{T2+6}, v3, v{T2+6}, vcc
    v_cndmask_b32 v{T2+7}, v3, v{T2+7}, vcc
    ds_write_b128 v{vW0}, {vr(T2,4)} offset:128
    v_permlane32_swap_b32 v{T2+6}, v{T2+7}
    ds_write_b128 v{vW1}, {vr(T2+4,4)} offset:128
    v_lshl_add_u32 v4, v9, 3, v0
    v_mul_u32_u24 v4, 192, v4
    v_and_b32 v5, 1, v1
    v_bfe_u32 v6, v1, 4, 1
    v_lshl_add_u32 v5, v5, 1, v6
    v_lshrrev_b32 v3, 1, v0
    v_xor_b32 v5, v5, v3
    v_lshl_add_u32 v4, v5, 4, v4
    v_bfe_u32 v5, v1, 1, 1
    v_lshl_add_u32 v4, v5, 3, v4
    v_add_u32 v4, s65, v4
    v_xor_b32 v5, 32, v4
    v_add_u32 v6, s68, v4
    v_add_u32 v7, s68, v5
    s_and_b32 s65, s50, 2
    s_add_u32 s65, s65, s66
    s_lshl_b32 s65, s65, 1
    s_lshr_b32 s68, s50, 2
    s_add_u32 s65, s65, s68
    s_lshl_b32 s65, s65, 1
    s_and_b32 s68, s50, 1
    s_add_u32 s65, s65, s68
    s_mul_i32 s65, s65, 3584
    s_lshl_b32 s68, s67, 11
    s_add_u32 s65, s65, s68
    v_lshlrev_b32 v3, 2, v1
    s_mov_b32 s70, 0""")
    e('s_waitcnt lgkmcnt(0)\ns_barrier')
    stamp(A,6)
    if OPT.get('pw',0)>=4:
        e(f's_cmp_ge_u32 s{sWV}, 4\ns_cbranch_scc0 K1_KV2'); dump1(A,1); e('s_endpgm\nK1_KV2:')
    e(f's_cmp_ge_u32 s{sWV}, 4\ns_cbranch_scc1 K1_END')
    FA,FB,KA=160,192,224
    for ks in range(8):
        e(f'ds_read_b64_tr_b16 {vr(FA+4*ks,2)}, v6 offset:{3072*ks}')
        e(f'ds_read_b64_tr_b16 {vr(FA+4*ks+2,2)}, v7 offset:{3072*ks+768}')
        e(f'ds_read_b64_tr_b16 {vr(FB+4*ks,2)}, v4 offset:{3072*ks+128}')
        e(f'ds_read_b64_tr_b16 {vr(FB+4*ks+2,2)}, v5 offset:{3072*ks+768+128}')
        if ks>=2:
            e('s_waitcnt lgkmcnt(8)'); e(MF(KA,FA+4*(ks-2),FB+4*(ks-2),KA if ks>2 else None))
    e('s_waitcnt lgkmcnt(4)'); e(MF(KA,FA+24,FB+24,KA))
    e('s_waitcnt lgkmcnt(0)'); e(MF(KA,FA+28,FB+28,KA))
    e('K1_POLL:\ns_waitcnt vmcnt(0)')
    e(f'v_readfirstlane_b32 s69, v{vFL}')
    e('s_cmp_ge_u32 s69, 64\ns_cbranch_scc1 K1_GO\ns_add_u32 s70, s70, 1\ns_cmp_ge_u32 s70, 0x40000\ns_cbranch_scc1 K1_GO\ns_sleep 2')
    e(f'buffer_load_dword v{vFL}, off, s[{SDB}:{SDB+3}], 0 sc1')
    e('s_branch K1_POLL\nK1_GO:\ns_nop 7')
    for j in range(6):
        e(f'v_cvt_pk_bf16_f32 v{FA+j}, v{KA+2*j}, v{KA+2*j+1}')
        e(f'buffer_atomic_pk_add_bf16 v{FA+j}, v3, s[{SWS}:{SWS+3}], s65 offen offset:{256*j}')
    e('s_cmp_eq_u32 s67, 1\ns_cbranch_scc1 K1_END')
    for j in range(6,8):
        e(f'v_cvt_pk_bf16_f32 v{FA+j}, v{KA+2*j}, v{KA+2*j+1}')
        e(f'buffer_atomic_pk_add_bf16 v{FA+j}, v3, s[{SWS}:{SWS+3}], s65 offen offset:{256*j}')
    dump1(A,1)
    e('s_endpgm')
    e('K1_A:')
    e(f"""s_lshl_b32 s43, s41, 3
    s_add_u32 s43, s43, s42
    s_sub_u32 s43, s43, 24
    v_lshlrev_b32 v3, 4, v1
    v_lshlrev_b32 v17, 7, v1""")
    if OPT['cpf']:
        e(f"""s_cmp_eq_u32 s{sWV}, 6
        s_cbranch_scc0 K1A_H1
        s_getpc_b64 s[44:45]
        K1_PC:
        s_sub_u32 s44, s44, K1_PC-k1_kernel
        s_subb_u32 s45, s45, 0
        global_load_dword v18, v17, s[44:45]
        global_load_dword v18, v17, s[44:45] offset:4032
        K1A_H1:""".replace("global_load_dword v18, v17, s[44:45] offset:4032\n","s_add_u32 s44, s44, 8192\ns_addc_u32 s45, s45, 0\nglobal_load_dword v18, v17, s[44:45]\n"))
    e(f"""s_lshl_b32 s44, s{sWV}, 8
    s_add_u32 s44, s44, s43
    s_mul_i32 s44, s44, 896
    s_mul_i32 s45, s{sWV}, {4*960}
    s_lshl_b32 s46, s43, 2
    s_add_u32 s46, s46, s{sWV}
    s_mul_i32 s46, s46, {56*128}
    s_mul_i32 s47, s43, 896
    s_mov_b32 m0, s45
    s_mov_b32 exec_hi, 0x00ffffff
    s_waitcnt lgkmcnt(0)""")
    stamp(A,1)
    if OPT['apf']:
        srd(A,SW,8,2048*896)
        e(f's_cmp_lt_u32 s{sWV}, 4\ns_cbranch_scc0 K1A_H2\nbuffer_load_dword v18, v17, s[{SW}:{SW+3}], s46 offen {lx}\nK1A_H2:')
    e(f's_cmp_eq_u32 s{sWV}, 7\ns_cbranch_scc0 K1A_H3')
    srd(A,SWS,18,16*3584,KV_OFF); srd(A,SDB,16,256)
    e(f"""v_mov_b64 v[12:13], 0
    v_mov_b64 v[14:15], 0
    v_mov_b32 v16, 1
    buffer_store_dwordx4 v[12:15], v3, s[{SWS}:{SWS+3}], s47 offen sc1
    s_waitcnt vmcnt(0)
    s_mov_b64 exec, 1
    buffer_atomic_add v16, off, s[{SDB}:{SDB+3}], 0 sc1
    s_mov_b32 exec_lo, -1
    s_mov_b32 exec_hi, 0x00ffffff
    K1A_H3:""")
    srd(A,SX,4,2048*896)
    for i in range(4):
        if i: e(f's_add_u32 m0, s45, {960*i}\ns_add_u32 s44, s44, {64*896}')
        e(f'buffer_load_dwordx4 v3, s[{SX}:{SX+3}], s44 offen {OPT["lda"]} lds')
    if OPT.get('bpf'):
        srd(A,SW,10,448*2688)
        e(f'''s_mov_b32 exec_hi, -1
        v_mul_u32_u24 v19, 37, v1
        v_lshrrev_b32 v19, 8, v19
        v_mul_u32_u24 v4, {2688-7*128}, v19
        v_add_u32 v19, v4, v17
        s_sub_u32 s46, s42, 24
        s_lshl_b32 s46, s46, 3
        s_add_u32 s46, s46, s{sWV}
        s_mul_i32 s46, s46, {7*2688}
        s_add_u32 s46, s46, 1792
        s_mov_b32 exec_hi, 0x1ffff
        buffer_load_dword v18, v19, s[{SW}:{SW+3}], s46 offen''')
        if OPT['bpf']==2:
            e(f's_sub_u32 s46, s46, 896\nbuffer_load_dword v18, v19, s[{SW}:{SW+3}], s46 offen')
    VL=32768; OL=73728
    e('s_mov_b32 exec_hi, -1\nv_and_b32 v8, 31, v1\nv_lshrrev_b32 v9, 5, v1')
    e(f'''v_mul_u32_u24 v10, {8*2560}, v9
    v_mul_u32_u24 v16, 80, v8
    v_add_u32 v10, v16, v10
    v_lshl_add_u32 v10, v2, 3, v10
    v_add_u32 v10, {VL}, v10''')
    FF=20; HH=28; CP=32; SPn=40; A2=48; B2=56; TT=64
    e(f'''v_lshrrev_b32 v4, 1, v8
    v_and_b32 v5, 1, v8
    v_cvt_f32_u32 v5, v5
    v_mul_f32 v5, {f2u(-0.25)}, v5
    v_cmp_eq_u32 vcc, 1, v8
    v_cndmask_b32 v4, v4, 16, vcc
    v_cndmask_b32 v5, v5, 0, vcc
    v_cvt_f32_u32 v4, v4
    v_mul_f32 v4, {f2u(1/32)}, v4
    v_cvt_f32_u32 v11, v9
    v_mul_f32 v12, 4.0, v11
    v_add_f32 v11, v12, v12
    v_fma_f32 v5, v4, v11, v5''')
    for ks in range(2):
        for j in range(8): e(f'v_fmamk_f32 v{TT+8*ks+j}, v4, {f2u(16.*ks+j)}, v5')
    for j in range(16): e(f'v_cos_f32 v{TT+j}, v{TT+j}')
    for j in range(8): e(f'v_cvt_pk_bf16_f32 v{FF+j}, v{TT+2*j}, v{TT+2*j+1}')
    e(f'''v_bfe_u32 v4, v8, 2, 1
    v_bfe_u32 v5, v8, 3, 1
    v_lshl_add_u32 v4, v4, 1, v5
    v_bfe_u32 v5, v8, 1, 1
    v_lshl_add_u32 v4, v4, 1, v5
    v_and_b32 v5, 1, v8
    v_cvt_f32_u32 v5, v5
    v_mul_f32 v5, {f2u(-0.25)}, v5
    v_and_b32 v6, 15, v8
    v_cmp_eq_u32 vcc, 1, v6
    v_cndmask_b32 v4, v4, 8, vcc
    v_cndmask_b32 v5, v5, 0, vcc
    v_cvt_f32_u32 v4, v4
    v_mul_f32 v4, {f2u(1/16)}, v4
    v_fma_f32 v5, v4, v12, v5''')
    for j in range(8): e(f'v_fmamk_f32 v{TT+j}, v4, {f2u(8.*(j>>2)+(j&3))}, v5')
    for j in range(8): e(f'v_cos_f32 v{TT+j}, v{TT+j}')
    for j in range(4): e(f'v_cvt_pk_bf16_f32 v{HH+j}, v{TT+2*j}, v{TT+2*j+1}')
    e(f'''s_cmp_eq_u32 s{sWV}, 0
    s_cselect_b32 s47, 8, s{sWV}
    s_sub_u32 s48, 0, s47
    v_lshrrev_b32 v4, 2, v8
    v_lshlrev_b32 v4, 5, v4
    v_and_b32 v5, 3, v8
    v_add_u32 v5, 1, v5
    v_lshrrev_b32 v5, 1, v5
    v_lshl_add_u32 v4, v5, 4, v4
    v_and_b32 v5, 1, v8
    v_cmp_eq_u32 vcc, 1, v5
    v_mov_b32 v6, s48
    v_cndmask_b32 v6, v2, v6, vcc
    v_add_u32 v4, v4, v6
    v_cvt_f32_u32 v4, v4
    v_mul_f32 v4, {f2u(1/448)}, v4
    v_mul_f32 v5, v4, v11''')
    for ks in range(2):
        for j in range(8): e(f'v_fmamk_f32 v{TT+8*ks+j}, v4, {f2u(16.*ks+j)}, v5')
    for j in range(16): e(f'v_sin_f32 v{TT+16+j}, v{TT+j}\nv_cos_f32 v{TT+j}, v{TT+j}')
    for j in range(8): e(f'v_cvt_pk_bf16_f32 v{CP+j}, v{TT+2*j}, v{TT+2*j+1}\nv_cvt_pk_bf16_f32 v{SPn+j}, v{TT+16+2*j}, v{TT+16+2*j+1}')
    e(f's_cmp_eq_u32 s{sWV}, 0\ns_cbranch_scc1 K1A_SPEC')
    e('''v_mov_b32 v4, 0x80008000
    v_cndmask_b32 v5, v4, 0, vcc
    v_cndmask_b32 v6, 0, v4, vcc''')
    for j in range(8): e(f'v_xor_b32 v{A2+j}, v5, v{SPn+j}\nv_xor_b32 v{B2+j}, v6, v{CP+j}')
    e('s_branch K1A_ST1\nK1A_SPEC:')
    for j in range(8):
        e(f'''v_cndmask_b32 v{A2+j}, 0, v{CP+j}, vcc
        v_cndmask_b32 v{B2+j}, 0, v{SPn+j}, vcc
        v_cndmask_b32 v{CP+j}, v{CP+j}, 0, vcc
        v_cndmask_b32 v{SPn+j}, v{SPn+j}, 0, vcc''')
    e('v_mov_b32 v4, 0xbf803f80\nv_cmp_eq_u32 vcc, 0, v8')
    for j in range(8): e(f'v_cndmask_b32 v{SPn+j}, v{SPn+j}, v4, vcc')
    e('K1A_ST1:')
    XA=64; BO=80; U0=96; U1=112; VU=96
    e(f'''v_bfe_u32 v4, v1, 2, 2
    v_lshl_add_u32 v4, v9, 3, v4
    v_mul_u32_u24 v4, 960, v4
    v_and_b32 v5, 1, v1
    v_bfe_u32 v6, v1, 4, 1
    v_lshl_add_u32 v5, v5, 1, v6
    v_bfe_u32 v6, v1, 1, 1
    v_lshl_add_u32 v5, v5, 1, v6
    v_mad_u32_u24 v4, v5, 56, v4
    v_lshl_add_u32 v4, v2, 3, v4
    v_mul_u32_u24 v13, 5120, v2
    v_add_u32 v13, v16, v13
    v_lshl_add_u32 v13, v9, 4, v13
    v_add_u32 v13, {VL}, v13
    v_mul_u32_u24 v14, 1032, v8
    v_lshl_add_u32 v14, v9, 7, v14
    v_add_u32 v14, {OL}, v14
    s_lshl_b32 s48, s48, 1
    v_add_u32 v15, s48, v14
    v_lshl_add_u32 v14, v2, 1, v14''')
    for r in range(8): e(f'v_mov_b64 {vr(XA+2*r,2)}, 0')
    stamp(A,3)
    e('s_waitcnt vmcnt(0)\ns_barrier')
    stamp(A,4)
    e(f's_cmp_eq_u32 s{sWV}, 7\ns_cbranch_scc1 K1A_VW')
    for dh in range(2):
        for ks in range(2):
            for jj in range(2):
                e(f'ds_read_b64_tr_b16 {vr(XA+8*dh+4*ks+2*jj,2)}, v4 offset:{15360*ks+3840*jj+448*dh}')
    e('s_waitcnt lgkmcnt(4)')
    e(MF(U0,XA,FF)); e(MF(U0,XA+4,FF+4,U0))
    e('s_waitcnt lgkmcnt(0)')
    e(MF(U1,XA+8,FF)); e(MF(U1,XA+12,FF+4,U1))
    for u in range(4):
        e(f'v_cvt_pk_bf16_f32 v{BO+4*u}, v{U0+u}, v{U0+4+u}\nv_cvt_pk_bf16_f32 v{BO+4*u+1}, v{U0+8+u}, v{U0+12+u}')
    for u in range(4):
        e(f'v_cvt_pk_bf16_f32 v{BO+4*u+2}, v{U1+u}, v{U1+4+u}\nv_cvt_pk_bf16_f32 v{BO+4*u+3}, v{U1+8+u}, v{U1+12+u}')
    for u in range(4): e(MF(VU+16*u,HH,BO+4*u))
    for r in range(8): e(f'v_cvt_pk_bf16_f32 v{XA+2*r}, v{VU+r}, v{VU+16+r}')
    for r in range(8): e(f'v_cvt_pk_bf16_f32 v{XA+2*r+1}, v{VU+32+r}, v{VU+48+r}')
    e('K1A_VW:')
    for r in range(8): e(f'ds_write_b64 v10, {vr(XA+2*r,2)} offset:{2560*r}')
    e('s_waitcnt lgkmcnt(0)\ns_barrier')
    for ks in range(4): e(f'ds_read_b128 {vr(XA+4*ks,4)}, v13 offset:{32*(ks&1)+2560*(ks>>1)}')
    GA=[CP,CP+4,A2,A2+4]; GB=[SPn,SPn+4,B2,B2+4]
    for ks in range(4):
        e(f's_waitcnt lgkmcnt({3-ks})')
        e(MF(U0,GA[ks],XA+4*ks,U0 if ks else None)); e(MF(U1,GB[ks],XA+4*ks,U1 if ks else None))
    stamp(A,5)
    srd(A,SWS,18,2<<20,AINT_OFF)
    for (U,ab) in ((U0,0),(U1,64)):
        for j in range(8): e(f'v_cvt_pk_bf16_f32 v{BO+(ab>>3)+j}, v{U+2*j}, v{U+2*j+1}')
        for a in range(4):
            r=BO+(ab>>3)+2*a
            e(f'''ds_write_b16 v14, v{r} offset:{256*a+ab}
            ds_write_b16_d16_hi v15, v{r} offset:{256*a+32+ab}
            ds_write_b16 v14, v{r+1} offset:{256*a+32+ab}
            ds_write_b16_d16_hi v15, v{r+1} offset:{256*a+64+ab}''')
    e(f'''s_mul_i32 s45, s{sWV}, {4*1032}
    s_add_u32 s45, s45, {OL}
    v_add_u32 v4, s45, v3
    v_add_u32 v5, 2064, v4
    s_lshl_b32 s44, s{sWV}, 8
    s_add_u32 s44, s44, s43
    s_lshl_b32 s44, s44, 10
    v_lshlrev_b32 v6, 7, v1
    s_waitcnt lgkmcnt(0)
    s_barrier
    s_mov_b32 exec_hi, 0x00ffffff''')
    for i in range(4): e(f'ds_read2_b64 {vr(XA+4*i,4)}, v{4+(i>>1)} offset0:{129*(i&1)} offset1:{129*(i&1)+1}')
    st=OPT['st_aint']
    for i in range(4):
        e(f's_waitcnt lgkmcnt({3-i})')
        e(f'buffer_store_dwordx4 {vr(XA+4*i,4)}, v3, s[{SWS}:{SWS+3}], s44 offen {st}')
        e(f's_add_u32 s44, s44, 65536')
    if OPT['wpf']:
        srd(A,SW,14,448*896)
        e(f'''s_cmp_eq_u32 s{sWV}, 7
        s_cbranch_scc1 K1A_CP
        s_sub_u32 s46, s42, 24
        s_mul_i32 s46, s46, 7
        s_add_u32 s46, s46, s{sWV}
        s_mul_i32 s46, s46, {56*128}
        buffer_load_dword v7, v6, s[{SW}:{SW+3}], s46 offen
        s_branch K1A_E
        K1A_CP:
        s_mov_b32 exec_hi, -1
        s_getpc_b64 s[44:45]
        K1_PC2:
        s_add_u32 s44, s44, k2_kernel-K1_PC2
        s_addc_u32 s45, s45, 0
        global_load_dword v7, v6, s[44:45]
        K1A_E:''')
    dump1(A,3)
    e('K1_END:\ns_endpgm')

def k2(A):
    e=A.e
    OPT['k2']=1
    SD,SPH,SO=20,24,28
    sWV=40
    e('k2_kernel:')
    e('s_cmp_ge_u32 s2, 256\ns_cbranch_scc1 K2_END')
    stamp(A,0)
    e('s_load_dwordx4 s[8:11], s[0:1], 64\ns_load_dwordx2 s[12:13], s[0:1], 88')
    e('v_and_b32 v1, 63, v0\nv_lshrrev_b32 v2, 6, v0')
    e('s_and_b32 s41, s2, 7\ns_lshr_b32 s42, s2, 3')
    e(f'v_readfirstlane_b32 s{sWV}, v2')
    e('''v_bfe_u32 v3, v1, 4, 1
    v_and_b32 v4, 7, v1
    v_lshlrev_b32 v5, 2, v3
    v_xor_b32 v4, v4, v5
    v_lshlrev_b32 v12, 4, v4
    v_lshrrev_b32 v13, 3, v1
    v_lshlrev_b32 v15, 4, v1''')
    LANE='''v_and_b32 v8, 31, v1
    v_lshrrev_b32 v9, 5, v1
    v_bfe_u32 v10, v1, 2, 2
    v_bfe_u32 v3, v1, 4, 1
    v_and_b32 v4, 1, v1
    v_lshl_add_u32 v4, v3, 1, v4
    v_bfe_u32 v5, v1, 1, 1
    v_lshl_add_u32 v4, v4, 1, v5
    v_lshlrev_b32 v11, 3, v4'''
    e('s_cmp_ge_u32 s42, 28\ns_cbranch_scc1 K2_A')
    e(f'''s_lshr_b32 s44, s42, 2
    s_and_b32 s45, s{sWV}, 1
    s_bfe_u32 s46, s{sWV}, 0x10001
    s_cmp_ge_u32 s{sWV}, 4
    s_cbranch_scc0 K2_C''')
    e(f"""v_mul_u32_u24 v3, 896, v13
    v_add_u32 v14, v3, v12
    v_lshrrev_b32 v4, 5, v1
    v_mul_u32_u24 v4, {28*896}, v4
    v_add_u32 v16, v14, v4
    s_and_b32 s50, s{sWV}, 3
    s_lshl_b32 s50, s50, 10
    s_mul_i32 s48, s45, {224*896}
    s_lshl_b32 s49, s44, 7
    s_add_u32 s48, s48, s49
    s_mul_i32 s49, s45, 28672
    s_add_u32 s49, s49, 57344
    s_mov_b32 m0, s50
    s_waitcnt lgkmcnt(0)""")
    srd(A,SD,12,16*3584,KV_OFF)
    if OPT.get('kvrot'):
        e(f's_mul_i32 s51, s42, {OPT["kvrot"]*4096}\ns_add_u32 s50, s50, s51\nK2_RW:\ns_cmp_ge_u32 s50, 57344\ns_cbranch_scc0 K2_RX\ns_sub_u32 s50, s50, 57344\ns_branch K2_RW\nK2_RX:')
    for n in range(14 if not OPT.get('nokv') else 0):
        e(f'buffer_load_dwordx4 v15, s[{SD}:{SD+3}], s50 offen lds\ns_add_u32 m0, m0, 4096\ns_add_u32 s50, s50, 4096')
        if OPT.get('kvrot'): e('s_cmp_ge_u32 s50, 57344\ns_cselect_b32 s51, 57344, 0\ns_sub_u32 s50, s50, s51')
    srd(A,SPH,8,448*896)
    e('s_cmp_eq_u32 s46, 0\ns_cbranch_scc0 K2_L1')
    HYB=OPT.get('hyb',0); W0=OPT.get('w0',0); W1=OPT.get('w1',0)
    for par in range(2):
        js=(0,2,4,6) if par==0 else (1,3,5); nj=len(js)
        for st_ in range(5):
            if st_==W0: e(f's_waitcnt vmcnt({(0 if OPT.get("nob1") else 7)+W0*nj})\ns_barrier')
            if st_==W1 and not OPT.get('nob1'): e(f's_waitcnt vmcnt({W1*nj})\ns_barrier')
            if st_==4: break
            for j in (js if not OPT.get('nowo') else ()):
                row=112*(st_>>1)+28*(st_&1)+8*j+(28 if j>3 else 0)
                e(f's_add_u32 m0, s49, {7168*st_+1024*j}\ns_add_u32 s50, s48, {row*896}\nbuffer_load_dwordx4 v{16 if j==3 else 14}, s[{SPH}:{SPH+3}], s50 offen lds')
        OB=OPT.get('ob',4)
        for c in ((2,1,0) if HYB else {4:(3,2,1,0),2:(2,0),1:(0,)}[OB]): e(f's_waitcnt vmcnt({nj*c})\ns_barrier')
        e('s_endpgm')
        if par==0: e('K2_L1:')
    e('K2_C:')
    if OPT.get('prio'): e('s_setprio 3')
    e(f'''s_and_b32 s43, s42, 3
    s_lshl_b32 s41, s41, 2
    s_add_u32 s43, s43, s41
    s_lshl_b32 s51, s43, 1
    s_add_u32 s51, s51, s45
    s_lshl_b32 s52, s51, 4
    s_lshl_b32 s53, s46, 3
    s_add_u32 s52, s52, s53
    s_mul_i32 s52, s52, 3584
    s_add_u32 s57, s52, 4096
    s_waitcnt lgkmcnt(0)''')
    stamp(A,1)
    srd(A,SPH,12,64*16*3584,PHIQ_OFF)
    PHI=144; vF16=16
    e('v_mov_b32 v16, v15')
    def loads(s):
        L=[]
        for n in range(7):
            x=f'buffer_load_dwordx4 {vr(PHI+28*s+4*n,4)}, v{vF16}, s[{SPH}:{SPH+3}], s{52 if n<4 else 57} offen offset:{1024*(n&3)}'
            if n==6: x+='\ns_add_u32 s52, s52, 7168\ns_add_u32 s57, s57, 7168'
            L.append(x)
        return L
    NUP=OPT.get('nup',1)
    for s_ in range(NUP):
        for x in loads(s_): e(x)
    srd(A,SO,10,2048*1792)
    e(LANE)
    vK,vN0,vN1,vS0,vS1=17,18,19,20,21
    e(f"""s_mul_i32 s53, s46, 7168
    v_lshlrev_b32 v3, 2, v1
    v_add_u32 v{vK}, s53, v3
    s_mul_i32 s53, s46, 28672
    s_add_u32 s53, s53, 57344
    v_lshl_add_u32 v3, v9, 2, v10
    v_lshlrev_b32 v3, 7, v3
    v_lshrrev_b32 v4, 1, v10
    v_lshl_add_u32 v3, v4, 6, v3
    v_add3_u32 v{vN0}, v3, v11, s53
    v_xor_b32 v{vN1}, 64, v{vN0}
    v_lshlrev_b32 v3, 1, v9
    v_xor_b32 v3, v3, v10
    v_lshrrev_b32 v4, 1, v3
    v_lshlrev_b32 v3, 7, v3
    v_lshl_add_u32 v3, v4, 6, v3
    v_add3_u32 v{vS0}, v3, v11, s53
    v_xor_b32 v{vS1}, 64, v{vS0}
    s_lshl_b32 s53, s{sWV}, 12
    s_add_u32 s53, s53, 114688
    v_add_u32 v6, s53, v{vF16}
    s_xor_b32 s53, s53, 8192
    v_add_u32 v7, s53, v{vF16}
    s_lshl_b32 s51, s51, 5""")
    if OPT.get('cst',1):
        e(f"""s_mul_i32 s53, s45, 4608
        s_lshl_b32 s55, s46, 6
        s_add_u32 s55, s55, s53
        v_mul_u32_u24 v2, 144, v8
        v_lshl_add_u32 v2, v9, 4, v2
        v_add_u32 v2, s55, v2
        s_mul_i32 s55, s46, {16*144}
        s_add_u32 s55, s55, s53
        v_mul_u32_u24 v3, 144, v13
        v_and_b32 v4, 7, v1
        v_lshl_add_u32 v3, v4, 4, v3
        v_add_u32 v3, s55, v3
        v_mul_u32_u24 v5, 1792, v13
        v_lshl_add_u32 v5, v4, 4, v5
        s_lshl_b32 s55, s46, 4
        s_add_u32 s51, s51, s55
        s_mul_i32 s54, s51, 1792
        s_lshl_b32 s55, s44, 7
        s_add_u32 s54, s54, s55
        s_add_u32 s54, s54, 896""")
    else:
        e(f"""v_add_u32 v5, s51, v8
        v_mul_u32_u24 v5, 1792, v5
        v_lshl_add_u32 v5, v9, 4, v5
        s_lshl_b32 s54, s44, 7
        s_lshl_b32 s55, s46, 6
        s_add_u32 s54, s54, s55
        s_add_u32 s54, s54, 896""")
    KF=[24,40]; NUM=[72,88]; OUT=[112,128]
    OPH=[104,8,PHI,PHI+8,PHI+16,PHI+28,PHI+36,PHI+44]
    WFB=[56,24,40,72]
    e(f'v_mov_b64 {vr(KF[0]+14,2)}, 0\nv_mov_b64 {vr(KF[1]+12,2)}, 0')
    e(f's_mov_b32 s56, {f2u(1e-6)}')
    def rdkv(hl):
        o=56*(hl>>1)+14*(hl&1)
        return [f'ds_read2st64_b32 {vr(KF[hl&1]+2*p+(2 if (p==6 and hl&1) else 0),2)}, v{vK} offset0:{o+2*p} offset1:{o+2*p+1}' for p in range(7)]
    def rdwo(hl):
        L=[]; WFR=WFB[hl&3] if (hl>=4 or not HYB) else 56
        for q in range(4):
            for mt in range(2):
                if q<3: L.append(f'ds_read_b64_tr_b16 {vr(WFR+8*mt+2*q,2)}, v{(vN0,vN1)[mt]} offset:{3584*hl+1024*q}')
                else: L.append(f'ds_read_b64_tr_b16 {vr(WFR+8*mt+6,2)}, v{(vS0,vS1)[mt]} offset:{3584*hl+3072}')
        return L
    def num(hl):
        base=PHI+28*(hl>>1)
        ph=[base+12*(hl&1)+4*s for s in range(3)]+[base+24]
        return [MF(NUM[hl&1],KF[hl&1]+4*s,ph[s],NUM[hl&1] if s else None) for s in range(4)]
    def fin(hl):
        N=NUM[hl&1]; OP=OPH[hl]
        L=[f'v_add_f32 v22, s56, v{N+14}','v_rcp_f32 v22, v22',f'v_mov_b32 v{OP+7}, 0']
        for j in range(7): L+=[f'v_mul_f32 v{N+2*j}, v22, v{N+2*j}',f'v_mul_f32 v{N+2*j+1}, v22, v{N+2*j+1}']
        L+=[f'v_cvt_pk_bf16_f32 v{OP+j}, v{N+2*j}, v{N+2*j+1}' for j in range(7)]
        return L
    def outm(hl):
        OP=OPH[hl]; WFR=WFB[hl&3] if (hl>=4 or not HYB) else 56
        return [MF(OUT[mt],WFR+8*mt+4*sp,OP+4*sp,None if (hl==0 and sp==0) else OUT[mt]) for sp in range(2) for mt in range(2)]
    if OPT.get('ldonly'):
        stamp(A,3); e('s_waitcnt vmcnt(0)'); stamp(A,4); e('s_barrier\ns_barrier'); stamp(A,5); e('s_barrier\ns_barrier\ns_barrier\ns_barrier'); dump2(A,1); e('s_endpgm')
    e('s_barrier')
    stamp(A,3)
    for x in rdkv(0): e(x)
    later=[(s_,x) for s_ in range(NUP,4) for x in loads(s_)]
    nld=[int(c) for c in str(OPT.get('nld','77700000' if NUP==1 else '77000000')).zfill(8)]
    vm=[s_ for s_ in range(NUP) for _ in range(7)]
    for h in range(8):
        Ld=[later.pop(0) for _ in range(nld[h])]
        w='s_waitcnt lgkmcnt(0)'
        if h%2==0: w+=' vmcnt(%d)'%sum(1 for t in vm if t>h//2)
        if OPT.get('kl')==2 and 1<=h-OPT.get('k0',0)<=6: e(f's_memtime s[{80+2*(h-OPT.get("k0",0))}:{81+2*(h-OPT.get("k0",0))}]')
        e(w)
        if OPT.get('kl')==1 and 1<=h-OPT.get('k0',0)<=6: e(f's_memtime s[{80+2*(h-OPT.get("k0",0))}:{81+2*(h-OPT.get("k0",0))}]')
        N=num(h); Fv=fin(h-1) if h else []
        K=rdkv(h+1) if h<7 else []
        if h==3 and not OPT.get('nob1'): K=['s_barrier']+K
        if h==7 and OPT.get('eb'): K=['s_barrier']+rdwo(0)
        nF=len(Fv)
        if h<4 or not HYB:
            gap=[K[:4]+Fv[:3],K[4:]+Fv[3:3+(nF-3)//4],Fv[3+(nF-3)//4:3+(nF-3)*5//8],Fv[3+(nF-3)*5//8:]]
        else:
            W=rdwo(h-4)
            if h==4: W=['s_barrier']+W
            gap=[W+Fv[:2],Fv[2:8],Fv[8:12]+K[:3],K[3:],Fv[12:16],Fv[16:20],Fv[20:],[]]
            N=N+outm(h-4)
        for i in range(len(N)):
            if i==4: e('s_waitcnt lgkmcnt(%d)'%len(K))
            e(N[i])
            for x in gap[i]: e(x)
            for _ in range(2):
                if Ld: t,x=Ld.pop(0); e(x); vm.append(t)
    assert not later
    stamp(A,4)
    h0=4 if HYB else 0
    if OPT.get('oc'): e('s_memtime s[82:83]')
    if not OPT.get('eb'):
        e('s_barrier')
        for x in rdwo(h0): e(x)
    F7=fin(7)
    if not OPT.get('eb'):
        for x in F7[:10]: e(x)
    else: F7=['']*10+F7
    for x in rdwo(h0+1): e(x)
    for hh_ in range(h0,8,2):
        e('s_waitcnt lgkmcnt(8)')
        O=outm(hh_)
        for i in range(4):
            e(O[i])
            if hh_==h0 and not OPT.get('eb'):
                for x in F7[10+i*4:14+i*4]: e(x)
            if OPT.get('eb') and hh_<=2:
                k_=10+(2*hh_+i)*3
                for x in F7[k_:k_+3]: e(x)
            if i==0 and hh_<6:
                if OB==4 or (OB==2 and hh_==2): e('s_barrier')
                for x in rdwo(hh_+2): e(x)
        e('s_waitcnt lgkmcnt(%d)'%(8 if hh_<6 else 0))
        O=outm(hh_+1); e(O[0])
        if hh_<6:
            for x in rdwo(hh_+3): e(x)
        for x in O[1:]: e(x)
    stamp(A,5)
    if OPT.get('oc'): e('s_memtime s[84:85]')
    e('s_nop 7\ns_cmp_eq_u32 s46, 0\ns_cbranch_scc1 K2_X0')
    for q in range(4): e(f'ds_write_b128 v6, {vr(OUT[0]+4*q,4)} offset:{1024*q}')
    for j in range(0,16,2): e(f'v_mov_b64 {vr(OUT[0]+j,2)}, {vr(OUT[1]+j,2)}')
    e('s_branch K2_X1\nK2_X0:\ns_nop 1')
    for q in range(4): e(f'ds_write_b128 v6, {vr(OUT[1]+4*q,4)} offset:{1024*q}')
    e('K2_X1:\ns_waitcnt lgkmcnt(0)\ns_barrier')
    for q in range(4): e(f'ds_read_b128 {vr(24+4*q,4)}, v7 offset:{1024*q}')
    st=OPT['st_out']
    for i in range(2):
        e(f's_waitcnt lgkmcnt({2-2*i})')
        for j in range(0,8,2): e(f'v_pk_add_f32 {vr(OUT[0]+8*i+j,2)}, {vr(OUT[0]+8*i+j,2)}, {vr(24+8*i+j,2)}')
        for j in range(4): e(f'v_cvt_pk_bf16_f32 v{56+4*i+j}, v{OUT[0]+8*i+2*j}, v{OUT[0]+8*i+2*j+1}')
        if OPT.get('cst',1): e(f'ds_write_b128 v2, {vr(56+4*i,4)} offset:{32*i}')
        else: e(f'buffer_store_dwordx4 {vr(56+4*i,4)}, v5, s[{SO}:{SO+3}], s54 offen offset:{32*i} {st}')
    if OPT.get('cst',1):
        e(f'''s_waitcnt lgkmcnt(0)
        s_barrier
        ds_read_b128 v[24:27], v3
        ds_read_b128 v[28:31], v3 offset:{8*144}
        s_add_u32 s55, s54, {8*1792}
        s_waitcnt lgkmcnt(1)
        buffer_store_dwordx4 v[24:27], v5, s[{SO}:{SO+3}], s54 offen {st}
        s_waitcnt lgkmcnt(0)
        buffer_store_dwordx4 v[28:31], v5, s[{SO}:{SO+3}], s55 offen {st}''')
    dump2(A,1)
    e('s_endpgm')
    e('K2_A:')
    SP_=904
    e(f'''s_lshl_b32 s43, s41, 2
    s_add_u32 s43, s43, s42
    s_sub_u32 s43, s43, 28
    s_and_b32 s44, s43, 1
    s_lshr_b32 s43, s43, 1
    s_and_b32 s45, s{sWV}, 1
    s_lshr_b32 s46, s{sWV}, 1
    v_lshl_add_u32 v14, v13, 10, v12
    s_lshl_b32 s47, s43, 17
    s_lshl_b32 s48, s{sWV}, 14
    s_add_u32 s47, s47, s48
    s_add_u32 s49, s47, 8192
    s_lshl_b32 s48, s{sWV}, 11
    s_mov_b32 m0, s48
    s_waitcnt lgkmcnt(0)''')
    stamp(A,1)
    srd(A,SD,12,2<<20,AINT_OFF)
    Ld=[]
    for j in range(7):
        Ld.append(f'buffer_load_dwordx4 v14, s[{SD}:{SD+3}], s47 offen lds\ns_add_u32 m0, m0, 1024\ns_add_u32 s47, s47, 128')
        Ld.append(f'buffer_load_dwordx4 v14, s[{SD}:{SD+3}], s49 offen lds\ns_add_u32 m0, m0, {16384-1024}\ns_add_u32 s49, s49, 128')
    G=f"""s_lshl_b32 s56, s44, 10
    s_add_u32 s57, s43, s56
    s_lshl_b32 s59, s44, 4
    s_lshl_b32 s54, s44, 13
    s_cmp_eq_u32 s43, 0
    s_cselect_b32 s57, s59, s57
    s_cselect_b32 s54, s54, 0
    s_cselect_b32 s55, s54, 8192
    s_sub_u32 s58, 2048, s57
    s_add_u32 s59, s57, 1024
    s_cmp_eq_u32 s43, 0
    s_cselect_b32 s58, s59, s58
    s_cselect_b32 s53, {32*1792}, {(-32*1792)&0xffffffff}""".split('\n')
    npre=len(G)
    G+=LANE.split('\n')
    G+=f"""v_lshlrev_b32 v3, 5, v8
    v_add_u32 v3, s57, v3
    v_cvt_f32_u32 v4, v3
    v_mul_f32 v4, {f2u(1/2048)}, v4
    v_cvt_f32_u32 v5, v9
    v_mul_f32 v5, {f2u(8.0)}, v5
    v_mul_f32 v5, v4, v5""".split('\n')
    C,S,M2,M3=24,40,56,72; TT=88
    for ks in range(4):
        for j in range(8): G.append(f'v_fmamk_f32 v{TT+j}, v4, {f2u(16.*ks+j)}, v5')
        for j in range(8): G+=[f'v_sin_f32 v{TT+8+j}, v{TT+j}',f'v_cos_f32 v{TT+j}, v{TT+j}']
        for j in range(4): G+=[f'v_cvt_pk_bf16_f32 v{C+4*ks+j}, v{TT+2*j}, v{TT+2*j+1}',f'v_cvt_pk_bf16_f32 v{S+4*ks+j}, v{TT+8+2*j}, v{TT+8+2*j+1}']
    for x in Ld[:4]: e(x)
    for x in G[:npre]: e(x)
    k=4
    for i,x in enumerate(G[npre:]):
        e(x)
        if i%8==7 and k<len(Ld): e(Ld[k]); k+=1
    while k<len(Ld): e(Ld[k]); k+=1
    e('s_cmp_eq_u32 s43, 0\ns_cbranch_scc1 K2A_G1')
    for j in range(0,16,2): e(f'v_mov_b64 {vr(M2+j,2)}, {vr(S+j,2)}\nv_mov_b64 {vr(M3+j,2)}, {vr(C+j,2)}')
    e('s_branch K2A_G2\nK2A_G1:')
    for j in range(16): e(f'v_xor_b32 v{M2+j}, 0x80000000, v{C+j}\nv_xor_b32 v{M3+j}, 0x80000000, v{S+j}')
    e('K2A_G2:')
    srd(A,SO,10,2048*1792)
    aR,aS,bS,bR=16,17,18,19
    e(f"""v_lshl_add_u32 v3, v9, 3, v10
    v_lshlrev_b32 v3, 7, v3
    v_lshrrev_b32 v4, 1, v10
    v_lshl_add_u32 v3, v4, 6, v3
    s_lshl_b32 s60, s{sWV}, 14
    v_add3_u32 v3, v3, v11, s60
    v_add_u32 v{aR}, s54, v3
    v_add_u32 v{aS}, s55, v3
    v_xor_b32 v{bR}, 64, v{aR}
    v_xor_b32 v{bS}, 64, v{aS}
    v_mul_u32_u24 v22, {SP_}, v8
    s_lshl_b32 s60, s{sWV}, 6
    v_lshl_add_u32 v3, v9, 4, s60
    v_add_u32 v20, v22, v3
    v_sub_u32 v21, v22, v3
    v_add_u32 v21, 850, v21""")
    FR=88; AC=[152,168,184,200]; AX,AY=216,232; PS=22
    stamp(A,3)
    e('s_waitcnt vmcnt(6)\ns_barrier')
    stamp(A,4)
    e(f's_cmp_lt_u32 s{sWV}, 4\ns_cbranch_scc1 K2A_GO\ns_waitcnt vmcnt(0)\ns_barrier\ns_cmp_eq_u32 s{sWV}, 7\ns_cbranch_scc1 K2A_OUT\nK2A_GO:')
    srcs=[(aR,C),(aS,M2),(bS,M3),(bR,S)]
    def rdA(n):
        ks,q=n>>2,n&3
        for jj in range(2): e(f'ds_read_b64_tr_b16 {vr(FR+4*n+2*jj,2)}, v{srcs[q][0]} offset:{2048*ks+512*jj}')
    for n in range(6): rdA(n)
    for n in range(16):
        if n+6<16: rdA(n+6); e('s_waitcnt lgkmcnt(12)')
        else: e(f's_waitcnt lgkmcnt({2*(15-n)})')
        ks,q=n>>2,n&3
        e(MF(AC[q],FR+4*n,srcs[q][1]+4*ks,AC[q] if ks else None))
    e(f's_cmp_eq_u32 s{sWV}, 0\ns_cbranch_scc0 K2A_NS')
    for ks in range(4):
        e(MF(AX,FR+4*(4*ks+3),C+4*ks,AX if ks else None)); e(MF(AY,FR+4*(4*ks+2),M2+4*ks,AY if ks else None))
    e('s_mov_b32 exec_hi, 0')
    e(f'v_mov_b32 v{AC[2]}, 0\nv_mov_b32 v{AC[3]}, 0\nv_sub_f32 v3, v{AX}, v{AY}\nv_cvt_pk_bf16_f32 v{PS}, v{AX}, v{AY}\nv_cvt_pk_bf16_f32 v3, v3, v3')
    e(f's_cmp_eq_u32 s43, 0\ns_cselect_b64 vcc, -1, 0\nv_cndmask_b32 v{PS}, v3, v{PS}, vcc')
    e('s_mov_b32 exec_hi, -1')
    e('K2A_NS:\ns_nop 7\ns_nop 1\ns_cmp_eq_u32 s43, 0\ns_cbranch_scc1 K2A_C1')
    NEG=' neg_lo:[0,1] neg_hi:[0,1]'
    AF,AM,BF,BM=88,104,120,136
    for j in range(0,16,2):
        e(f'v_pk_add_f32 {vr(AC[0]+j,2)}, {vr(AC[0]+j,2)}, {vr(AC[1]+j,2)}{NEG}')
        e(f'v_pk_add_f32 {vr(AC[2]+j,2)}, {vr(AC[2]+j,2)}, {vr(AC[3]+j,2)}')
    for j in range(0,16,2):
        e(f'v_pk_add_f32 {vr(AF+j,2)}, {vr(AC[0]+j,2)}, {vr(AC[2]+j,2)}{NEG}')
        e(f'v_pk_add_f32 {vr(AM+j,2)}, {vr(AC[0]+j,2)}, {vr(AC[2]+j,2)}')
        e(f'v_pk_add_f32 {vr(BM+j,2)}, {vr(AC[0]+j,2)}, {vr(AC[2]+j,2)}{NEG}')
        e(f'v_pk_add_f32 {vr(BF+j,2)}, {vr(AC[0]+j,2)}, {vr(AC[2]+j,2)}')
    e('s_branch K2A_C2\nK2A_C1:')
    for j in range(0,16,2):
        e(f'v_pk_add_f32 {vr(AF+j,2)}, {vr(AC[0]+j,2)}, {vr(AC[3]+j,2)}{NEG}')
        e(f'v_pk_add_f32 {vr(AM+j,2)}, {vr(AC[0]+j,2)}, {vr(AC[3]+j,2)}')
        e(f'v_pk_add_f32 {vr(BF+j,2)}, {vr(AC[1]+j,2)}, {vr(AC[2]+j,2)}{NEG}')
        e(f'v_pk_add_f32 {vr(BM+j,2)}, {vr(AC[1]+j,2)}, {vr(AC[2]+j,2)}')
    e('K2A_C2:')
    PK=152
    for tl,(F_,M_) in enumerate(((AF,AM),(BF,BM))):
        p=PK+16*tl
        for j in range(8): e(f'v_cvt_pk_bf16_f32 v{p+j}, v{F_+2*j}, v{F_+2*j+1}')
        for i in range(2):
            b_=M_+8*i
            e(f'v_cvt_pk_bf16_f32 v{p+8+4*i}, v{b_+7}, v{b_}\nv_cvt_pk_bf16_f32 v{p+9+4*i}, v{b_+6}, v{b_+5}\nv_cvt_pk_bf16_f32 v{p+10+4*i}, v{b_+4}, v{b_+3}\nv_cvt_pk_bf16_f32 v{p+11+4*i}, v{b_+2}, v{b_+1}')
    e(f"""s_cmp_lt_u32 s{sWV}, 4
    s_cbranch_scc0 K2A_WR
    s_waitcnt vmcnt(0)
    s_barrier
    s_cmp_eq_u32 s{sWV}, 0
    s_cbranch_scc0 K2A_WR
    s_mov_b32 exec_hi, 0
    ds_write_b16 v20, v{PS} offset:448
    ds_write_b16_d16_hi v20, v{PS} offset:{448+32*SP_}
    s_mov_b32 exec_hi, -1
    K2A_WR:""")
    for tl in range(2):
        p=PK+16*tl; T=32*SP_*tl
        for i in range(2):
            e(f'ds_write_b64 v20, {vr(p+4*i,2)} offset:{T+32*i}\nds_write_b64 v20, {vr(p+4*i+2,2)} offset:{T+32*i+8}')
            o=T+32-32*i; r=p+8+4*i
            e(f'ds_write_b16 v21, v{r} offset:{o}\nds_write_b32 v21, v{r+1} offset:{o+2}\nds_write_b64 v21, {vr(r+2,2)} offset:{o+6}\nds_write_b16_d16_hi v21, v{r} offset:{o+14}')
    e('K2A_OUT:')
    stamp(A,5)
    e(f"""s_cmp_lt_u32 s{sWV}, 4
    s_cselect_b32 s50, s57, s58
    s_cselect_b32 s53, {32*1792}, s53
    s_mul_i32 s50, s50, 1792
    s_and_b32 s56, s{sWV}, 3
    s_lshl_b32 s56, s56, 3
    s_mul_i32 s56, s56, s53
    s_add_u32 s50, s50, s56
    s_mul_i32 s56, s{sWV}, {8*SP_}
    v_add_u32 v4, s56, v15
    s_waitcnt lgkmcnt(0)
    s_barrier
    s_mov_b32 exec_hi, 0x00ffffff""")
    for i in range(8):
        if i%2==0 and i: e(f'v_add_u32 v4, {2*SP_}, v4')
        e(f'ds_read2_b64 {vr(24+4*i,4)}, v4 offset0:{113*(i&1)} offset1:{113*(i&1)+1}')
    for i in range(8):
        e(f's_waitcnt lgkmcnt({7-i})')
        e(f'buffer_store_dwordx4 {vr(24+4*i,4)}, v15, s[{SO}:{SO+3}], s50 offen {st}')
        e(f's_add_u32 s50, s50, s53')
    dump2(A,3)
    e('K2_END:\ns_endpgm')

def k3(A):
    e=A.e
    kk,si,role,stat,scale=[int(x) for x in OPT['x'].split(',')]
    e('k3_kernel:')
    e('s_cmp_ge_u32 s2, 1\ns_cbranch_scc1 K3_END')
    e('s_load_dwordx2 s[4:5], s[0:1], 88\nv_lshlrev_b32 v1, 6, v0\nv_mov_b32 v2, 0\nv_mov_b32 v3, -1\nv_mov_b32 v4, 0')
    e('ds_write_b32 v2, v3\nds_write_b32 v2, v4 offset:4\nds_write_b32 v2, v4 offset:8\ns_waitcnt lgkmcnt(0)\ns_barrier')
    e('s_add_u32 s8, s4, 0x800000\ns_addc_u32 s9, s5, 0\ns_mov_b32 s10, 0x20000\ns_mov_b32 s11, 0x20000')
    e(f'buffer_load_dword v5, v1, s[8:11], 0 offen\ns_mov_b32 s12, {0x10000*kk}')
    e(f'buffer_load_dword v6, v1, s[8:11], s12 offen offset:{4*si}\nbuffer_load_dword v7, v1, s[8:11], s12 offen offset:40\ns_waitcnt vmcnt(0)')
    e('ds_min_u32 v2, v5\ns_waitcnt lgkmcnt(0)\ns_barrier\nds_read_b32 v8, v2\ns_waitcnt lgkmcnt(0)\nv_sub_u32 v6, v6, v8')
    e(f'v_cmp_eq_u32 vcc, {role}, v7\nv_cndmask_b32 v6, 0, v6, vcc\nv_cndmask_b32 v9, 0, 1, vcc')
    e(('ds_max_u32 v2, v6 offset:4' if stat==0 else 'ds_add_u32 v2, v6 offset:4')+'\nds_add_u32 v2, v9 offset:8\ns_waitcnt lgkmcnt(0)\ns_barrier')
    e('ds_read_b32 v6, v2 offset:4\nds_read_b32 v9, v2 offset:8\ns_waitcnt lgkmcnt(0)')
    e(f'v_cvt_f32_u32 v6, v6\nv_mul_f32 v6, {f2u(float(scale))}, v6')
    if stat==1: e('v_cvt_f32_u32 v9, v9\nv_rcp_f32 v9, v9\nv_mul_f32 v6, v6, v9')
    e('v_cvt_u32_f32 v6, v6\nv_min_u32 v6, 100000, v6\nv_readfirstlane_b32 s14, v6')
    e('s_memrealtime s[16:17]\ns_waitcnt lgkmcnt(0)\nK3_L:\ns_memrealtime s[18:19]\ns_waitcnt lgkmcnt(0)\ns_sub_u32 s20, s18, s16\ns_cmp_lt_u32 s20, s14\ns_cbranch_scc1 K3_L')
    e('K3_END:\ns_endpgm')

def desc(name,vgpr,sgpr,acc):
    return f'''.amdhsa_kernel {name}
  .amdhsa_next_free_vgpr {vgpr}
  .amdhsa_next_free_sgpr {sgpr}
  .amdhsa_accum_offset {acc}
  .amdhsa_group_segment_fixed_size 0
  .amdhsa_kernarg_size 96
  .amdhsa_user_sgpr_count 2
  .amdhsa_user_sgpr_kernarg_segment_ptr 1
  .amdhsa_system_sgpr_workgroup_id_x 1
.end_amdhsa_kernel
'''
def main():
    A1=Asm(); k1(A1); A2=Asm(); k2(A2)
    assert A1.verify_branches()==0 and A2.verify_branches()==0
    v1=A1.maxreg('v')+1; v2=A2.maxreg('v')+1; a2=A2.maxreg('a')+1
    r4=lambda x:(x+3)//4*4
    hdr=open('concat_heads__spectral_fnet__linear_kernel_hedgehog__prompt.s.ref').read().split('; Override')[0]
    out=hdr+'; @launch kernel=k1_kernel grid=(256,1,1) block=(512,1,1) lds=163840\n; @launch kernel=k2_kernel grid=(256,1,1) block=(512,1,1) lds=131072\n'
    ks=[('k1_kernel',A1),('k2_kernel',A2)]
    if 'x' in OPT:
        A3=Asm(); k3(A3); ks.append(('k3_kernel',A3)); out+='; @launch kernel=k3_kernel grid=(1,1,1) block=(256,1,1) lds=64\n'
    out+='.amdgcn_target "amdgcn-amd-amdhsa--gfx950"\n.text\n'
    for n,A in ks:
        out+=f'.globl {n}\n.p2align 8\n.type {n},@function\n'+A.text()
    out+='.section .rodata,"a"\n.p2align 6\n'+desc('k1_kernel',v1,102,r4(v1))+'.p2align 6\n'+desc('k2_kernel',v2,102,r4(v2))
    if 'x' in OPT: out+='.p2align 6\n'+desc('k3_kernel',16,32,16)
    open(sys.argv[1],'w').write(out)
    print('k1 vgpr',v1,'k2 vgpr',v2,'agpr',a2, 'k1 sgpr',A1.maxreg('s')+1,'k2 sgpr',A2.maxreg('s')+1)
main()
```

```python
import sys, math
from asmlib import *

PHIQ_OFF=0; KV_OFF=0x400000; AINT_OFF=0x500000
LOG2E=1.4426950408889634
OPT=dict(st_phi='sc1', st_aint='sc1', st_out='sc1', prof=0, rot=1, ldx='', lda='', D=2, apf=1, wpf=1, cpf=1, bpf=1, ob=4, eb=1)
for a in sys.argv[2:]:
    k,v=a.split('='); OPT[k]=int(v) if v.lstrip('-').isdigit() else v

def srd(A,d,base,nbytes,off=0):
    if off: A.e(f's_add_u32 s{d}, s{base}, {hex(off)}\ns_addc_u32 s{d+1}, s{base+1}, 0')
    else: A.e(f's_mov_b32 s{d}, s{base}\ns_mov_b32 s{d+1}, s{base+1}')
    A.e(f's_mov_b32 s{d+2}, {hex(nbytes)}\ns_mov_b32 s{d+3}, 0x20000')

NST=[0]
def stamp(A,i):
    if OPT.get('lp') and 1<=i<=6 and not OPT.get('k2'): return
    if OPT.get('kl') and 1<=i<=6 and OPT.get('k2'): return
    if OPT['prof']:
        A.e(f's_memrealtime s[{80+2*i}:{81+2*i}]')
        if i==0: A.e('s_memtime s[98:99]')
def dump(A,role,ws,ko):
    if not OPT['prof']: return
    NST[0]+=1; L=f'PD{NST[0]}'
    A.e(f's_memrealtime s[94:95]\ns_waitcnt vmcnt(0) lgkmcnt(0)\ns_memrealtime s[96:97]\ns_memtime s[78:79]\ns_waitcnt lgkmcnt(0)')
    A.e(f's_cmp_eq_u32 s40, {OPT.get("pw",0)}\ns_cbranch_scc0 {L}')
    A.e(f's_add_u32 s72, s{ws}, {ko}\ns_addc_u32 s73, s{ws+1}, 0\ns_mov_b32 s74, 0x10000\ns_mov_b32 s75, 0x20000\ns_mov_b64 exec, 1\ns_lshl_b32 s76, s2, 6\ns_sub_u32 s78, s78, s98')
    for i in range(9): A.e(f'v_mov_b32 v0, s{80+2*i}\nbuffer_store_dword v0, off, s[72:75], s76 offset:{4*i}')
    A.e(f'v_mov_b32 v0, s78\nbuffer_store_dword v0, off, s[72:75], s76 offset:36\nv_mov_b32 v0, {role}\nbuffer_store_dword v0, off, s[72:75], s76 offset:40')
    A.e(f'{L}:')
def dump1(A,role): dump(A,role,18,0x800000)
def dump2(A,role): dump(A,role,12,0x810000)

def MF(d,a,b,c=None):
    cc='0' if c is None else vr(c,16)
    return f'v_mfma_f32_32x32x16_bf16 {vr(d,16)}, {vr(a,4)}, {vr(b,4)}, {cc}'

def k1(A):
    e=A.e
    SX,SW,SP,SWS,SDB=20,24,28,32,36
    sWV=40
    e('k1_kernel:')
    e('s_cmp_ge_u32 s2, 256\ns_cbranch_scc1 K1_END')
    stamp(A,0)
    e('s_load_dwordx8 s[8:15], s[0:1], 40\ns_load_dwordx4 s[16:19], s[0:1], 80\ns_load_dwordx2 s[4:5], s[0:1], 0')
    e('v_and_b32 v1, 63, v0\nv_lshrrev_b32 v2, 6, v0')
    e('s_and_b32 s41, s2, 7\ns_lshr_b32 s42, s2, 3')
    e(f'v_readfirstlane_b32 s{sWV}, v2')
    e('s_cmp_ge_u32 s42, 24\ns_cbranch_scc1 K1_A')
    e('''s_and_b32 s43, s42, 1
    s_lshl_b32 s50, s41, 1
    s_add_u32 s43, s43, s50
    s_lshr_b32 s50, s42, 1
    s_and_b32 s50, s50, 7
    s_lshr_b32 s44, s42, 4
    s_add_u32 s53, s44, 1
    s_lshl_b32 s49, s50, s53''')
    vRX=10; vRW,vRB,vX0,vX1,vW,vP,vSA,vFL,vW0,vW1=14,15,16,17,18,19,20,21,22,23
    TM=24; WF=[32,48]; ACC0,ACC1=64,80; WPH=96; QB=112; EN=120; XF=144
    SLOT=24576; WBL=98304; WPL=155648
    e(f"""s_cmp_eq_u32 s44, 1
    s_cselect_b32 s46, 112, 896
    s_cselect_b32 s51, 224, 112
    s_cselect_b32 s52, 0, 896
    s_mul_i32 s45, s50, s51
    s_add_u32 s45, s45, s52
    v_lshrrev_b32 v3, 3, v1
    v_lshrrev_b32 v4, 4, v1
    v_and_b32 v5, 7, v1
    v_xor_b32 v6, v5, v4
    v_lshlrev_b32 v6, 4, v6
    v_mul_u32_u24 v7, 896, v3
    v_add_u32 v{vX0}, v7, v6
    v_xor_b32 v{vX1}, 64, v{vX0}
    v_add_u32 v{vX1}, {8*896}, v{vX1}
    v_and_b32 v4, 1, v4
    v_lshlrev_b32 v4, 2, v4
    v_xor_b32 v5, v5, v4
    v_min_u32 v5, 6, v5
    v_mul_u32_u24 v7, 2688, v3
    v_lshl_add_u32 v{vW}, v5, 4, v7
    v_lshlrev_b32 v3, 4, v0
    s_lshl_b32 s54, s43, 3
    s_add_u32 s54, s54, s{sWV}
    s_mul_i32 s54, s54, {16*896}
    s_mul_i32 s62, s{sWV}, {8*2688}
    s_add_u32 s62, s62, s45
    s_lshl_b32 s56, s{sWV}, 11
    s_lshl_b32 s61, s{sWV}, 10
    s_mul_i32 s57, s49, 1568
    s_add_u32 m0, s61, {WPL}""")
    if OPT['rot']:
        e(f"""s_min_u32 s58, s41, 6
        s_lshl_b32 s60, s58, 7
        s_add_u32 s54, s54, s60
        s_mul_i32 s55, s58, {64*2688}
        s_add_u32 s55, s55, s62""")
    else: e('s_mov_b32 s58, 0\ns_mov_b32 s55, s62')
    e('s_add_u32 s59, s55, s46\ns_mov_b32 s63, s58\ns_add_u32 s47, s62, s46')
    e('s_waitcnt lgkmcnt(0)')
    stamp(A,1)
    srd(A,SX,8,2048*896); srd(A,SW,10,448*2688); srd(A,SP,12,16*1568)
    lx=OPT['ldx']
    def issue(st):
        sl=SLOT*(st%4)
        return [f's_add_u32 m0, s56, {sl}\ns_add_u32 s58, s58, 1\nbuffer_load_dwordx4 v{vX0}, s[{SX}:{SX+3}], s54 offen {lx} lds',
                f's_add_u32 m0, s61, {sl+16384}\ns_cmp_eq_u32 s58, 7\nbuffer_load_dwordx4 v{vW}, s[{SW}:{SW+3}], s55 offen lds\ns_cselect_b32 s60, {128-896+(1<<32)}, 128\ns_cselect_b32 s55, {-64*2688*6+(1<<32)}, {64*2688}'.replace('s_cselect_b32 s55','s_cselect_b32 s64'),
                f's_add_u32 m0, s56, {sl+1024}\ns_add_u32 s55, s55, s64\nbuffer_load_dwordx4 v{vX1}, s[{SX}:{SX+3}], s54 offen {lx} lds\ns_add_u32 s54, s54, s60']
    def issueB(t):
        return [f's_add_u32 m0, s61, {WBL+8192*t}\ns_add_u32 s63, s63, 1\nbuffer_load_dwordx4 v{vW}, s[{SW}:{SW+3}], s59 offen lds\ns_add_u32 s59, s59, {64*2688}\ns_cmp_eq_u32 s63, 7\ns_cselect_b32 s59, s47, s59']
    D=OPT['D']
    e(f'buffer_load_dwordx4 v3, s[{SP}:{SP+3}], s57 offen lds')
    for st in range(D):
        for x in issue(st): e(x)
    e(f"""v_and_b32 v3, 3, v2
    v_and_b32 v4, 31, v1
    v_lshl_add_u32 v8, v3, 5, v4
    v_lshrrev_b32 v9, 5, v1
    v_bfe_u32 v5, v8, 1, 3
    v_xor_b32 v5, v5, v9
    v_lshlrev_b32 v5, 4, v5
    v_lshl_add_u32 v{vRX}, v8, 7, v5
    v_bfe_u32 v3, v1, 4, 1
    v_and_b32 v4, 3, v1
    v_lshl_add_u32 v3, v3, 2, v4
    v_min_u32 v3, 6, v3
    v_lshlrev_b32 v7, 3, v3
    v_lshrrev_b32 v2, 2, v2
    v_mad_u32_u24 v3, v2, 56, v7
    v_bfe_u32 v0, v1, 2, 2
    v_lshl_add_u32 v5, v9, 3, v0
    v_lshlrev_b32 v5, 7, v5
    v_bfe_u32 v4, v1, 3, 1
    v_lshlrev_b32 v4, 6, v4
    v_xor_b32 v6, v3, v4
    v_add_u32 v5, v5, v6
    v_add_u32 v{vRW}, 16384, v5
    v_add_u32 v{vRB}, {WBL}, v5
    v_lshl_add_u32 v4, v9, 2, v0
    v_mul_u32_u24 v4, 56, v4
    v_mul_u32_u24 v5, 1568, v2
    v_add3_u32 v3, v7, v4, v5
    v_add_u32 v{vP}, {WPL}, v3""")
    for ks in range(1,4): e(f'v_xor_b32 v{vRX+ks}, {32*ks}, v{vRX}')
    srd(A,SDB,16,256)
    e(f"""s_cmp_eq_u32 s44, 1
    s_cselect_b32 s60, {PHIQ_OFF}, {KV_OFF}
    s_cselect_b32 s{SWS+2}, {64*16*3584}, {16*3584}
    s_add_u32 s{SWS}, s18, s60
    s_addc_u32 s{SWS+1}, s19, 0
    s_mov_b32 s{SWS+3}, 0x20000
    s_and_b32 s65, s{sWV}, 3
    s_lshl_b32 s66, s43, 2
    s_add_u32 s65, s65, s66
    s_lshl_b32 s65, s65, 4
    s_lshr_b32 s66, s{sWV}, 2
    s_lshl_b32 s67, s66, 1
    s_add_u32 s65, s65, s67
    s_add_u32 s65, s65, s49
    s_mul_i32 s65, s65, 3584
    v_lshlrev_b32 v{vSA}, 4, v1
    s_mul_i32 s67, s66, 24576
    v_mul_u32_u24 v3, 192, v8
    v_bfe_u32 v4, v8, 1, 2
    v_lshlrev_b32 v5, 1, v9
    v_xor_b32 v4, v4, v5
    v_lshl_add_u32 v3, v4, 4, v3
    v_add_u32 v{vW0}, s67, v3
    v_xor_b32 v{vW1}, 16, v{vW0}
    s_mov_b32 s68, {f2u(LOG2E)}""")
    def rdW(ad,buf,off):
        return [f'ds_read_b64_tr_b16 {vr(WF[buf]+4*ks+2*jj,2)}, v{ad} offset:{off+2048*ks+512*jj}' for ks in range(4) for jj in range(2)]
    def shift():
        e(('s_memtime' if OPT.get('cyc') else 's_memrealtime')+' s[76:77]\ns_waitcnt lgkmcnt(0)')
        for i in range(1,7): e(f's_mov_b32 s{80+2*i}, s{82+2*i}')
        e('s_mov_b32 s92, s76')
    stamp(A,2)
    issued=[('p',1)]+[(k,3) for k in range(D)]
    def younger(tag):
        n=0
        for t,c in reversed(issued):
            if t==tag: return n
            n+=c
        raise
    nB=0
    for s_ in range(7):
        e(f's_waitcnt vmcnt({younger(s_)}) lgkmcnt(0)\ns_barrier')
        if s_==0: stamp(A,3)
        elif OPT.get('lp')==1: shift()
        I=[]
        if s_+D<7: I=issue(s_+D); issued.append((s_+D,3))
        k=int(str(OPT.get('bs','0000043')).zfill(7)[s_])
        for t in range(nB,nB+k): I+=issueB(t); issued.append((f'B{t}',1))
        nB+=k
        R=[]
        for ks in range(4): R+=[f'ds_read_b128 {vr(XF+16*s_+4*ks,4)}, v{vRX+ks}']+rdW(vRW,s_&1,0)[2*ks:2*ks+2]
        if s_==0: R+=[f'ds_read_b64_tr_b16 {vr(WPH+8*u+2*q,2)}, v{vP} offset:{3136*u+448*q}' for u in range(2) for q in range(4)]
        M=[MF(ACC0,WF[(s_-1)&1]+4*ks,XF+16*(s_-1)+4*ks,ACC0 if (s_>1 or ks) else None) for ks in range(4)] if s_ else []
        d=SLOT if (s_+1)%4 else -3*SLOT
        V=[f'v_add_u32 v{r}, {d&0xffffffff}, v{r}' for r in (vRX,vRX+1,vRX+2,vRX+3,vRW)] if s_<6 else []
        for i in range(4):
            if M: e(M[i])
            for x in R[i*len(R)//4:(i+1)*len(R)//4]: e(x)
            if i<len(I): e(I[i])
        for x in I[4:]: e(x)
        for x in V: e(x)
    P=ACC0; EP=ACC0
    PHR=[112+j for j in range(8)]+[136+j for j in range(4)]
    def unit(P,EN,PH,pk=1):
        U=[]
        mx,nm,t0,t1=TM,TM+1,TM+2,TM+3; EP=P
        U+=[f'v_permlane32_swap_b32 v{P+12}, v{P+14}',f'v_permlane32_swap_b32 v{P+13}, v{P+15}']
        U+=[f'v_max3_f32 v{mx}, v{P}, v{P+1}, v{P+2}',f'v_min3_f32 v{nm}, v{P}, v{P+1}, v{P+2}']
        for j in range(3,13,2): U+=[f'v_max3_f32 v{mx}, v{mx}, v{P+j}, v{P+j+1}',f'v_min3_f32 v{nm}, v{nm}, v{P+j}, v{P+j+1}']
        U+=[f'v_max_f32 v{mx}, v{mx}, v{P+13}',f'v_min_f32 v{nm}, v{nm}, v{P+13}']
        U+=[f'v_mul_f32 v{mx}, s68, v{mx}',f'v_mul_f32 v{nm}, {f2u(-LOG2E)}, v{nm}']
        U+=[f'v_permlane32_swap_b32 v{mx}, v{nm}',f'v_max_f32 v{t0}, v{mx}, v{nm}',f'v_max_f32 v{t1}, v{mx}, v{nm}',f'v_permlane32_swap_b32 v{t0}, v{t1}']
        if pk:
            for j in range(0,14,2):
                U+=[f'v_pk_fma_f32 {vr(EN+j,2)}, {vr(P+j,2)}, s[68:69], {vr(t0,2)} op_sel:[0,0,1] op_sel_hi:[1,0,1] neg_lo:[0,1,1] neg_hi:[0,1,1]',
                    f'v_pk_fma_f32 {vr(EP+j,2)}, {vr(P+j,2)}, s[68:69], {vr(t0,2)} op_sel_hi:[1,0,0] neg_lo:[0,0,1] neg_hi:[0,0,1]']
        else:
            for j in range(14): U+=[f'v_fma_f32 v{EN+j}, -v{P+j}, s68, -v{t1}',f'v_fma_f32 v{EP+j}, v{P+j}, s68, -v{t0}']
        for j in range(14): U+=[f'v_exp_f32 v{EP+j}, v{EP+j}',f'v_exp_f32 v{EN+j}, v{EN+j}']
        sp,sn=TM+4,TM+6
        if pk:
            U+=[f'v_pk_add_f32 {vr(sp,2)}, {vr(EP,2)}, {vr(EP+2,2)}',f'v_pk_add_f32 {vr(sn,2)}, {vr(EN,2)}, {vr(EN+2,2)}']
            for j in range(4,14,2): U+=[f'v_pk_add_f32 {vr(sp,2)}, {vr(sp,2)}, {vr(EP+j,2)}',f'v_pk_add_f32 {vr(sn,2)}, {vr(sn,2)}, {vr(EN+j,2)}']
            U+=[f'v_add_f32 v{mx}, v{sp}, v{sp+1}',f'v_add_f32 v{nm}, v{sn}, v{sn+1}']
        else:
            U+=[f'v_add_f32 v{mx}, v{EP}, v{EP+1}',f'v_add_f32 v{nm}, v{EN}, v{EN+1}']
            for j in range(2,14): U+=[f'v_add_f32 v{mx}, v{mx}, v{EP+j}',f'v_add_f32 v{nm}, v{nm}, v{EN+j}']
        U+=[f'v_permlane32_swap_b32 v{mx}, v{nm}',f'v_add_f32 v{t0}, v{mx}, v{nm}',f'v_rcp_f32 v{t0}, v{t0}',f'v_mov_b32 v{t1}, v{t0}',f'v_permlane32_swap_b32 v{t0}, v{t1}']
        if pk: U+=[f'v_pk_mul_f32 {vr(EP+j,2)}, {vr(EP+j,2)}, {vr(t0,2)} op_sel_hi:[1,0]' for j in range(0,14,2)]
        else: U+=[f'v_mul_f32 v{EP+j}, v{t0}, v{EP+j}' for j in range(14)]
        U+=[f'v_cvt_pk_bf16_f32 v{PH[j]}, v{EP+2*j}, v{EP+2*j+1}' for j in range(7)]
        if pk: U+=[f'v_pk_mul_f32 {vr(EN+j,2)}, {vr(EN+j,2)}, {vr(t0,2)} op_sel:[0,1] op_sel_hi:[1,1]' for j in range(0,14,2)]
        else: U+=[f'v_mul_f32 v{EN+j}, v{t1}, v{EN+j}' for j in range(14)]
        U+=[f'v_cvt_pk_bf16_f32 v{PH[7+j]}, v{EN+2*j}, v{EN+2*j+1}' for j in range(7)]
        return U
    e('s_waitcnt lgkmcnt(0)')
    for ks in range(4): e(MF(ACC0,WF[0]+4*ks,XF+96+4*ks,ACC0))
    e('v_cmp_gt_u32 vcc, 32, v1')
    for j in (6,7,14,15): e(f'v_cndmask_b32 v{WPH+j}, 0, v{WPH+j}, vcc')
    for j in range(8): e(f'v_cvt_pk_bf16_f32 v{QB+j}, v{ACC0+2*j}, v{ACC0+2*j+1}')
    e(MF(P,WPH,QB)); e(MF(P,WPH+4,QB+4,P))
    n1=OPT.get('n1',40)
    Ua=unit(P,EN,PHR+[140,141],1); Ub=unit(P,EN,PHR+[140,141],0)
    cutA=22+14; cutB=22+28
    U=Ua[:cutA]+Ub[cutB:]
    for x in U[:n1]: e(x)
    e(f's_waitcnt vmcnt({younger("B2")})\ns_barrier')
    stamp(A,4)
    if OPT.get('oc'): e('s_memtime s[82:83]')
    for x in rdW(vRB,1,0)+rdW(vRB,0,8192): e(x)
    gaps=[1]*27+[0]
    cost=lambda x: 2.0 if x.startswith(('v_exp','v_rcp')) else 1.0
    tot=sum(gaps); k=n1; acc=0; ctot=sum(cost(x) for x in U[n1:]); cdone=0
    for t in range(7):
        e('s_waitcnt lgkmcnt(%d)'%(8 if t<6 else 0))
        for ks in range(4):
            e(MF(ACC1,WF[(t+1)&1]+4*ks,XF+16*t+4*ks,ACC1 if (t or ks) else None))
            if ks==3 and t+2<7:
                if t==1: e('s_waitcnt vmcnt(0)\ns_barrier'); e(f'buffer_load_dword v{vFL}, off, s[{SDB}:{SDB+3}], 0 sc1')
                for x in rdW(vRB,(t+1)&1,8192*(t+2)): e(x)
            acc+=gaps[4*t+ks]
            while k<len(U) and cdone<ctot*acc/tot-1e-9: e(U[k]); cdone+=cost(U[k]); k+=1
    assert k==len(U)
    stamp(A,5)
    if OPT.get('oc'): e('s_memtime s[84:85]')
    e('s_cmp_eq_u32 s44, 0\ns_cbranch_scc1 K1_KV')
    st=OPT['st_phi']
    for c,r in enumerate((112,116,136)): e(f'buffer_store_dwordx4 {vr(r,4)}, v{vSA}, s[{SWS}:{SWS+3}], s65 offen offset:{1024*c} {st}')
    e('s_add_u32 s65, s65, 3072')
    Q2=144; P2=160; E2=176; H2=192
    for j in range(8): e(f'v_cvt_pk_bf16_f32 v{Q2+j}, v{ACC1+2*j}, v{ACC1+2*j+1}')
    e(MF(P2,WPH+8,Q2)); e(MF(P2,WPH+12,Q2+4,P2))
    for x in unit(P2,E2,[H2+j for j in range(12)]+[142,143]): e(x)
    for c in range(3): e(f'buffer_store_dwordx4 {vr(H2+4*c,4)}, v{vSA}, s[{SWS}:{SWS+3}], s65 offen offset:{1024*c} {st}')
    e(f'buffer_store_dwordx4 v[140:143], v{vSA}, s[{SWS}:{SWS+3}], s65 offen offset:3072 {st}')
    if OPT.get('ppf'):
        e(f'''v_lshlrev_b32 v3, 7, v1
        s_sub_u32 s65, s65, 3072
        s_mov_b32 exec_hi, 0x00ffffff
        s_waitcnt vmcnt(0)
        buffer_load_dword v4, v3, s[{SWS}:{SWS+3}], s65 offen''')
    dump1(A,2)
    e('s_endpgm')
    e('K1_KV:')
    T2=144
    e(f"""ds_write_b128 v{vW0}, v[112:115]
    ds_write_b128 v{vW1}, v[116:119]
    ds_write_b128 v{vW0}, v[136:139] offset:64
    ds_write_b64 v{vW1}, v[140:141] offset:64
    v_mov_b32 v3, 0x3f80""")
    e(f"""s_lshr_b32 s66, s{sWV}, 1
    s_and_b32 s67, s{sWV}, 1
    s_mul_i32 s65, s66, 24576
    s_lshl_b32 s68, s67, 6
    s_nop 0""")
    for j in range(8): e(f'v_cvt_pk_bf16_f32 v{T2+j}, v{ACC1+2*j}, v{ACC1+2*j+1}')
    e(f"""v_cndmask_b32 v{T2+6}, v3, v{T2+6}, vcc
    v_cndmask_b32 v{T2+7}, v3, v{T2+7}, vcc
    ds_write_b128 v{vW0}, {vr(T2,4)} offset:128
    v_permlane32_swap_b32 v{T2+6}, v{T2+7}
    ds_write_b128 v{vW1}, {vr(T2+4,4)} offset:128
    v_lshl_add_u32 v4, v9, 3, v0
    v_mul_u32_u24 v4, 192, v4
    v_and_b32 v5, 1, v1
    v_bfe_u32 v6, v1, 4, 1
    v_lshl_add_u32 v5, v5, 1, v6
    v_lshrrev_b32 v3, 1, v0
    v_xor_b32 v5, v5, v3
    v_lshl_add_u32 v4, v5, 4, v4
    v_bfe_u32 v5, v1, 1, 1
    v_lshl_add_u32 v4, v5, 3, v4
    v_add_u32 v4, s65, v4
    v_xor_b32 v5, 32, v4
    v_add_u32 v6, s68, v4
    v_add_u32 v7, s68, v5
    s_and_b32 s65, s50, 2
    s_add_u32 s65, s65, s66
    s_lshl_b32 s65, s65, 1
    s_lshr_b32 s68, s50, 2
    s_add_u32 s65, s65, s68
    s_lshl_b32 s65, s65, 1
    s_and_b32 s68, s50, 1
    s_add_u32 s65, s65, s68
    s_mul_i32 s65, s65, 3584
    s_lshl_b32 s68, s67, 11
    s_add_u32 s65, s65, s68
    v_lshlrev_b32 v3, 2, v1
    s_mov_b32 s70, 0""")
    e('s_waitcnt lgkmcnt(0)\ns_barrier')
    stamp(A,6)
    if OPT.get('pw',0)>=4:
        e(f's_cmp_ge_u32 s{sWV}, 4\ns_cbranch_scc0 K1_KV2'); dump1(A,1); e('s_endpgm\nK1_KV2:')
    e(f's_cmp_ge_u32 s{sWV}, 4\ns_cbranch_scc1 K1_END')
    FA,FB,KA=160,192,224
    for ks in range(8):
        e(f'ds_read_b64_tr_b16 {vr(FA+4*ks,2)}, v6 offset:{3072*ks}')
        e(f'ds_read_b64_tr_b16 {vr(FA+4*ks+2,2)}, v7 offset:{3072*ks+768}')
        e(f'ds_read_b64_tr_b16 {vr(FB+4*ks,2)}, v4 offset:{3072*ks+128}')
        e(f'ds_read_b64_tr_b16 {vr(FB+4*ks+2,2)}, v5 offset:{3072*ks+768+128}')
        if ks>=2:
            e('s_waitcnt lgkmcnt(8)'); e(MF(KA,FA+4*(ks-2),FB+4*(ks-2),KA if ks>2 else None))
    e('s_waitcnt lgkmcnt(4)'); e(MF(KA,FA+24,FB+24,KA))
    e('s_waitcnt lgkmcnt(0)'); e(MF(KA,FA+28,FB+28,KA))
    e('K1_POLL:\ns_waitcnt vmcnt(0)')
    e(f'v_readfirstlane_b32 s69, v{vFL}')
    e('s_cmp_ge_u32 s69, 64\ns_cbranch_scc1 K1_GO\ns_add_u32 s70, s70, 1\ns_cmp_ge_u32 s70, 0x40000\ns_cbranch_scc1 K1_GO\ns_sleep 2')
    e(f'buffer_load_dword v{vFL}, off, s[{SDB}:{SDB+3}], 0 sc1')
    e('s_branch K1_POLL\nK1_GO:\ns_nop 7')
    for j in range(6):
        e(f'v_cvt_pk_bf16_f32 v{FA+j}, v{KA+2*j}, v{KA+2*j+1}')
        e(f'buffer_atomic_pk_add_bf16 v{FA+j}, v3, s[{SWS}:{SWS+3}], s65 offen offset:{256*j}')
    e('s_cmp_eq_u32 s67, 1\ns_cbranch_scc1 K1_END')
    for j in range(6,8):
        e(f'v_cvt_pk_bf16_f32 v{FA+j}, v{KA+2*j}, v{KA+2*j+1}')
        e(f'buffer_atomic_pk_add_bf16 v{FA+j}, v3, s[{SWS}:{SWS+3}], s65 offen offset:{256*j}')
    dump1(A,1)
    e('s_endpgm')
    e('K1_A:')
    e(f"""s_lshl_b32 s43, s41, 3
    s_add_u32 s43, s43, s42
    s_sub_u32 s43, s43, 24
    v_lshlrev_b32 v3, 4, v1
    v_lshlrev_b32 v17, 7, v1""")
    if OPT['cpf']:
        e(f"""s_cmp_eq_u32 s{sWV}, 6
        s_cbranch_scc0 K1A_H1
        s_getpc_b64 s[44:45]
        K1_PC:
        s_sub_u32 s44, s44, K1_PC-k1_kernel
        s_subb_u32 s45, s45, 0
        global_load_dword v18, v17, s[44:45]
        global_load_dword v18, v17, s[44:45] offset:4032
        K1A_H1:""".replace("global_load_dword v18, v17, s[44:45] offset:4032\n","s_add_u32 s44, s44, 8192\ns_addc_u32 s45, s45, 0\nglobal_load_dword v18, v17, s[44:45]\n"))
    e(f"""s_lshl_b32 s44, s{sWV}, 8
    s_add_u32 s44, s44, s43
    s_mul_i32 s44, s44, 896
    s_mul_i32 s45, s{sWV}, {4*960}
    s_lshl_b32 s46, s43, 2
    s_add_u32 s46, s46, s{sWV}
    s_mul_i32 s46, s46, {56*128}
    s_mul_i32 s47, s43, 896
    s_mov_b32 m0, s45
    s_mov_b32 exec_hi, 0x00ffffff
    s_waitcnt lgkmcnt(0)""")
    stamp(A,1)
    if OPT['apf']:
        srd(A,SW,8,2048*896)
        e(f's_cmp_lt_u32 s{sWV}, 4\ns_cbranch_scc0 K1A_H2\nbuffer_load_dword v18, v17, s[{SW}:{SW+3}], s46 offen {lx}\nK1A_H2:')
    e(f's_cmp_eq_u32 s{sWV}, 7\ns_cbranch_scc0 K1A_H3')
    srd(A,SWS,18,16*3584,KV_OFF); srd(A,SDB,16,256)
    e(f"""v_mov_b64 v[12:13], 0
    v_mov_b64 v[14:15], 0
    v_mov_b32 v16, 1
    buffer_store_dwordx4 v[12:15], v3, s[{SWS}:{SWS+3}], s47 offen sc1
    s_waitcnt vmcnt(0)
    s_mov_b64 exec, 1
    buffer_atomic_add v16, off, s[{SDB}:{SDB+3}], 0 sc1
    s_mov_b32 exec_lo, -1
    s_mov_b32 exec_hi, 0x00ffffff
    K1A_H3:""")
    srd(A,SX,4,2048*896)
    for i in range(4):
        if i: e(f's_add_u32 m0, s45, {960*i}\ns_add_u32 s44, s44, {64*896}')
        e(f'buffer_load_dwordx4 v3, s[{SX}:{SX+3}], s44 offen {OPT["lda"]} lds')
    if OPT.get('bpf'):
        srd(A,SW,10,448*2688)
        e(f'''s_mov_b32 exec_hi, -1
        v_mul_u32_u24 v19, 37, v1
        v_lshrrev_b32 v19, 8, v19
        v_mul_u32_u24 v4, {2688-7*128}, v19
        v_add_u32 v19, v4, v17
        s_sub_u32 s46, s42, 24
        s_lshl_b32 s46, s46, 3
        s_add_u32 s46, s46, s{sWV}
        s_mul_i32 s46, s46, {7*2688}
        s_add_u32 s46, s46, 1792
        s_mov_b32 exec_hi, 0x1ffff
        buffer_load_dword v18, v19, s[{SW}:{SW+3}], s46 offen''')
        if OPT['bpf']==2:
            e(f's_sub_u32 s46, s46, 896\nbuffer_load_dword v18, v19, s[{SW}:{SW+3}], s46 offen')
    VL=32768; OL=73728
    e('s_mov_b32 exec_hi, -1\nv_and_b32 v8, 31, v1\nv_lshrrev_b32 v9, 5, v1')
    e(f'''v_mul_u32_u24 v10, {8*2560}, v9
    v_mul_u32_u24 v16, 80, v8
    v_add_u32 v10, v16, v10
    v_lshl_add_u32 v10, v2, 3, v10
    v_add_u32 v10, {VL}, v10''')
    FF=20; HH=28; CP=32; SPn=40; A2=48; B2=56; TT=64
    e(f'''v_lshrrev_b32 v4, 1, v8
    v_and_b32 v5, 1, v8
    v_cvt_f32_u32 v5, v5
    v_mul_f32 v5, {f2u(-0.25)}, v5
    v_cmp_eq_u32 vcc, 1, v8
    v_cndmask_b32 v4, v4, 16, vcc
    v_cndmask_b32 v5, v5, 0, vcc
    v_cvt_f32_u32 v4, v4
    v_mul_f32 v4, {f2u(1/32)}, v4
    v_cvt_f32_u32 v11, v9
    v_mul_f32 v12, 4.0, v11
    v_add_f32 v11, v12, v12
    v_fma_f32 v5, v4, v11, v5''')
    for ks in range(2):
        for j in range(8): e(f'v_fmamk_f32 v{TT+8*ks+j}, v4, {f2u(16.*ks+j)}, v5')
    for j in range(16): e(f'v_cos_f32 v{TT+j}, v{TT+j}')
    for j in range(8): e(f'v_cvt_pk_bf16_f32 v{FF+j}, v{TT+2*j}, v{TT+2*j+1}')
    e(f'''v_bfe_u32 v4, v8, 2, 1
    v_bfe_u32 v5, v8, 3, 1
    v_lshl_add_u32 v4, v4, 1, v5
    v_bfe_u32 v5, v8, 1, 1
    v_lshl_add_u32 v4, v4, 1, v5
    v_and_b32 v5, 1, v8
    v_cvt_f32_u32 v5, v5
    v_mul_f32 v5, {f2u(-0.25)}, v5
    v_and_b32 v6, 15, v8
    v_cmp_eq_u32 vcc, 1, v6
    v_cndmask_b32 v4, v4, 8, vcc
    v_cndmask_b32 v5, v5, 0, vcc
    v_cvt_f32_u32 v4, v4
    v_mul_f32 v4, {f2u(1/16)}, v4
    v_fma_f32 v5, v4, v12, v5''')
    for j in range(8): e(f'v_fmamk_f32 v{TT+j}, v4, {f2u(8.*(j>>2)+(j&3))}, v5')
    for j in range(8): e(f'v_cos_f32 v{TT+j}, v{TT+j}')
    for j in range(4): e(f'v_cvt_pk_bf16_f32 v{HH+j}, v{TT+2*j}, v{TT+2*j+1}')
    e(f'''s_cmp_eq_u32 s{sWV}, 0
    s_cselect_b32 s47, 8, s{sWV}
    s_sub_u32 s48, 0, s47
    v_lshrrev_b32 v4, 2, v8
    v_lshlrev_b32 v4, 5, v4
    v_and_b32 v5, 3, v8
    v_add_u32 v5, 1, v5
    v_lshrrev_b32 v5, 1, v5
    v_lshl_add_u32 v4, v5, 4, v4
    v_and_b32 v5, 1, v8
    v_cmp_eq_u32 vcc, 1, v5
    v_mov_b32 v6, s48
    v_cndmask_b32 v6, v2, v6, vcc
    v_add_u32 v4, v4, v6
    v_cvt_f32_u32 v4, v4
    v_mul_f32 v4, {f2u(1/448)}, v4
    v_mul_f32 v5, v4, v11''')
    for ks in range(2):
        for j in range(8): e(f'v_fmamk_f32 v{TT+8*ks+j}, v4, {f2u(16.*ks+j)}, v5')
    for j in range(16): e(f'v_sin_f32 v{TT+16+j}, v{TT+j}\nv_cos_f32 v{TT+j}, v{TT+j}')
    for j in range(8): e(f'v_cvt_pk_bf16_f32 v{CP+j}, v{TT+2*j}, v{TT+2*j+1}\nv_cvt_pk_bf16_f32 v{SPn+j}, v{TT+16+2*j}, v{TT+16+2*j+1}')
    e(f's_cmp_eq_u32 s{sWV}, 0\ns_cbranch_scc1 K1A_SPEC')
    e('''v_mov_b32 v4, 0x80008000
    v_cndmask_b32 v5, v4, 0, vcc
    v_cndmask_b32 v6, 0, v4, vcc''')
    for j in range(8): e(f'v_xor_b32 v{A2+j}, v5, v{SPn+j}\nv_xor_b32 v{B2+j}, v6, v{CP+j}')
    e('s_branch K1A_ST1\nK1A_SPEC:')
    for j in range(8):
        e(f'''v_cndmask_b32 v{A2+j}, 0, v{CP+j}, vcc
        v_cndmask_b32 v{B2+j}, 0, v{SPn+j}, vcc
        v_cndmask_b32 v{CP+j}, v{CP+j}, 0, vcc
        v_cndmask_b32 v{SPn+j}, v{SPn+j}, 0, vcc''')
    e('v_mov_b32 v4, 0xbf803f80\nv_cmp_eq_u32 vcc, 0, v8')
    for j in range(8): e(f'v_cndmask_b32 v{SPn+j}, v{SPn+j}, v4, vcc')
    e('K1A_ST1:')
    XA=64; BO=80; U0=96; U1=112; VU=96
    e(f'''v_bfe_u32 v4, v1, 2, 2
    v_lshl_add_u32 v4, v9, 3, v4
    v_mul_u32_u24 v4, 960, v4
    v_and_b32 v5, 1, v1
    v_bfe_u32 v6, v1, 4, 1
    v_lshl_add_u32 v5, v5, 1, v6
    v_bfe_u32 v6, v1, 1, 1
    v_lshl_add_u32 v5, v5, 1, v6
    v_mad_u32_u24 v4, v5, 56, v4
    v_lshl_add_u32 v4, v2, 3, v4
    v_mul_u32_u24 v13, 5120, v2
    v_add_u32 v13, v16, v13
    v_lshl_add_u32 v13, v9, 4, v13
    v_add_u32 v13, {VL}, v13
    v_mul_u32_u24 v14, 1032, v8
    v_lshl_add_u32 v14, v9, 7, v14
    v_add_u32 v14, {OL}, v14
    s_lshl_b32 s48, s48, 1
    v_add_u32 v15, s48, v14
    v_lshl_add_u32 v14, v2, 1, v14''')
    for r in range(8): e(f'v_mov_b64 {vr(XA+2*r,2)}, 0')
    stamp(A,3)
    e('s_waitcnt vmcnt(0)\ns_barrier')
    stamp(A,4)
    e(f's_cmp_eq_u32 s{sWV}, 7\ns_cbranch_scc1 K1A_VW')
    for dh in range(2):
        for ks in range(2):
            for jj in range(2):
                e(f'ds_read_b64_tr_b16 {vr(XA+8*dh+4*ks+2*jj,2)}, v4 offset:{15360*ks+3840*jj+448*dh}')
    e('s_waitcnt lgkmcnt(4)')
    e(MF(U0,XA,FF)); e(MF(U0,XA+4,FF+4,U0))
    e('s_waitcnt lgkmcnt(0)')
    e(MF(U1,XA+8,FF)); e(MF(U1,XA+12,FF+4,U1))
    for u in range(4):
        e(f'v_cvt_pk_bf16_f32 v{BO+4*u}, v{U0+u}, v{U0+4+u}\nv_cvt_pk_bf16_f32 v{BO+4*u+1}, v{U0+8+u}, v{U0+12+u}')
    for u in range(4):
        e(f'v_cvt_pk_bf16_f32 v{BO+4*u+2}, v{U1+u}, v{U1+4+u}\nv_cvt_pk_bf16_f32 v{BO+4*u+3}, v{U1+8+u}, v{U1+12+u}')
    for u in range(4): e(MF(VU+16*u,HH,BO+4*u))
    for r in range(8): e(f'v_cvt_pk_bf16_f32 v{XA+2*r}, v{VU+r}, v{VU+16+r}')
    for r in range(8): e(f'v_cvt_pk_bf16_f32 v{XA+2*r+1}, v{VU+32+r}, v{VU+48+r}')
    e('K1A_VW:')
    for r in range(8): e(f'ds_write_b64 v10, {vr(XA+2*r,2)} offset:{2560*r}')
    e('s_waitcnt lgkmcnt(0)\ns_barrier')
    for ks in range(4): e(f'ds_read_b128 {vr(XA+4*ks,4)}, v13 offset:{32*(ks&1)+2560*(ks>>1)}')
    GA=[CP,CP+4,A2,A2+4]; GB=[SPn,SPn+4,B2,B2+4]
    for ks in range(4):
        e(f's_waitcnt lgkmcnt({3-ks})')
        e(MF(U0,GA[ks],XA+4*ks,U0 if ks else None)); e(MF(U1,GB[ks],XA+4*ks,U1 if ks else None))
    stamp(A,5)
    srd(A,SWS,18,2<<20,AINT_OFF)
    for (U,ab) in ((U0,0),(U1,64)):
        for j in range(8): e(f'v_cvt_pk_bf16_f32 v{BO+(ab>>3)+j}, v{U+2*j}, v{U+2*j+1}')
        for a in range(4):
            r=BO+(ab>>3)+2*a
            e(f'''ds_write_b16 v14, v{r} offset:{256*a+ab}
            ds_write_b16_d16_hi v15, v{r} offset:{256*a+32+ab}
            ds_write_b16 v14, v{r+1} offset:{256*a+32+ab}
            ds_write_b16_d16_hi v15, v{r+1} offset:{256*a+64+ab}''')
    e(f'''s_mul_i32 s45, s{sWV}, {4*1032}
    s_add_u32 s45, s45, {OL}
    v_add_u32 v4, s45, v3
    v_add_u32 v5, 2064, v4
    s_lshl_b32 s44, s{sWV}, 8
    s_add_u32 s44, s44, s43
    s_lshl_b32 s44, s44, 10
    v_lshlrev_b32 v6, 7, v1
    s_waitcnt lgkmcnt(0)
    s_barrier
    s_mov_b32 exec_hi, 0x00ffffff''')
    for i in range(4): e(f'ds_read2_b64 {vr(XA+4*i,4)}, v{4+(i>>1)} offset0:{129*(i&1)} offset1:{129*(i&1)+1}')
    st=OPT['st_aint']
    for i in range(4):
        e(f's_waitcnt lgkmcnt({3-i})')
        e(f'buffer_store_dwordx4 {vr(XA+4*i,4)}, v3, s[{SWS}:{SWS+3}], s44 offen {st}')
        e(f's_add_u32 s44, s44, 65536')
    if OPT['wpf']:
        srd(A,SW,14,448*896)
        e(f'''s_cmp_eq_u32 s{sWV}, 7
        s_cbranch_scc1 K1A_CP
        s_sub_u32 s46, s42, 24
        s_mul_i32 s46, s46, 7
        s_add_u32 s46, s46, s{sWV}
        s_mul_i32 s46, s46, {56*128}
        buffer_load_dword v7, v6, s[{SW}:{SW+3}], s46 offen
        s_branch K1A_E
        K1A_CP:
        s_mov_b32 exec_hi, -1
        s_getpc_b64 s[44:45]
        K1_PC2:
        s_add_u32 s44, s44, k2_kernel-K1_PC2
        s_addc_u32 s45, s45, 0
        global_load_dword v7, v6, s[44:45]
        v_add_u32 v6, 8192, v6
        v_min_u32 v6, K2_END-k2_kernel, v6
        global_load_dword v7, v6, s[44:45]
        K1A_E:''')
    dump1(A,3)
    e('K1_END:\ns_endpgm')

def k2(A):
    e=A.e
    OPT['k2']=1
    SD,SPH,SO=20,24,28
    sWV=40
    e('k2_kernel:')
    e('s_cmp_ge_u32 s2, 256\ns_cbranch_scc1 K2_END')
    stamp(A,0)
    e('s_load_dwordx4 s[8:11], s[0:1], 64\ns_load_dwordx2 s[12:13], s[0:1], 88')
    e('v_and_b32 v1, 63, v0\nv_lshrrev_b32 v2, 6, v0')
    e('s_and_b32 s41, s2, 7\ns_lshr_b32 s42, s2, 3')
    e(f'v_readfirstlane_b32 s{sWV}, v2')
    e('''v_bfe_u32 v3, v1, 4, 1
    v_and_b32 v4, 7, v1
    v_lshlrev_b32 v5, 2, v3
    v_xor_b32 v4, v4, v5
    v_lshlrev_b32 v12, 4, v4
    v_lshrrev_b32 v13, 3, v1
    v_lshlrev_b32 v15, 4, v1''')
    LANE='''v_and_b32 v8, 31, v1
    v_lshrrev_b32 v9, 5, v1
    v_bfe_u32 v10, v1, 2, 2
    v_bfe_u32 v3, v1, 4, 1
    v_and_b32 v4, 1, v1
    v_lshl_add_u32 v4, v3, 1, v4
    v_bfe_u32 v5, v1, 1, 1
    v_lshl_add_u32 v4, v4, 1, v5
    v_lshlrev_b32 v11, 3, v4'''
    e('s_cmp_ge_u32 s42, 28\ns_cbranch_scc1 K2_A')
    e(f'''s_lshr_b32 s44, s42, 2
    s_and_b32 s45, s{sWV}, 1
    s_bfe_u32 s46, s{sWV}, 0x10001
    s_cmp_ge_u32 s{sWV}, 4
    s_cbranch_scc0 K2_C''')
    e(f"""v_mul_u32_u24 v3, 896, v13
    v_add_u32 v14, v3, v12
    v_lshrrev_b32 v4, 5, v1
    v_mul_u32_u24 v4, {28*896}, v4
    v_add_u32 v16, v14, v4
    s_and_b32 s50, s{sWV}, 3
    s_lshl_b32 s50, s50, 10
    s_mul_i32 s48, s45, {224*896}
    s_lshl_b32 s49, s44, 7
    s_add_u32 s48, s48, s49
    s_mul_i32 s49, s45, 28672
    s_add_u32 s49, s49, 57344
    s_mov_b32 m0, s50
    s_waitcnt lgkmcnt(0)""")
    if OPT.get('npf',0):
        srd(A,SO,12,2<<20,AINT_OFF)
        e(f'''s_cmp_eq_u32 s{sWV}, 7
        s_cbranch_scc0 K2_NP
        s_lshl_b32 s51, s42, 6
        v_add_u32 v3, s51, v1
        v_mul_u32_u24 v4, 9363, v3
        v_lshrrev_b32 v4, 16, v4
        v_lshlrev_b32 v3, 7, v3
        v_lshl_add_u32 v3, v4, 7, v3
        s_lshl_b32 s51, s41, 18
        buffer_load_dword v5, v3, s[{SO}:{SO+3}], s51 offen
        K2_NP:''')
    srd(A,SD,12,16*3584,KV_OFF)
    if OPT.get('kvrot'):
        e(f's_mul_i32 s51, s42, {OPT["kvrot"]*4096}\ns_add_u32 s50, s50, s51\nK2_RW:\ns_cmp_ge_u32 s50, 57344\ns_cbranch_scc0 K2_RX\ns_sub_u32 s50, s50, 57344\ns_branch K2_RW\nK2_RX:')
    for n in range(14 if not OPT.get('nokv') else 0):
        e(f'buffer_load_dwordx4 v15, s[{SD}:{SD+3}], s50 offen lds\ns_add_u32 m0, m0, 4096\ns_add_u32 s50, s50, 4096')
        if OPT.get('kvrot'): e('s_cmp_ge_u32 s50, 57344\ns_cselect_b32 s51, 57344, 0\ns_sub_u32 s50, s50, s51')
    srd(A,SPH,8,448*896)
    e('s_cmp_eq_u32 s46, 0\ns_cbranch_scc0 K2_L1')
    HYB=OPT.get('hyb',0); W0=OPT.get('w0',0); W1=OPT.get('w1',0)
    for par in range(2):
        js=(0,2,4,6) if par==0 else (1,3,5); nj=len(js)
        for st_ in range(5):
            if st_==W0: e(f's_waitcnt vmcnt({(0 if OPT.get("nob1") else 7)+W0*nj})\ns_barrier')
            if st_==W1 and not OPT.get('nob1'): e(f's_waitcnt vmcnt({W1*nj})\ns_barrier')
            if st_==4: break
            for j in (js if not OPT.get('nowo') else ()):
                row=112*(st_>>1)+28*(st_&1)+8*j+(28 if j>3 else 0)
                e(f's_add_u32 m0, s49, {7168*st_+1024*j}\ns_add_u32 s50, s48, {row*896}\nbuffer_load_dwordx4 v{16 if j==3 else 14}, s[{SPH}:{SPH+3}], s50 offen lds')
        OB=OPT.get('ob',4)
        for c in ((2,1,0) if HYB else {4:(3,2,1,0),2:(2,0),1:(0,)}[OB]): e(f's_waitcnt vmcnt({nj*c})\ns_barrier')
        e('s_endpgm')
        if par==0: e('K2_L1:')
    e('K2_C:')
    if OPT.get('prio'): e('s_setprio 3')
    e(f'''s_and_b32 s43, s42, 3
    s_lshl_b32 s41, s41, 2
    s_add_u32 s43, s43, s41
    s_lshl_b32 s51, s43, 1
    s_add_u32 s51, s51, s45
    s_lshl_b32 s52, s51, 4
    s_lshl_b32 s53, s46, 3
    s_add_u32 s52, s52, s53
    s_mul_i32 s52, s52, 3584
    s_add_u32 s57, s52, 4096
    s_waitcnt lgkmcnt(0)''')
    stamp(A,1)
    srd(A,SPH,12,64*16*3584,PHIQ_OFF)
    PHI=144; vF16=16
    e('v_mov_b32 v16, v15')
    def loads(s):
        L=[]
        for n in range(7):
            x=f'buffer_load_dwordx4 {vr(PHI+28*s+4*n,4)}, v{vF16}, s[{SPH}:{SPH+3}], s{52 if n<4 else 57} offen offset:{1024*(n&3)}'
            if n==6: x+='\ns_add_u32 s52, s52, 7168\ns_add_u32 s57, s57, 7168'
            L.append(x)
        return L
    NUP=OPT.get('nup',1)
    for s_ in range(NUP):
        for x in loads(s_): e(x)
    srd(A,SO,10,2048*1792)
    e(LANE)
    vK,vN0,vN1,vS0,vS1=17,18,19,20,21
    e(f"""s_mul_i32 s53, s46, 7168
    v_lshlrev_b32 v3, 2, v1
    v_add_u32 v{vK}, s53, v3
    s_mul_i32 s53, s46, 28672
    s_add_u32 s53, s53, 57344
    v_lshl_add_u32 v3, v9, 2, v10
    v_lshlrev_b32 v3, 7, v3
    v_lshrrev_b32 v4, 1, v10
    v_lshl_add_u32 v3, v4, 6, v3
    v_add3_u32 v{vN0}, v3, v11, s53
    v_xor_b32 v{vN1}, 64, v{vN0}
    v_lshlrev_b32 v3, 1, v9
    v_xor_b32 v3, v3, v10
    v_lshrrev_b32 v4, 1, v3
    v_lshlrev_b32 v3, 7, v3
    v_lshl_add_u32 v3, v4, 6, v3
    v_add3_u32 v{vS0}, v3, v11, s53
    v_xor_b32 v{vS1}, 64, v{vS0}
    s_lshl_b32 s53, s{sWV}, 12
    s_add_u32 s53, s53, 114688
    v_add_u32 v6, s53, v{vF16}
    s_xor_b32 s53, s53, 8192
    v_add_u32 v7, s53, v{vF16}
    s_lshl_b32 s51, s51, 5""")
    if OPT.get('cst',1):
        e(f"""s_mul_i32 s53, s45, 4608
        s_lshl_b32 s55, s46, 6
        s_add_u32 s55, s55, s53
        v_mul_u32_u24 v2, 144, v8
        v_lshl_add_u32 v2, v9, 4, v2
        v_add_u32 v2, s55, v2
        s_mul_i32 s55, s46, {16*144}
        s_add_u32 s55, s55, s53
        v_mul_u32_u24 v3, 144, v13
        v_and_b32 v4, 7, v1
        v_lshl_add_u32 v3, v4, 4, v3
        v_add_u32 v3, s55, v3
        v_mul_u32_u24 v5, 1792, v13
        v_lshl_add_u32 v5, v4, 4, v5
        s_lshl_b32 s55, s46, 4
        s_add_u32 s51, s51, s55
        s_mul_i32 s54, s51, 1792
        s_lshl_b32 s55, s44, 7
        s_add_u32 s54, s54, s55
        s_add_u32 s54, s54, 896""")
    else:
        e(f"""v_add_u32 v5, s51, v8
        v_mul_u32_u24 v5, 1792, v5
        v_lshl_add_u32 v5, v9, 4, v5
        s_lshl_b32 s54, s44, 7
        s_lshl_b32 s55, s46, 6
        s_add_u32 s54, s54, s55
        s_add_u32 s54, s54, 896""")
    KF=[24,40]; NUM=[72,88]; OUT=[112,128]
    OPH=[104,8,PHI,PHI+8,PHI+16,PHI+28,PHI+36,PHI+44]
    WFB=[56,24,40,72]
    e(f'v_mov_b64 {vr(KF[0]+14,2)}, 0\nv_mov_b64 {vr(KF[1]+12,2)}, 0')
    e(f's_mov_b32 s56, {f2u(1e-6)}')
    def rdkv(hl):
        o=56*(hl>>1)+14*(hl&1)
        return [f'ds_read2st64_b32 {vr(KF[hl&1]+2*p+(2 if (p==6 and hl&1) else 0),2)}, v{vK} offset0:{o+2*p} offset1:{o+2*p+1}' for p in range(7)]
    def rdwo(hl):
        L=[]; WFR=WFB[hl&3] if (hl>=4 or not HYB) else 56
        for q in range(4):
            for mt in range(2):
                if q<3: L.append(f'ds_read_b64_tr_b16 {vr(WFR+8*mt+2*q,2)}, v{(vN0,vN1)[mt]} offset:{3584*hl+1024*q}')
                else: L.append(f'ds_read_b64_tr_b16 {vr(WFR+8*mt+6,2)}, v{(vS0,vS1)[mt]} offset:{3584*hl+3072}')
        return L
    def num(hl):
        base=PHI+28*(hl>>1)
        ph=[base+12*(hl&1)+4*s for s in range(3)]+[base+24]
        return [MF(NUM[hl&1],KF[hl&1]+4*s,ph[s],NUM[hl&1] if s else None) for s in range(4)]
    def fin(hl):
        N=NUM[hl&1]; OP=OPH[hl]
        L=[f'v_add_f32 v22, s56, v{N+14}','v_rcp_f32 v22, v22',f'v_mov_b32 v{OP+7}, 0']
        for j in range(7): L+=[f'v_mul_f32 v{N+2*j}, v22, v{N+2*j}',f'v_mul_f32 v{N+2*j+1}, v22, v{N+2*j+1}']
        L+=[f'v_cvt_pk_bf16_f32 v{OP+j}, v{N+2*j}, v{N+2*j+1}' for j in range(7)]
        return L
    def outm(hl):
        OP=OPH[hl]; WFR=WFB[hl&3] if (hl>=4 or not HYB) else 56
        return [MF(OUT[mt],WFR+8*mt+4*sp,OP+4*sp,None if (hl==0 and sp==0) else OUT[mt]) for sp in range(2) for mt in range(2)]
    if OPT.get('ldonly'):
        stamp(A,3); e('s_waitcnt vmcnt(0)'); stamp(A,4); e('s_barrier\ns_barrier'); stamp(A,5); e('s_barrier\ns_barrier\ns_barrier\ns_barrier'); dump2(A,1); e('s_endpgm')
    e('s_barrier')
    stamp(A,3)
    for x in rdkv(0): e(x)
    later=[(s_,x) for s_ in range(NUP,4) for x in loads(s_)]
    nld=[int(c) for c in str(OPT.get('nld','77700000' if NUP==1 else '77000000')).zfill(8)]
    vm=[s_ for s_ in range(NUP) for _ in range(7)]
    for h in range(8):
        Ld=[later.pop(0) for _ in range(nld[h])]
        w='s_waitcnt lgkmcnt(0)'
        if h%2==0: w+=' vmcnt(%d)'%sum(1 for t in vm if t>h//2)
        if OPT.get('kl')==2 and 1<=h-OPT.get('k0',0)<=6: e(f's_memtime s[{80+2*(h-OPT.get("k0",0))}:{81+2*(h-OPT.get("k0",0))}]')
        e(w)
        if OPT.get('kl')==1 and 1<=h-OPT.get('k0',0)<=6: e(f's_memtime s[{80+2*(h-OPT.get("k0",0))}:{81+2*(h-OPT.get("k0",0))}]')
        N=num(h); Fv=fin(h-1) if h else []
        K=rdkv(h+1) if h<7 else []
        if h==3 and not OPT.get('nob1'): K=['s_barrier']+K
        if h==7 and OPT.get('eb'): K=['s_barrier']+rdwo(0)
        nF=len(Fv)
        if h<4 or not HYB:
            gap=[K[:4]+Fv[:3],K[4:]+Fv[3:3+(nF-3)//4],Fv[3+(nF-3)//4:3+(nF-3)*5//8],Fv[3+(nF-3)*5//8:]]
        else:
            W=rdwo(h-4)
            if h==4: W=['s_barrier']+W
            gap=[W+Fv[:2],Fv[2:8],Fv[8:12]+K[:3],K[3:],Fv[12:16],Fv[16:20],Fv[20:],[]]
            N=N+outm(h-4)
        for i in range(len(N)):
            if i==4: e('s_waitcnt lgkmcnt(%d)'%len(K))
            e(N[i])
            for x in gap[i]: e(x)
            for _ in range(2):
                if Ld: t,x=Ld.pop(0); e(x); vm.append(t)
    assert not later
    stamp(A,4)
    h0=4 if HYB else 0
    if OPT.get('oc'): e('s_memtime s[82:83]')
    if not OPT.get('eb'):
        e('s_barrier')
        for x in rdwo(h0): e(x)
    F7=fin(7)
    if not OPT.get('eb'):
        for x in F7[:10]: e(x)
    else: F7=['']*10+F7
    for x in rdwo(h0+1): e(x)
    for hh_ in range(h0,8,2):
        e('s_waitcnt lgkmcnt(8)')
        O=outm(hh_)
        for i in range(4):
            e(O[i])
            if hh_==h0 and not OPT.get('eb'):
                for x in F7[10+i*4:14+i*4]: e(x)
            if OPT.get('eb') and hh_<=2:
                k_=10+(2*hh_+i)*3
                for x in F7[k_:k_+3]: e(x)
            if i==0 and hh_<6:
                if OB==4 or (OB==2 and hh_==2): e('s_barrier')
                for x in rdwo(hh_+2): e(x)
        e('s_waitcnt lgkmcnt(%d)'%(8 if hh_<6 else 0))
        O=outm(hh_+1); e(O[0])
        if hh_<6:
            for x in rdwo(hh_+3): e(x)
        for x in O[1:]: e(x)
    stamp(A,5)
    if OPT.get('oc'): e('s_memtime s[84:85]')
    e('s_nop 7\ns_cmp_eq_u32 s46, 0\ns_cbranch_scc1 K2_X0')
    for q in range(4): e(f'ds_write_b128 v6, {vr(OUT[0]+4*q,4)} offset:{1024*q}')
    for j in range(0,16,2): e(f'v_mov_b64 {vr(OUT[0]+j,2)}, {vr(OUT[1]+j,2)}')
    e('s_branch K2_X1\nK2_X0:\ns_nop 1')
    for q in range(4): e(f'ds_write_b128 v6, {vr(OUT[1]+4*q,4)} offset:{1024*q}')
    e('K2_X1:\ns_waitcnt lgkmcnt(0)\ns_barrier')
    for q in range(4): e(f'ds_read_b128 {vr(24+4*q,4)}, v7 offset:{1024*q}')
    st=OPT['st_out']
    for i in range(2):
        e(f's_waitcnt lgkmcnt({2-2*i})')
        for j in range(0,8,2): e(f'v_pk_add_f32 {vr(OUT[0]+8*i+j,2)}, {vr(OUT[0]+8*i+j,2)}, {vr(24+8*i+j,2)}')
        for j in range(4): e(f'v_cvt_pk_bf16_f32 v{56+4*i+j}, v{OUT[0]+8*i+2*j}, v{OUT[0]+8*i+2*j+1}')
        if OPT.get('cst',1): e(f'ds_write_b128 v2, {vr(56+4*i,4)} offset:{32*i}')
        else: e(f'buffer_store_dwordx4 {vr(56+4*i,4)}, v5, s[{SO}:{SO+3}], s54 offen offset:{32*i} {st}')
    if OPT.get('cst',1):
        e(f'''s_waitcnt lgkmcnt(0)
        s_barrier
        ds_read_b128 v[24:27], v3
        ds_read_b128 v[28:31], v3 offset:{8*144}
        s_add_u32 s55, s54, {8*1792}
        s_waitcnt lgkmcnt(1)
        buffer_store_dwordx4 v[24:27], v5, s[{SO}:{SO+3}], s54 offen {st}
        s_waitcnt lgkmcnt(0)
        buffer_store_dwordx4 v[28:31], v5, s[{SO}:{SO+3}], s55 offen {st}''')
    dump2(A,1)
    e('s_endpgm')
    e('K2_A:')
    SP_=904
    e(f'''s_lshl_b32 s43, s41, 2
    s_add_u32 s43, s43, s42
    s_sub_u32 s43, s43, 28
    s_and_b32 s44, s43, 1
    s_lshr_b32 s43, s43, 1
    s_and_b32 s45, s{sWV}, 1
    s_lshr_b32 s46, s{sWV}, 1
    v_lshl_add_u32 v14, v13, 10, v12
    s_lshl_b32 s47, s43, 17
    s_lshl_b32 s48, s{sWV}, 14
    s_add_u32 s47, s47, s48
    s_add_u32 s49, s47, 8192
    s_lshl_b32 s48, s{sWV}, 11
    s_mov_b32 m0, s48
    s_waitcnt lgkmcnt(0)''')
    stamp(A,1)
    srd(A,SD,12,2<<20,AINT_OFF)
    Ld=[]
    for j in range(7):
        Ld.append(f'buffer_load_dwordx4 v14, s[{SD}:{SD+3}], s47 offen lds\ns_add_u32 m0, m0, 1024\ns_add_u32 s47, s47, 128')
        Ld.append(f'buffer_load_dwordx4 v14, s[{SD}:{SD+3}], s49 offen lds\ns_add_u32 m0, m0, {16384-1024}\ns_add_u32 s49, s49, 128')
    G=f"""s_lshl_b32 s56, s44, 10
    s_add_u32 s57, s43, s56
    s_lshl_b32 s59, s44, 4
    s_lshl_b32 s54, s44, 13
    s_cmp_eq_u32 s43, 0
    s_cselect_b32 s57, s59, s57
    s_cselect_b32 s54, s54, 0
    s_cselect_b32 s55, s54, 8192
    s_sub_u32 s58, 2048, s57
    s_add_u32 s59, s57, 1024
    s_cmp_eq_u32 s43, 0
    s_cselect_b32 s58, s59, s58
    s_cselect_b32 s53, {32*1792}, {(-32*1792)&0xffffffff}""".split('\n')
    npre=len(G)
    G+=LANE.split('\n')
    G+=f"""v_lshlrev_b32 v3, 5, v8
    v_add_u32 v3, s57, v3
    v_cvt_f32_u32 v4, v3
    v_mul_f32 v4, {f2u(1/2048)}, v4
    v_cvt_f32_u32 v5, v9
    v_mul_f32 v5, {f2u(8.0)}, v5
    v_mul_f32 v5, v4, v5""".split('\n')
    C,S,M2,M3=24,40,56,72; TT=88; ML=114688
    G+=f"""s_lshr_b32 s60, s{sWV}, 1
    v_cvt_f32_u32 v6, s60
    v_mul_f32 v6, {f2u(16.0)}, v6
    v_fma_f32 v5, v4, v6, v5
    s_and_b32 s60, s{sWV}, 1
    v_cvt_f32_u32 v6, s60
    v_fmamk_f32 v5, v6, {f2u(-0.25)}, v5""".split('\n')
    for j in range(8): G.append(f'v_fmamk_f32 v{TT+j}, v4, {f2u(1.*j)}, v5')
    for j in range(8): G.append(f'v_cos_f32 v{TT+j}, v{TT+j}')
    for j in range(4): G.append(f'v_cvt_pk_bf16_f32 v{TT+8+j}, v{TT+2*j}, v{TT+2*j+1}')
    G+=[f's_lshl_b32 s60, s{sWV}, 10',f'v_add_u32 v7, {ML}, v15','v_add_u32 v6, s60, v7',f'ds_write_b128 v6, {vr(TT+8,4)}']
    for x in Ld: e(x)
    for x in G: e(x)
    srd(A,SO,10,2048*1792)
    aR,aS,bS,bR=16,17,18,19
    e(f"""v_lshl_add_u32 v3, v9, 3, v10
    v_lshlrev_b32 v3, 7, v3
    v_lshrrev_b32 v4, 1, v10
    v_lshl_add_u32 v3, v4, 6, v3
    s_lshl_b32 s60, s{sWV}, 14
    v_add3_u32 v3, v3, v11, s60
    v_add_u32 v{aR}, s54, v3
    v_add_u32 v{aS}, s55, v3
    v_xor_b32 v{bR}, 64, v{aR}
    v_xor_b32 v{bS}, 64, v{aS}
    v_mul_u32_u24 v22, {SP_}, v8
    s_lshl_b32 s60, s{sWV}, 6
    v_lshl_add_u32 v3, v9, 4, s60
    v_add_u32 v20, v22, v3
    v_sub_u32 v21, v22, v3
    v_add_u32 v21, 850, v21""")
    FR=88; AC=[152,168,184,200]; AX,AY=216,232; PS=22
    e('s_waitcnt lgkmcnt(0)\ns_barrier')
    for ks in range(4): e(f'ds_read_b128 {vr(C+4*ks,4)}, v7 offset:{2048*ks}\nds_read_b128 {vr(S+4*ks,4)}, v7 offset:{2048*ks+1024}')
    e('s_waitcnt lgkmcnt(0)\ns_cmp_eq_u32 s43, 0\ns_cbranch_scc1 K2A_G1')
    for j in range(0,16,2): e(f'v_mov_b64 {vr(M2+j,2)}, {vr(S+j,2)}\nv_mov_b64 {vr(M3+j,2)}, {vr(C+j,2)}')
    e('s_branch K2A_G2\nK2A_G1:')
    for j in range(16): e(f'v_xor_b32 v{M2+j}, 0x80000000, v{C+j}\nv_xor_b32 v{M3+j}, 0x80000000, v{S+j}')
    e('K2A_G2:')
    stamp(A,3)
    A2M=OPT.get('a2m',1)
    if A2M==0:
        e('s_waitcnt vmcnt(6)\ns_barrier')
        stamp(A,4)
        e(f's_cmp_lt_u32 s{sWV}, 4\ns_cbranch_scc1 K2A_GO\ns_waitcnt vmcnt(0)\ns_barrier\ns_cmp_eq_u32 s{sWV}, 7\ns_cbranch_scc1 K2A_OUT\nK2A_GO:')
    else:
        e('s_waitcnt vmcnt(0)\ns_barrier')
        stamp(A,4)
        e(f's_cmp_eq_u32 s{sWV}, 7\ns_cbranch_scc0 K2A_GO\ns_barrier\ns_branch K2A_OUT\nK2A_GO:')
    srcs=[(aR,C),(aS,M2),(bS,M3),(bR,S)]
    def rdA(n):
        ks,q=n>>2,n&3
        for jj in range(2): e(f'ds_read_b64_tr_b16 {vr(FR+4*n+2*jj,2)}, v{srcs[q][0]} offset:{2048*ks+512*jj}')
    for n in range(6): rdA(n)
    for n in range(16):
        if n+6<16: rdA(n+6); e('s_waitcnt lgkmcnt(12)')
        else: e(f's_waitcnt lgkmcnt({2*(15-n)})')
        ks,q=n>>2,n&3
        e(MF(AC[q],FR+4*n,srcs[q][1]+4*ks,AC[q] if ks else None))
    e(f's_cmp_eq_u32 s{sWV}, 0\ns_cbranch_scc0 K2A_NS')
    for ks in range(4):
        e(MF(AX,FR+4*(4*ks+3),C+4*ks,AX if ks else None)); e(MF(AY,FR+4*(4*ks+2),M2+4*ks,AY if ks else None))
    e('s_mov_b32 exec_hi, 0')
    e(f'v_mov_b32 v{AC[2]}, 0\nv_mov_b32 v{AC[3]}, 0\nv_sub_f32 v3, v{AX}, v{AY}\nv_cvt_pk_bf16_f32 v{PS}, v{AX}, v{AY}\nv_cvt_pk_bf16_f32 v3, v3, v3')
    e(f's_cmp_eq_u32 s43, 0\ns_cselect_b64 vcc, -1, 0\nv_cndmask_b32 v{PS}, v3, v{PS}, vcc')
    e('s_mov_b32 exec_hi, -1')
    e('K2A_NS:\ns_nop 7\ns_nop 1\ns_cmp_eq_u32 s43, 0\ns_cbranch_scc1 K2A_C1')
    NEG=' neg_lo:[0,1] neg_hi:[0,1]'
    AF,AM,BF,BM=88,104,120,136
    for j in range(0,16,2):
        e(f'v_pk_add_f32 {vr(AC[0]+j,2)}, {vr(AC[0]+j,2)}, {vr(AC[1]+j,2)}{NEG}')
        e(f'v_pk_add_f32 {vr(AC[2]+j,2)}, {vr(AC[2]+j,2)}, {vr(AC[3]+j,2)}')
    PK=152
    def packs(tiles):
        for tl,(F_,M_) in enumerate(tiles):
            p=PK+16*tl
            for j in range(8): e(f'v_cvt_pk_bf16_f32 v{p+j}, v{F_+2*j}, v{F_+2*j+1}')
            for i in range(2):
                b_=M_+8*i
                e(f'v_cvt_pk_bf16_f32 v{p+8+4*i}, v{b_+7}, v{b_}\nv_cvt_pk_bf16_f32 v{p+9+4*i}, v{b_+6}, v{b_+5}\nv_cvt_pk_bf16_f32 v{p+10+4*i}, v{b_+4}, v{b_+3}\nv_cvt_pk_bf16_f32 v{p+11+4*i}, v{b_+2}, v{b_+1}')
    for j in range(0,16,2):
        e(f'v_pk_add_f32 {vr(AF+j,2)}, {vr(AC[0]+j,2)}, {vr(AC[2]+j,2)}{NEG}')
        e(f'v_pk_add_f32 {vr(AM+j,2)}, {vr(AC[0]+j,2)}, {vr(AC[2]+j,2)}')
    packs(((AF,AM),(AM,AF)))
    e('s_branch K2A_C2\nK2A_C1:')
    for j in range(0,16,2):
        e(f'v_pk_add_f32 {vr(AF+j,2)}, {vr(AC[0]+j,2)}, {vr(AC[3]+j,2)}{NEG}')
        e(f'v_pk_add_f32 {vr(AM+j,2)}, {vr(AC[0]+j,2)}, {vr(AC[3]+j,2)}')
        e(f'v_pk_add_f32 {vr(BF+j,2)}, {vr(AC[1]+j,2)}, {vr(AC[2]+j,2)}{NEG}')
        e(f'v_pk_add_f32 {vr(BM+j,2)}, {vr(AC[1]+j,2)}, {vr(AC[2]+j,2)}')
    packs(((AF,AM),(BF,BM)))
    e('K2A_C2:')
    if A2M==0: e(f's_cmp_lt_u32 s{sWV}, 4\ns_cbranch_scc0 K2A_WR\ns_waitcnt vmcnt(0)')
    e(f"""s_barrier
    s_cmp_eq_u32 s{sWV}, 0
    s_cbranch_scc0 K2A_WR
    s_mov_b32 exec_hi, 0
    ds_write_b16 v20, v{PS} offset:448
    ds_write_b16_d16_hi v20, v{PS} offset:{448+32*SP_}
    s_mov_b32 exec_hi, -1
    K2A_WR:""")
    for tl in range(2):
        p=PK+16*tl; T=32*SP_*tl
        for i in range(2):
            e(f'ds_write_b64 v20, {vr(p+4*i,2)} offset:{T+32*i}\nds_write_b64 v20, {vr(p+4*i+2,2)} offset:{T+32*i+8}')
            o=T+32-32*i; r=p+8+4*i
            e(f'ds_write_b16 v21, v{r} offset:{o}\nds_write_b32 v21, v{r+1} offset:{o+2}\nds_write_b64 v21, {vr(r+2,2)} offset:{o+6}\nds_write_b16_d16_hi v21, v{r} offset:{o+14}')
    e('K2A_OUT:')
    stamp(A,5)
    e(f"""s_cmp_lt_u32 s{sWV}, 4
    s_cselect_b32 s50, s57, s58
    s_cselect_b32 s53, {32*1792}, s53
    s_mul_i32 s50, s50, 1792
    s_and_b32 s56, s{sWV}, 3
    s_lshl_b32 s56, s56, 3
    s_mul_i32 s56, s56, s53
    s_add_u32 s50, s50, s56
    s_mul_i32 s56, s{sWV}, {8*SP_}
    v_add_u32 v4, s56, v15
    s_waitcnt lgkmcnt(0)
    s_barrier
    s_mov_b32 exec_hi, 0x00ffffff""")
    for i in range(8):
        if i%2==0 and i: e(f'v_add_u32 v4, {2*SP_}, v4')
        e(f'ds_read2_b64 {vr(24+4*i,4)}, v4 offset0:{113*(i&1)} offset1:{113*(i&1)+1}')
    for i in range(8):
        e(f's_waitcnt lgkmcnt({7-i})')
        e(f'buffer_store_dwordx4 {vr(24+4*i,4)}, v15, s[{SO}:{SO+3}], s50 offen {st}')
        e(f's_add_u32 s50, s50, s53')
    dump2(A,3)
    e('K2_END:\ns_endpgm')

def k3(A):
    e=A.e
    kk,si,role,stat,scale=[int(x) for x in OPT['x'].split(',')]
    e('k3_kernel:')
    e('s_cmp_ge_u32 s2, 1\ns_cbranch_scc1 K3_END')
    e('s_load_dwordx2 s[4:5], s[0:1], 88\nv_lshlrev_b32 v1, 6, v0\nv_mov_b32 v2, 0\nv_mov_b32 v3, -1\nv_mov_b32 v4, 0')
    e('ds_write_b32 v2, v3\nds_write_b32 v2, v4 offset:4\nds_write_b32 v2, v4 offset:8\ns_waitcnt lgkmcnt(0)\ns_barrier')
    e('s_add_u32 s8, s4, 0x800000\ns_addc_u32 s9, s5, 0\ns_mov_b32 s10, 0x20000\ns_mov_b32 s11, 0x20000')
    e(f'buffer_load_dword v5, v1, s[8:11], 0 offen\ns_mov_b32 s12, {0x10000*kk}')
    e(f'buffer_load_dword v6, v1, s[8:11], s12 offen offset:{4*si}\nbuffer_load_dword v7, v1, s[8:11], s12 offen offset:40\ns_waitcnt vmcnt(0)')
    e('ds_min_u32 v2, v5\ns_waitcnt lgkmcnt(0)\ns_barrier\nds_read_b32 v8, v2\ns_waitcnt lgkmcnt(0)\nv_sub_u32 v6, v6, v8')
    e(f'v_cmp_eq_u32 vcc, {role}, v7\nv_cndmask_b32 v6, 0, v6, vcc\nv_cndmask_b32 v9, 0, 1, vcc')
    e(('ds_max_u32 v2, v6 offset:4' if stat==0 else 'ds_add_u32 v2, v6 offset:4')+'\nds_add_u32 v2, v9 offset:8\ns_waitcnt lgkmcnt(0)\ns_barrier')
    e('ds_read_b32 v6, v2 offset:4\nds_read_b32 v9, v2 offset:8\ns_waitcnt lgkmcnt(0)')
    e(f'v_cvt_f32_u32 v6, v6\nv_mul_f32 v6, {f2u(float(scale))}, v6')
    if stat==1: e('v_cvt_f32_u32 v9, v9\nv_rcp_f32 v9, v9\nv_mul_f32 v6, v6, v9')
    e('v_cvt_u32_f32 v6, v6\nv_min_u32 v6, 100000, v6\nv_readfirstlane_b32 s14, v6')
    e('s_memrealtime s[16:17]\ns_waitcnt lgkmcnt(0)\nK3_L:\ns_memrealtime s[18:19]\ns_waitcnt lgkmcnt(0)\ns_sub_u32 s20, s18, s16\ns_cmp_lt_u32 s20, s14\ns_cbranch_scc1 K3_L')
    e('K3_END:\ns_endpgm')

def desc(name,vgpr,sgpr,acc):
    return f'''.amdhsa_kernel {name}
  .amdhsa_next_free_vgpr {vgpr}
  .amdhsa_next_free_sgpr {sgpr}
  .amdhsa_accum_offset {acc}
  .amdhsa_group_segment_fixed_size 0
  .amdhsa_kernarg_size 96
  .amdhsa_user_sgpr_count 2
  .amdhsa_user_sgpr_kernarg_segment_ptr 1
  .amdhsa_system_sgpr_workgroup_id_x 1
.end_amdhsa_kernel
'''
def main():
    A1=Asm(); k1(A1); A2=Asm(); k2(A2)
    assert A1.verify_branches()==0 and A2.verify_branches()==0
    v1=A1.maxreg('v')+1; v2=A2.maxreg('v')+1; a2=A2.maxreg('a')+1
    r4=lambda x:(x+3)//4*4
    hdr=open('concat_heads__spectral_fnet__linear_kernel_hedgehog__prompt.s.ref').read().split('; Override')[0]
    out=hdr+'; @launch kernel=k1_kernel grid=(256,1,1) block=(512,1,1) lds=163840\n; @launch kernel=k2_kernel grid=(256,1,1) block=(512,1,1) lds=131072\n'
    ks=[('k1_kernel',A1),('k2_kernel',A2)]
    if 'x' in OPT:
        A3=Asm(); k3(A3); ks.append(('k3_kernel',A3)); out+='; @launch kernel=k3_kernel grid=(1,1,1) block=(256,1,1) lds=64\n'
    out+='.amdgcn_target "amdgcn-amd-amdhsa--gfx950"\n.text\n'
    for n,A in ks:
        out+=f'.globl {n}\n.p2align 8\n.type {n},@function\n'+A.text()
    out+='.section .rodata,"a"\n.p2align 6\n'+desc('k1_kernel',v1,102,r4(v1))+'.p2align 6\n'+desc('k2_kernel',v2,102,r4(v2))
    if 'x' in OPT: out+='.p2align 6\n'+desc('k3_kernel',16,32,16)
    open(sys.argv[1],'w').write(out)
    print('k1 vgpr',v1,'k2 vgpr',v2,'agpr',a2, 'k1 sgpr',A1.maxreg('s')+1,'k2 sgpr',A2.maxreg('s')+1)
main()
```

```python
import sys, math
from asmlib import *

PHIQ_OFF=0; KV_OFF=0x400000; AINT_OFF=0x500000
LOG2E=1.4426950408889634
OPT=dict(st_phi='sc1', st_aint='sc1', st_out='sc1', prof=0, rot=1, ldx='', lda='', D=2, apf=1, wpf=1, cpf=1, bpf=1, ob=4, eb=1)
for a in sys.argv[2:]:
    k,v=a.split('='); OPT[k]=int(v) if v.lstrip('-').isdigit() else v

def srd(A,d,base,nbytes,off=0):
    if off: A.e(f's_add_u32 s{d}, s{base}, {hex(off)}\ns_addc_u32 s{d+1}, s{base+1}, 0')
    else: A.e(f's_mov_b32 s{d}, s{base}\ns_mov_b32 s{d+1}, s{base+1}')
    A.e(f's_mov_b32 s{d+2}, {hex(nbytes)}\ns_mov_b32 s{d+3}, 0x20000')

NST=[0]
def stamp(A,i):
    if OPT.get('lp') and 1<=i<=6 and not OPT.get('k2'): return
    if OPT.get('kl') and 1<=i<=6 and OPT.get('k2'): return
    if OPT['prof']:
        A.e(f's_memrealtime s[{80+2*i}:{81+2*i}]')
        if i==0: A.e('s_memtime s[98:99]')
def dump(A,role,ws,ko):
    if not OPT['prof']: return
    NST[0]+=1; L=f'PD{NST[0]}'
    A.e(f's_memrealtime s[94:95]\ns_waitcnt vmcnt(0) lgkmcnt(0)\ns_memrealtime s[96:97]\ns_memtime s[78:79]\ns_waitcnt lgkmcnt(0)')
    A.e(f's_cmp_eq_u32 s40, {OPT.get("pw",0)}\ns_cbranch_scc0 {L}')
    A.e(f's_add_u32 s72, s{ws}, {ko}\ns_addc_u32 s73, s{ws+1}, 0\ns_mov_b32 s74, 0x10000\ns_mov_b32 s75, 0x20000\ns_mov_b64 exec, 1\ns_lshl_b32 s76, s2, 6\ns_sub_u32 s78, s78, s98')
    for i in range(9): A.e(f'v_mov_b32 v0, s{80+2*i}\nbuffer_store_dword v0, off, s[72:75], s76 offset:{4*i}')
    A.e(f'v_mov_b32 v0, s78\nbuffer_store_dword v0, off, s[72:75], s76 offset:36\nv_mov_b32 v0, {role}\nbuffer_store_dword v0, off, s[72:75], s76 offset:40')
    A.e(f'{L}:')
def dump1(A,role): dump(A,role,18,0x800000)
def dump2(A,role): dump(A,role,12,0x810000)

def MF(d,a,b,c=None):
    cc='0' if c is None else vr(c,16)
    return f'v_mfma_f32_32x32x16_bf16 {vr(d,16)}, {vr(a,4)}, {vr(b,4)}, {cc}'

def k1(A):
    e=A.e
    SX,SW,SP,SWS,SDB=20,24,28,32,36
    sWV=40
    e('k1_kernel:')
    e('s_cmp_ge_u32 s2, 256\ns_cbranch_scc1 K1_END')
    stamp(A,0)
    e('s_load_dwordx8 s[8:15], s[0:1], 40\ns_load_dwordx4 s[16:19], s[0:1], 80\ns_load_dwordx2 s[4:5], s[0:1], 0')
    e('v_and_b32 v1, 63, v0\nv_lshrrev_b32 v2, 6, v0')
    e('s_and_b32 s41, s2, 7\ns_lshr_b32 s42, s2, 3')
    e(f'v_readfirstlane_b32 s{sWV}, v2')
    e('s_cmp_ge_u32 s42, 24\ns_cbranch_scc1 K1_A')
    e('''s_and_b32 s43, s42, 1
    s_lshl_b32 s50, s41, 1
    s_add_u32 s43, s43, s50
    s_lshr_b32 s50, s42, 1
    s_and_b32 s50, s50, 7
    s_lshr_b32 s44, s42, 4
    s_add_u32 s53, s44, 1
    s_lshl_b32 s49, s50, s53''')
    vRX=10; vRW,vRB,vX0,vX1,vW,vP,vSA,vFL,vW0,vW1=14,15,16,17,18,19,20,21,22,23
    TM=24; WF=[32,48]; ACC0,ACC1=64,80; WPH=96; QB=112; EN=120; XF=144
    SLOT=24576; WBL=98304; WPL=155648
    e(f"""s_cmp_eq_u32 s44, 1
    s_cselect_b32 s46, 112, 896
    s_cselect_b32 s51, 224, 112
    s_cselect_b32 s52, 0, 896
    s_mul_i32 s45, s50, s51
    s_add_u32 s45, s45, s52
    v_lshrrev_b32 v3, 3, v1
    v_lshrrev_b32 v4, 4, v1
    v_and_b32 v5, 7, v1
    v_xor_b32 v6, v5, v4
    v_lshlrev_b32 v6, 4, v6
    v_mul_u32_u24 v7, 896, v3
    v_add_u32 v{vX0}, v7, v6
    v_xor_b32 v{vX1}, 64, v{vX0}
    v_add_u32 v{vX1}, {8*896}, v{vX1}
    v_and_b32 v4, 1, v4
    v_lshlrev_b32 v4, 2, v4
    v_xor_b32 v5, v5, v4
    v_min_u32 v5, 6, v5
    v_mul_u32_u24 v7, 2688, v3
    v_lshl_add_u32 v{vW}, v5, 4, v7
    v_lshlrev_b32 v3, 4, v0
    s_lshl_b32 s54, s43, 3
    s_add_u32 s54, s54, s{sWV}
    s_mul_i32 s54, s54, {16*896}
    s_mul_i32 s62, s{sWV}, {8*2688}
    s_add_u32 s62, s62, s45
    s_lshl_b32 s56, s{sWV}, 11
    s_lshl_b32 s61, s{sWV}, 10
    s_mul_i32 s57, s49, 1568
    s_add_u32 m0, s61, {WPL}""")
    if OPT['rot']:
        e(f"""s_min_u32 s58, s41, 6
        s_lshl_b32 s60, s58, 7
        s_add_u32 s54, s54, s60
        s_mul_i32 s55, s58, {64*2688}
        s_add_u32 s55, s55, s62""")
    else: e('s_mov_b32 s58, 0\ns_mov_b32 s55, s62')
    e('s_add_u32 s59, s55, s46\ns_mov_b32 s63, s58\ns_add_u32 s47, s62, s46')
    e('s_waitcnt lgkmcnt(0)')
    stamp(A,1)
    srd(A,SX,8,2048*896); srd(A,SW,10,448*2688); srd(A,SP,12,16*1568)
    lx=OPT['ldx']
    def issue(st):
        sl=SLOT*(st%4)
        return [f's_add_u32 m0, s56, {sl}\ns_add_u32 s58, s58, 1\nbuffer_load_dwordx4 v{vX0}, s[{SX}:{SX+3}], s54 offen {lx} lds',
                f's_add_u32 m0, s61, {sl+16384}\ns_cmp_eq_u32 s58, 7\nbuffer_load_dwordx4 v{vW}, s[{SW}:{SW+3}], s55 offen lds\ns_cselect_b32 s60, {128-896+(1<<32)}, 128\ns_cselect_b32 s55, {-64*2688*6+(1<<32)}, {64*2688}'.replace('s_cselect_b32 s55','s_cselect_b32 s64'),
                f's_add_u32 m0, s56, {sl+1024}\ns_add_u32 s55, s55, s64\nbuffer_load_dwordx4 v{vX1}, s[{SX}:{SX+3}], s54 offen {lx} lds\ns_add_u32 s54, s54, s60']
    def issueB(t):
        return [f's_add_u32 m0, s61, {WBL+8192*t}\ns_add_u32 s63, s63, 1\nbuffer_load_dwordx4 v{vW}, s[{SW}:{SW+3}], s59 offen lds\ns_add_u32 s59, s59, {64*2688}\ns_cmp_eq_u32 s63, 7\ns_cselect_b32 s59, s47, s59']
    D=OPT['D']
    e(f'buffer_load_dwordx4 v3, s[{SP}:{SP+3}], s57 offen lds')
    for st in range(D):
        for x in issue(st): e(x)
    e(f"""v_and_b32 v3, 3, v2
    v_and_b32 v4, 31, v1
    v_lshl_add_u32 v8, v3, 5, v4
    v_lshrrev_b32 v9, 5, v1
    v_bfe_u32 v5, v8, 1, 3
    v_xor_b32 v5, v5, v9
    v_lshlrev_b32 v5, 4, v5
    v_lshl_add_u32 v{vRX}, v8, 7, v5
    v_bfe_u32 v3, v1, 4, 1
    v_and_b32 v4, 3, v1
    v_lshl_add_u32 v3, v3, 2, v4
    v_min_u32 v3, 6, v3
    v_lshlrev_b32 v7, 3, v3
    v_lshrrev_b32 v2, 2, v2
    v_mad_u32_u24 v3, v2, 56, v7
    v_bfe_u32 v0, v1, 2, 2
    v_lshl_add_u32 v5, v9, 3, v0
    v_lshlrev_b32 v5, 7, v5
    v_bfe_u32 v4, v1, 3, 1
    v_lshlrev_b32 v4, 6, v4
    v_xor_b32 v6, v3, v4
    v_add_u32 v5, v5, v6
    v_add_u32 v{vRW}, 16384, v5
    v_add_u32 v{vRB}, {WBL}, v5
    v_lshl_add_u32 v4, v9, 2, v0
    v_mul_u32_u24 v4, 56, v4
    v_mul_u32_u24 v5, 1568, v2
    v_add3_u32 v3, v7, v4, v5
    v_add_u32 v{vP}, {WPL}, v3""")
    for ks in range(1,4): e(f'v_xor_b32 v{vRX+ks}, {32*ks}, v{vRX}')
    srd(A,SDB,16,256)
    e(f"""s_cmp_eq_u32 s44, 1
    s_cselect_b32 s60, {PHIQ_OFF}, {KV_OFF}
    s_cselect_b32 s{SWS+2}, {64*16*3584}, {16*3584}
    s_add_u32 s{SWS}, s18, s60
    s_addc_u32 s{SWS+1}, s19, 0
    s_mov_b32 s{SWS+3}, 0x20000
    s_and_b32 s65, s{sWV}, 3
    s_lshl_b32 s66, s43, 2
    s_add_u32 s65, s65, s66
    s_lshl_b32 s65, s65, 4
    s_lshr_b32 s66, s{sWV}, 2
    s_lshl_b32 s67, s66, 1
    s_add_u32 s65, s65, s67
    s_add_u32 s65, s65, s49
    s_mul_i32 s65, s65, 3584
    v_lshlrev_b32 v{vSA}, 4, v1
    s_mul_i32 s67, s66, 24576
    v_mul_u32_u24 v3, 192, v8
    v_bfe_u32 v4, v8, 1, 2
    v_lshlrev_b32 v5, 1, v9
    v_xor_b32 v4, v4, v5
    v_lshl_add_u32 v3, v4, 4, v3
    v_add_u32 v{vW0}, s67, v3
    v_xor_b32 v{vW1}, 16, v{vW0}
    s_mov_b32 s68, {f2u(LOG2E)}
    s_lshr_b32 s66, s{sWV}, 1
    s_and_b32 s67, s{sWV}, 1
    s_mul_i32 s71, s66, 24576
    s_lshl_b32 s69, s67, 6
    v_lshl_add_u32 v4, v9, 3, v0
    v_mul_u32_u24 v4, 192, v4
    v_and_b32 v5, 1, v1
    v_bfe_u32 v6, v1, 4, 1
    v_lshl_add_u32 v5, v5, 1, v6
    v_lshrrev_b32 v3, 1, v0
    v_xor_b32 v5, v5, v3
    v_lshl_add_u32 v4, v5, 4, v4
    v_bfe_u32 v5, v1, 1, 1
    v_lshl_add_u32 v4, v5, 3, v4
    v_add_u32 v4, s71, v4
    v_xor_b32 v5, 32, v4
    v_add_u32 v6, s69, v4
    v_add_u32 v7, s69, v5
    s_and_b32 s71, s50, 2
    s_add_u32 s71, s71, s66
    s_lshl_b32 s71, s71, 1
    s_lshr_b32 s69, s50, 2
    s_add_u32 s71, s71, s69
    s_lshl_b32 s71, s71, 1
    s_and_b32 s69, s50, 1
    s_add_u32 s71, s71, s69
    s_mul_i32 s71, s71, 3584
    s_lshl_b32 s69, s67, 11
    s_add_u32 s71, s71, s69
    v_lshlrev_b32 v3, 2, v1
    v_mov_b32 v2, 0x3f80""")
    def rdW(ad,buf,off):
        return [f'ds_read_b64_tr_b16 {vr(WF[buf]+4*ks+2*jj,2)}, v{ad} offset:{off+2048*ks+512*jj}' for ks in range(4) for jj in range(2)]
    def shift():
        e(('s_memtime' if OPT.get('cyc') else 's_memrealtime')+' s[76:77]\ns_waitcnt lgkmcnt(0)')
        for i in range(1,7): e(f's_mov_b32 s{80+2*i}, s{82+2*i}')
        e('s_mov_b32 s92, s76')
    stamp(A,2)
    issued=[('p',1)]+[(k,3) for k in range(D)]
    def younger(tag):
        n=0
        for t,c in reversed(issued):
            if t==tag: return n
            n+=c
        raise
    nB=0
    for s_ in range(7):
        e(f's_waitcnt vmcnt({younger(s_)}) lgkmcnt(0)\ns_barrier')
        if s_==0: stamp(A,3)
        elif OPT.get('lp')==1: shift()
        I=[]
        if s_+D<7: I=issue(s_+D); issued.append((s_+D,3))
        k=int(str(OPT.get('bs','0000043')).zfill(7)[s_])
        for t in range(nB,nB+k): I+=issueB(t); issued.append((f'B{t}',1))
        nB+=k
        R=[]
        for ks in range(4): R+=[f'ds_read_b128 {vr(XF+16*s_+4*ks,4)}, v{vRX+ks}']+rdW(vRW,s_&1,0)[2*ks:2*ks+2]
        if s_==0: R+=[f'ds_read_b64_tr_b16 {vr(WPH+8*u+2*q,2)}, v{vP} offset:{3136*u+448*q}' for u in range(2) for q in range(4)]
        M=[MF(ACC0,WF[(s_-1)&1]+4*ks,XF+16*(s_-1)+4*ks,ACC0 if (s_>1 or ks) else None) for ks in range(4)] if s_ else []
        d=SLOT if (s_+1)%4 else -3*SLOT
        V=[f'v_add_u32 v{r}, {d&0xffffffff}, v{r}' for r in (vRX,vRX+1,vRX+2,vRX+3,vRW)] if s_<6 else []
        for i in range(4):
            if M: e(M[i])
            for x in R[i*len(R)//4:(i+1)*len(R)//4]: e(x)
            if i<len(I): e(I[i])
        for x in I[4:]: e(x)
        for x in V: e(x)
    P=ACC0; EP=ACC0
    PHR=[112+j for j in range(8)]+[136+j for j in range(4)]
    def unit(P,EN,PH,pk=1):
        U=[]
        mx,nm,t0,t1=TM,TM+1,TM+2,TM+3; EP=P
        U+=[f'v_permlane32_swap_b32 v{P+12}, v{P+14}',f'v_permlane32_swap_b32 v{P+13}, v{P+15}']
        U+=[f'v_max3_f32 v{mx}, v{P}, v{P+1}, v{P+2}',f'v_min3_f32 v{nm}, v{P}, v{P+1}, v{P+2}']
        for j in range(3,13,2): U+=[f'v_max3_f32 v{mx}, v{mx}, v{P+j}, v{P+j+1}',f'v_min3_f32 v{nm}, v{nm}, v{P+j}, v{P+j+1}']
        U+=[f'v_max_f32 v{mx}, v{mx}, v{P+13}',f'v_min_f32 v{nm}, v{nm}, v{P+13}']
        U+=[f'v_mul_f32 v{mx}, s68, v{mx}',f'v_mul_f32 v{nm}, {f2u(-LOG2E)}, v{nm}']
        U+=[f'v_permlane32_swap_b32 v{mx}, v{nm}',f'v_max_f32 v{t0}, v{mx}, v{nm}',f'v_max_f32 v{t1}, v{mx}, v{nm}',f'v_permlane32_swap_b32 v{t0}, v{t1}']
        if pk:
            for j in range(0,14,2):
                U+=[f'v_pk_fma_f32 {vr(EN+j,2)}, {vr(P+j,2)}, s[68:69], {vr(t0,2)} op_sel:[0,0,1] op_sel_hi:[1,0,1] neg_lo:[0,1,1] neg_hi:[0,1,1]',
                    f'v_pk_fma_f32 {vr(EP+j,2)}, {vr(P+j,2)}, s[68:69], {vr(t0,2)} op_sel_hi:[1,0,0] neg_lo:[0,0,1] neg_hi:[0,0,1]']
        else:
            for j in range(14): U+=[f'v_fma_f32 v{EN+j}, -v{P+j}, s68, -v{t1}',f'v_fma_f32 v{EP+j}, v{P+j}, s68, -v{t0}']
        for j in range(14): U+=[f'v_exp_f32 v{EP+j}, v{EP+j}',f'v_exp_f32 v{EN+j}, v{EN+j}']
        sp,sn=TM+4,TM+6
        if pk:
            U+=[f'v_pk_add_f32 {vr(sp,2)}, {vr(EP,2)}, {vr(EP+2,2)}',f'v_pk_add_f32 {vr(sn,2)}, {vr(EN,2)}, {vr(EN+2,2)}']
            for j in range(4,14,2): U+=[f'v_pk_add_f32 {vr(sp,2)}, {vr(sp,2)}, {vr(EP+j,2)}',f'v_pk_add_f32 {vr(sn,2)}, {vr(sn,2)}, {vr(EN+j,2)}']
            U+=[f'v_add_f32 v{mx}, v{sp}, v{sp+1}',f'v_add_f32 v{nm}, v{sn}, v{sn+1}']
        else:
            U+=[f'v_add_f32 v{mx}, v{EP}, v{EP+1}',f'v_add_f32 v{nm}, v{EN}, v{EN+1}']
            for j in range(2,14): U+=[f'v_add_f32 v{mx}, v{mx}, v{EP+j}',f'v_add_f32 v{nm}, v{nm}, v{EN+j}']
        U+=[f'v_permlane32_swap_b32 v{mx}, v{nm}',f'v_add_f32 v{t0}, v{mx}, v{nm}',f'v_rcp_f32 v{t0}, v{t0}',f'v_mov_b32 v{t1}, v{t0}',f'v_permlane32_swap_b32 v{t0}, v{t1}']
        if pk: U+=[f'v_pk_mul_f32 {vr(EP+j,2)}, {vr(EP+j,2)}, {vr(t0,2)} op_sel_hi:[1,0]' for j in range(0,14,2)]
        else: U+=[f'v_mul_f32 v{EP+j}, v{t0}, v{EP+j}' for j in range(14)]
        U+=[f'v_cvt_pk_bf16_f32 v{PH[j]}, v{EP+2*j}, v{EP+2*j+1}' for j in range(7)]
        if pk: U+=[f'v_pk_mul_f32 {vr(EN+j,2)}, {vr(EN+j,2)}, {vr(t0,2)} op_sel:[0,1] op_sel_hi:[1,1]' for j in range(0,14,2)]
        else: U+=[f'v_mul_f32 v{EN+j}, v{t1}, v{EN+j}' for j in range(14)]
        U+=[f'v_cvt_pk_bf16_f32 v{PH[7+j]}, v{EN+2*j}, v{EN+2*j+1}' for j in range(7)]
        return U
    e('s_waitcnt lgkmcnt(0)')
    for ks in range(4): e(MF(ACC0,WF[0]+4*ks,XF+96+4*ks,ACC0))
    e('v_cmp_gt_u32 vcc, 32, v1')
    for j in (6,7,14,15): e(f'v_cndmask_b32 v{WPH+j}, 0, v{WPH+j}, vcc')
    for j in range(8): e(f'v_cvt_pk_bf16_f32 v{QB+j}, v{ACC0+2*j}, v{ACC0+2*j+1}')
    e(MF(P,WPH,QB)); e(MF(P,WPH+4,QB+4,P))
    n1=OPT.get('n1',36)
    Ua=unit(P,EN,PHR+[140,141],1); Ub=unit(P,EN,PHR+[140,141],0)
    cutA=22+14; cutB=22+28
    U=Ua[:cutA]+Ub[cutB:]
    for x in U[:n1]: e(x)
    e(f's_waitcnt vmcnt({younger("B2")})\ns_barrier')
    stamp(A,4)
    if OPT.get('oc'): e('s_memtime s[82:83]')
    for x in rdW(vRB,1,0)+rdW(vRB,0,8192): e(x)
    gaps=[1]*24+[0]*4
    cost=lambda x: 2.0 if x.startswith(('v_exp','v_rcp')) else 1.0
    tot=sum(gaps); k=n1; acc=0; ctot=sum(cost(x) for x in U[n1:]); cdone=0
    for t in range(7):
        e('s_waitcnt lgkmcnt(%d)'%(8 if t<6 else 0))
        for ks in range(4):
            e(MF(ACC1,WF[(t+1)&1]+4*ks,XF+16*t+4*ks,ACC1 if (t or ks) else None))
            if t+2<7:
                if t==1 and ks==0: e('s_waitcnt vmcnt(0)\ns_barrier'); e(f'buffer_load_dword v{vFL}, off, s[{SDB}:{SDB+3}], 0 sc1')
                for x in rdW(vRB,(t+1)&1,8192*(t+2))[2*ks:2*ks+2]: e(x)
            if t==6 and ks==0:
                st=OPT['st_phi']
                e('s_cmp_eq_u32 s44, 0\ns_cbranch_scc1 K1_S1')
                for c,r in enumerate((112,116,136)): e(f'buffer_store_dwordx4 {vr(r,4)}, v{vSA}, s[{SWS}:{SWS+3}], s65 offen offset:{1024*c} {st}')
                e(f'''s_branch K1_S2
                K1_S1:
                ds_write_b128 v{vW0}, v[112:115]
                ds_write_b128 v{vW1}, v[116:119]
                ds_write_b128 v{vW0}, v[136:139] offset:64
                ds_write_b64 v{vW1}, v[140:141] offset:64
                K1_S2:''')
            acc+=gaps[4*t+ks]
            while k<len(U) and cdone<ctot*acc/tot-1e-9: e(U[k]); cdone+=cost(U[k]); k+=1
    assert k==len(U)
    stamp(A,5)
    if OPT.get('oc'): e('s_memtime s[84:85]')
    e('s_cmp_eq_u32 s44, 0\ns_cbranch_scc1 K1_KV')
    st=OPT['st_phi']
    e('s_add_u32 s65, s65, 3072')
    Q2=144; P2=160; E2=176; H2=192
    for j in range(8): e(f'v_cvt_pk_bf16_f32 v{Q2+j}, v{ACC1+2*j}, v{ACC1+2*j+1}')
    e(MF(P2,WPH+8,Q2)); e(MF(P2,WPH+12,Q2+4,P2))
    for x in unit(P2,E2,[H2+j for j in range(12)]+[142,143]): e(x)
    for c in range(3): e(f'buffer_store_dwordx4 {vr(H2+4*c,4)}, v{vSA}, s[{SWS}:{SWS+3}], s65 offen offset:{1024*c} {st}')
    e(f'buffer_store_dwordx4 v[140:143], v{vSA}, s[{SWS}:{SWS+3}], s65 offen offset:3072 {st}')
    if OPT.get('ppf'):
        e(f'''v_lshlrev_b32 v3, 7, v1
        s_sub_u32 s65, s65, 3072
        s_mov_b32 exec_hi, 0x00ffffff
        s_waitcnt vmcnt(0)
        buffer_load_dword v4, v3, s[{SWS}:{SWS+3}], s65 offen''')
    dump1(A,2)
    e('s_endpgm')
    e('K1_KV:')
    T2=144
    e('s_nop 7\ns_nop 1')
    for j in range(8): e(f'v_cvt_pk_bf16_f32 v{T2+j}, v{ACC1+2*j}, v{ACC1+2*j+1}')
    e(f"""v_cndmask_b32 v{T2+6}, v2, v{T2+6}, vcc
    v_cndmask_b32 v{T2+7}, v2, v{T2+7}, vcc
    ds_write_b128 v{vW0}, {vr(T2,4)} offset:128
    v_permlane32_swap_b32 v{T2+6}, v{T2+7}
    ds_write_b128 v{vW1}, {vr(T2+4,4)} offset:128
    s_mov_b32 s70, 0""")
    e(f's_waitcnt vmcnt(0)\nv_readfirstlane_b32 s69, v{vFL}')
    e('s_waitcnt lgkmcnt(0)\ns_barrier')
    stamp(A,6)
    if OPT.get('pw',0)>=4:
        e(f's_cmp_ge_u32 s{sWV}, 4\ns_cbranch_scc0 K1_KV2'); dump1(A,1); e('s_endpgm\nK1_KV2:')
    e(f's_cmp_ge_u32 s{sWV}, 4\ns_cbranch_scc1 K1_END')
    FA,FB,KA=160,192,224
    for ks in range(8):
        e(f'ds_read_b64_tr_b16 {vr(FA+4*ks,2)}, v6 offset:{3072*ks}')
        e(f'ds_read_b64_tr_b16 {vr(FA+4*ks+2,2)}, v7 offset:{3072*ks+768}')
        e(f'ds_read_b64_tr_b16 {vr(FB+4*ks,2)}, v4 offset:{3072*ks+128}')
        e(f'ds_read_b64_tr_b16 {vr(FB+4*ks+2,2)}, v5 offset:{3072*ks+768+128}')
        if ks>=2:
            e('s_waitcnt lgkmcnt(8)'); e(MF(KA,FA+4*(ks-2),FB+4*(ks-2),KA if ks>2 else None))
    e('s_waitcnt lgkmcnt(4)'); e(MF(KA,FA+24,FB+24,KA))
    e('s_waitcnt lgkmcnt(0)'); e(MF(KA,FA+28,FB+28,KA))
    e('K1_POLL:\ns_cmp_ge_u32 s69, 64\ns_cbranch_scc1 K1_GO\ns_add_u32 s70, s70, 1\ns_cmp_ge_u32 s70, 0x40000\ns_cbranch_scc1 K1_GO\ns_sleep 2')
    e(f'buffer_load_dword v{vFL}, off, s[{SDB}:{SDB+3}], 0 sc1\ns_waitcnt vmcnt(0)\nv_readfirstlane_b32 s69, v{vFL}')
    e('s_branch K1_POLL\nK1_GO:\ns_nop 7\ns_nop 1')
    for j in range(6):
        e(f'v_cvt_pk_bf16_f32 v{FA+j}, v{KA+2*j}, v{KA+2*j+1}')
        e(f'buffer_atomic_pk_add_bf16 v{FA+j}, v3, s[{SWS}:{SWS+3}], s71 offen offset:{256*j}')
    e('s_cmp_eq_u32 s67, 1\ns_cbranch_scc1 K1_END')
    for j in range(6,8):
        e(f'v_cvt_pk_bf16_f32 v{FA+j}, v{KA+2*j}, v{KA+2*j+1}')
        e(f'buffer_atomic_pk_add_bf16 v{FA+j}, v3, s[{SWS}:{SWS+3}], s71 offen offset:{256*j}')
    dump1(A,1)
    e('s_endpgm')
    e('K1_A:')
    e(f"""s_lshl_b32 s43, s41, 3
    s_add_u32 s43, s43, s42
    s_sub_u32 s43, s43, 24
    v_lshlrev_b32 v3, 4, v1
    v_lshlrev_b32 v17, 7, v1""")
    if OPT['cpf']:
        e(f"""s_cmp_eq_u32 s{sWV}, 6
        s_cbranch_scc0 K1A_H1
        s_getpc_b64 s[44:45]
        K1_PC:
        s_sub_u32 s44, s44, K1_PC-k1_kernel
        s_subb_u32 s45, s45, 0
        global_load_dword v18, v17, s[44:45]
        global_load_dword v18, v17, s[44:45] offset:4032
        K1A_H1:""".replace("global_load_dword v18, v17, s[44:45] offset:4032\n","s_add_u32 s44, s44, 8192\ns_addc_u32 s45, s45, 0\nglobal_load_dword v18, v17, s[44:45]\n"))
    e(f"""s_lshl_b32 s44, s{sWV}, 8
    s_add_u32 s44, s44, s43
    s_mul_i32 s44, s44, 896
    s_mul_i32 s45, s{sWV}, {4*960}
    s_lshl_b32 s46, s43, 2
    s_add_u32 s46, s46, s{sWV}
    s_mul_i32 s46, s46, {56*128}
    s_mul_i32 s47, s43, 896
    s_mov_b32 m0, s45
    s_mov_b32 exec_hi, 0x00ffffff
    s_waitcnt lgkmcnt(0)""")
    stamp(A,1)
    if OPT['apf']:
        srd(A,SW,8,2048*896)
        e(f's_cmp_lt_u32 s{sWV}, 4\ns_cbranch_scc0 K1A_H2\nbuffer_load_dword v18, v17, s[{SW}:{SW+3}], s46 offen {lx}\nK1A_H2:')
    e(f's_cmp_eq_u32 s{sWV}, 7\ns_cbranch_scc0 K1A_H3')
    srd(A,SWS,18,16*3584,KV_OFF); srd(A,SDB,16,256)
    e(f"""v_mov_b64 v[12:13], 0
    v_mov_b64 v[14:15], 0
    v_mov_b32 v16, 1
    buffer_store_dwordx4 v[12:15], v3, s[{SWS}:{SWS+3}], s47 offen sc1
    s_waitcnt vmcnt(0)
    s_mov_b64 exec, 1
    buffer_atomic_add v16, off, s[{SDB}:{SDB+3}], 0 sc1
    s_mov_b32 exec_lo, -1
    s_mov_b32 exec_hi, 0x00ffffff
    K1A_H3:""")
    srd(A,SX,4,2048*896)
    for i in range(4):
        if i: e(f's_add_u32 m0, s45, {960*i}\ns_add_u32 s44, s44, {64*896}')
        e(f'buffer_load_dwordx4 v3, s[{SX}:{SX+3}], s44 offen {OPT["lda"]} lds')
    if OPT.get('bpf'):
        srd(A,SW,10,448*2688)
        e(f'''s_mov_b32 exec_hi, -1
        v_mul_u32_u24 v19, 37, v1
        v_lshrrev_b32 v19, 8, v19
        v_mul_u32_u24 v4, {2688-7*128}, v19
        v_add_u32 v19, v4, v17
        s_sub_u32 s46, s42, 24
        s_lshl_b32 s46, s46, 3
        s_add_u32 s46, s46, s{sWV}
        s_mul_i32 s46, s46, {7*2688}
        s_add_u32 s46, s46, 1792
        s_mov_b32 exec_hi, 0x1ffff
        buffer_load_dword v18, v19, s[{SW}:{SW+3}], s46 offen''')
        if OPT['bpf']==2:
            e(f's_sub_u32 s46, s46, 896\nbuffer_load_dword v18, v19, s[{SW}:{SW+3}], s46 offen')
    VL=32768; OL=73728
    e('s_mov_b32 exec_hi, -1\nv_and_b32 v8, 31, v1\nv_lshrrev_b32 v9, 5, v1')
    e(f'''v_mul_u32_u24 v10, {8*2560}, v9
    v_mul_u32_u24 v16, 80, v8
    v_add_u32 v10, v16, v10
    v_lshl_add_u32 v10, v2, 3, v10
    v_add_u32 v10, {VL}, v10''')
    FF=20; HH=28; CP=32; SPn=40; A2=48; B2=56; TT=64
    e(f'''v_lshrrev_b32 v4, 1, v8
    v_and_b32 v5, 1, v8
    v_cvt_f32_u32 v5, v5
    v_mul_f32 v5, {f2u(-0.25)}, v5
    v_cmp_eq_u32 vcc, 1, v8
    v_cndmask_b32 v4, v4, 16, vcc
    v_cndmask_b32 v5, v5, 0, vcc
    v_cvt_f32_u32 v4, v4
    v_mul_f32 v4, {f2u(1/32)}, v4
    v_cvt_f32_u32 v11, v9
    v_mul_f32 v12, 4.0, v11
    v_add_f32 v11, v12, v12
    v_fma_f32 v5, v4, v11, v5''')
    for ks in range(2):
        for j in range(8): e(f'v_fmamk_f32 v{TT+8*ks+j}, v4, {f2u(16.*ks+j)}, v5')
    for j in range(16): e(f'v_cos_f32 v{TT+j}, v{TT+j}')
    for j in range(8): e(f'v_cvt_pk_bf16_f32 v{FF+j}, v{TT+2*j}, v{TT+2*j+1}')
    e(f'''v_bfe_u32 v4, v8, 2, 1
    v_bfe_u32 v5, v8, 3, 1
    v_lshl_add_u32 v4, v4, 1, v5
    v_bfe_u32 v5, v8, 1, 1
    v_lshl_add_u32 v4, v4, 1, v5
    v_and_b32 v5, 1, v8
    v_cvt_f32_u32 v5, v5
    v_mul_f32 v5, {f2u(-0.25)}, v5
    v_and_b32 v6, 15, v8
    v_cmp_eq_u32 vcc, 1, v6
    v_cndmask_b32 v4, v4, 8, vcc
    v_cndmask_b32 v5, v5, 0, vcc
    v_cvt_f32_u32 v4, v4
    v_mul_f32 v4, {f2u(1/16)}, v4
    v_fma_f32 v5, v4, v12, v5''')
    for j in range(8): e(f'v_fmamk_f32 v{TT+j}, v4, {f2u(8.*(j>>2)+(j&3))}, v5')
    for j in range(8): e(f'v_cos_f32 v{TT+j}, v{TT+j}')
    for j in range(4): e(f'v_cvt_pk_bf16_f32 v{HH+j}, v{TT+2*j}, v{TT+2*j+1}')
    e(f'''s_cmp_eq_u32 s{sWV}, 0
    s_cselect_b32 s47, 8, s{sWV}
    s_sub_u32 s48, 0, s47
    v_lshrrev_b32 v4, 2, v8
    v_lshlrev_b32 v4, 5, v4
    v_and_b32 v5, 3, v8
    v_add_u32 v5, 1, v5
    v_lshrrev_b32 v5, 1, v5
    v_lshl_add_u32 v4, v5, 4, v4
    v_and_b32 v5, 1, v8
    v_cmp_eq_u32 vcc, 1, v5
    v_mov_b32 v6, s48
    v_cndmask_b32 v6, v2, v6, vcc
    v_add_u32 v4, v4, v6
    v_cvt_f32_u32 v4, v4
    v_mul_f32 v4, {f2u(1/448)}, v4
    v_mul_f32 v5, v4, v11''')
    for ks in range(2):
        for j in range(8): e(f'v_fmamk_f32 v{TT+8*ks+j}, v4, {f2u(16.*ks+j)}, v5')
    for j in range(16): e(f'v_sin_f32 v{TT+16+j}, v{TT+j}\nv_cos_f32 v{TT+j}, v{TT+j}')
    for j in range(8): e(f'v_cvt_pk_bf16_f32 v{CP+j}, v{TT+2*j}, v{TT+2*j+1}\nv_cvt_pk_bf16_f32 v{SPn+j}, v{TT+16+2*j}, v{TT+16+2*j+1}')
    e(f's_cmp_eq_u32 s{sWV}, 0\ns_cbranch_scc1 K1A_SPEC')
    e('''v_mov_b32 v4, 0x80008000
    v_cndmask_b32 v5, v4, 0, vcc
    v_cndmask_b32 v6, 0, v4, vcc''')
    for j in range(8): e(f'v_xor_b32 v{A2+j}, v5, v{SPn+j}\nv_xor_b32 v{B2+j}, v6, v{CP+j}')
    e('s_branch K1A_ST1\nK1A_SPEC:')
    for j in range(8):
        e(f'''v_cndmask_b32 v{A2+j}, 0, v{CP+j}, vcc
        v_cndmask_b32 v{B2+j}, 0, v{SPn+j}, vcc
        v_cndmask_b32 v{CP+j}, v{CP+j}, 0, vcc
        v_cndmask_b32 v{SPn+j}, v{SPn+j}, 0, vcc''')
    e('v_mov_b32 v4, 0xbf803f80\nv_cmp_eq_u32 vcc, 0, v8')
    for j in range(8): e(f'v_cndmask_b32 v{SPn+j}, v{SPn+j}, v4, vcc')
    e('K1A_ST1:')
    XA=64; BO=80; U0=96; U1=112; VU=96
    e(f'''v_bfe_u32 v4, v1, 2, 2
    v_lshl_add_u32 v4, v9, 3, v4
    v_mul_u32_u24 v4, 960, v4
    v_and_b32 v5, 1, v1
    v_bfe_u32 v6, v1, 4, 1
    v_lshl_add_u32 v5, v5, 1, v6
    v_bfe_u32 v6, v1, 1, 1
    v_lshl_add_u32 v5, v5, 1, v6
    v_mad_u32_u24 v4, v5, 56, v4
    v_lshl_add_u32 v4, v2, 3, v4
    v_mul_u32_u24 v13, 5120, v2
    v_add_u32 v13, v16, v13
    v_lshl_add_u32 v13, v9, 4, v13
    v_add_u32 v13, {VL}, v13
    v_mul_u32_u24 v14, 1032, v8
    v_lshl_add_u32 v14, v9, 7, v14
    v_add_u32 v14, {OL}, v14
    s_lshl_b32 s48, s48, 1
    v_add_u32 v15, s48, v14
    v_lshl_add_u32 v14, v2, 1, v14''')
    for r in range(8): e(f'v_mov_b64 {vr(XA+2*r,2)}, 0')
    stamp(A,3)
    e('s_waitcnt vmcnt(0)\ns_barrier')
    stamp(A,4)
    e(f's_cmp_eq_u32 s{sWV}, 7\ns_cbranch_scc1 K1A_VW')
    for dh in range(2):
        for ks in range(2):
            for jj in range(2):
                e(f'ds_read_b64_tr_b16 {vr(XA+8*dh+4*ks+2*jj,2)}, v4 offset:{15360*ks+3840*jj+448*dh}')
    e('s_waitcnt lgkmcnt(4)')
    e(MF(U0,XA,FF)); e(MF(U0,XA+4,FF+4,U0))
    e('s_waitcnt lgkmcnt(0)')
    e(MF(U1,XA+8,FF)); e(MF(U1,XA+12,FF+4,U1))
    for u in range(4):
        e(f'v_cvt_pk_bf16_f32 v{BO+4*u}, v{U0+u}, v{U0+4+u}\nv_cvt_pk_bf16_f32 v{BO+4*u+1}, v{U0+8+u}, v{U0+12+u}')
    for u in range(4):
        e(f'v_cvt_pk_bf16_f32 v{BO+4*u+2}, v{U1+u}, v{U1+4+u}\nv_cvt_pk_bf16_f32 v{BO+4*u+3}, v{U1+8+u}, v{U1+12+u}')
    for u in range(4): e(MF(VU+16*u,HH,BO+4*u))
    for r in range(8): e(f'v_cvt_pk_bf16_f32 v{XA+2*r}, v{VU+r}, v{VU+16+r}')
    for r in range(8): e(f'v_cvt_pk_bf16_f32 v{XA+2*r+1}, v{VU+32+r}, v{VU+48+r}')
    e('K1A_VW:')
    for r in range(8): e(f'ds_write_b64 v10, {vr(XA+2*r,2)} offset:{2560*r}')
    e('s_waitcnt lgkmcnt(0)\ns_barrier')
    for ks in range(4): e(f'ds_read_b128 {vr(XA+4*ks,4)}, v13 offset:{32*(ks&1)+2560*(ks>>1)}')
    GA=[CP,CP+4,A2,A2+4]; GB=[SPn,SPn+4,B2,B2+4]
    for ks in range(4):
        e(f's_waitcnt lgkmcnt({3-ks})')
        e(MF(U0,GA[ks],XA+4*ks,U0 if ks else None)); e(MF(U1,GB[ks],XA+4*ks,U1 if ks else None))
    stamp(A,5)
    srd(A,SWS,18,2<<20,AINT_OFF)
    for (U,ab) in ((U0,0),(U1,64)):
        for j in range(8): e(f'v_cvt_pk_bf16_f32 v{BO+(ab>>3)+j}, v{U+2*j}, v{U+2*j+1}')
        for a in range(4):
            r=BO+(ab>>3)+2*a
            e(f'''ds_write_b16 v14, v{r} offset:{256*a+ab}
            ds_write_b16_d16_hi v15, v{r} offset:{256*a+32+ab}
            ds_write_b16 v14, v{r+1} offset:{256*a+32+ab}
            ds_write_b16_d16_hi v15, v{r+1} offset:{256*a+64+ab}''')
    e(f'''s_mul_i32 s45, s{sWV}, {4*1032}
    s_add_u32 s45, s45, {OL}
    v_add_u32 v4, s45, v3
    v_add_u32 v5, 2064, v4
    s_lshl_b32 s44, s{sWV}, 8
    s_add_u32 s44, s44, s43
    s_lshl_b32 s44, s44, 10
    v_lshlrev_b32 v6, 7, v1
    s_waitcnt lgkmcnt(0)
    s_barrier
    s_mov_b32 exec_hi, 0x00ffffff''')
    for i in range(4): e(f'ds_read2_b64 {vr(XA+4*i,4)}, v{4+(i>>1)} offset0:{129*(i&1)} offset1:{129*(i&1)+1}')
    st=OPT['st_aint']
    for i in range(4):
        e(f's_waitcnt lgkmcnt({3-i})')
        e(f'buffer_store_dwordx4 {vr(XA+4*i,4)}, v3, s[{SWS}:{SWS+3}], s44 offen {st}')
        e(f's_add_u32 s44, s44, 65536')
    if OPT['wpf']:
        srd(A,SW,14,448*896)
        e(f'''s_cmp_eq_u32 s{sWV}, 7
        s_cbranch_scc1 K1A_CP
        s_sub_u32 s46, s42, 24
        s_mul_i32 s46, s46, 7
        s_add_u32 s46, s46, s{sWV}
        s_mul_i32 s46, s46, {56*128}
        buffer_load_dword v7, v6, s[{SW}:{SW+3}], s46 offen
        s_branch K1A_E
        K1A_CP:
        s_mov_b32 exec_hi, -1
        s_getpc_b64 s[44:45]
        K1_PC2:
        s_add_u32 s44, s44, k2_kernel-K1_PC2
        s_addc_u32 s45, s45, 0
        global_load_dword v7, v6, s[44:45]
        v_add_u32 v6, 8192, v6
        v_min_u32 v6, K2_END-k2_kernel, v6
        global_load_dword v7, v6, s[44:45]
        K1A_E:''')
    dump1(A,3)
    e('K1_END:\ns_endpgm')

def k2(A):
    e=A.e
    OPT['k2']=1
    SD,SPH,SO=20,24,28
    sWV=40
    e('k2_kernel:')
    e('s_cmp_ge_u32 s2, 256\ns_cbranch_scc1 K2_END')
    stamp(A,0)
    e('s_load_dwordx4 s[8:11], s[0:1], 64\ns_load_dwordx2 s[12:13], s[0:1], 88')
    e('v_and_b32 v1, 63, v0\nv_lshrrev_b32 v2, 6, v0')
    e('s_and_b32 s41, s2, 7\ns_lshr_b32 s42, s2, 3')
    e(f'v_readfirstlane_b32 s{sWV}, v2')
    e('''v_bfe_u32 v3, v1, 4, 1
    v_and_b32 v4, 7, v1
    v_lshlrev_b32 v5, 2, v3
    v_xor_b32 v4, v4, v5
    v_lshlrev_b32 v12, 4, v4
    v_lshrrev_b32 v13, 3, v1
    v_lshlrev_b32 v15, 4, v1''')
    LANE='''v_and_b32 v8, 31, v1
    v_lshrrev_b32 v9, 5, v1
    v_bfe_u32 v10, v1, 2, 2
    v_bfe_u32 v3, v1, 4, 1
    v_and_b32 v4, 1, v1
    v_lshl_add_u32 v4, v3, 1, v4
    v_bfe_u32 v5, v1, 1, 1
    v_lshl_add_u32 v4, v4, 1, v5
    v_lshlrev_b32 v11, 3, v4'''
    e('s_cmp_ge_u32 s42, 28\ns_cbranch_scc1 K2_A')
    e(f'''s_lshr_b32 s44, s42, 2
    s_and_b32 s45, s{sWV}, 1
    s_bfe_u32 s46, s{sWV}, 0x10001
    s_cmp_ge_u32 s{sWV}, 4
    s_cbranch_scc0 K2_C''')
    e(f"""v_mul_u32_u24 v3, 896, v13
    v_add_u32 v14, v3, v12
    v_lshrrev_b32 v4, 5, v1
    v_mul_u32_u24 v4, {28*896}, v4
    v_add_u32 v16, v14, v4
    s_and_b32 s50, s{sWV}, 3
    s_lshl_b32 s50, s50, 10
    s_mul_i32 s48, s45, {224*896}
    s_lshl_b32 s49, s44, 7
    s_add_u32 s48, s48, s49
    s_mul_i32 s49, s45, 28672
    s_add_u32 s49, s49, 57344
    s_mov_b32 m0, s50
    s_waitcnt lgkmcnt(0)""")
    if OPT.get('npf',0):
        srd(A,SO,12,2<<20,AINT_OFF)
        e(f'''s_cmp_eq_u32 s{sWV}, 7
        s_cbranch_scc0 K2_NP
        s_lshl_b32 s51, s42, 6
        v_add_u32 v3, s51, v1
        v_mul_u32_u24 v4, 9363, v3
        v_lshrrev_b32 v4, 16, v4
        v_lshlrev_b32 v3, 7, v3
        v_lshl_add_u32 v3, v4, 7, v3
        s_lshl_b32 s51, s41, 18
        buffer_load_dword v5, v3, s[{SO}:{SO+3}], s51 offen
        K2_NP:''')
    srd(A,SD,12,16*3584,KV_OFF)
    if OPT.get('kvrot'):
        e(f's_mul_i32 s51, s42, {OPT["kvrot"]*4096}\ns_add_u32 s50, s50, s51\nK2_RW:\ns_cmp_ge_u32 s50, 57344\ns_cbranch_scc0 K2_RX\ns_sub_u32 s50, s50, 57344\ns_branch K2_RW\nK2_RX:')
    for n in range(14 if not OPT.get('nokv') else 0):
        e(f'buffer_load_dwordx4 v15, s[{SD}:{SD+3}], s50 offen lds\ns_add_u32 m0, m0, 4096\ns_add_u32 s50, s50, 4096')
        if OPT.get('kvrot'): e('s_cmp_ge_u32 s50, 57344\ns_cselect_b32 s51, 57344, 0\ns_sub_u32 s50, s50, s51')
    srd(A,SPH,8,448*896)
    e('s_cmp_eq_u32 s46, 0\ns_cbranch_scc0 K2_L1')
    HYB=OPT.get('hyb',0); W0=OPT.get('w0',0); W1=OPT.get('w1',0)
    for par in range(2):
        js=(0,2,4,6) if par==0 else (1,3,5); nj=len(js)
        for st_ in range(5):
            if st_==W0: e(f's_waitcnt vmcnt({(0 if OPT.get("nob1") else 7)+W0*nj})\ns_barrier')
            if st_==W1 and not OPT.get('nob1'): e(f's_waitcnt vmcnt({W1*nj})\ns_barrier')
            if st_==4: break
            for j in (js if not OPT.get('nowo') else ()):
                row=112*(st_>>1)+28*(st_&1)+8*j+(28 if j>3 else 0)
                e(f's_add_u32 m0, s49, {7168*st_+1024*j}\ns_add_u32 s50, s48, {row*896}\nbuffer_load_dwordx4 v{16 if j==3 else 14}, s[{SPH}:{SPH+3}], s50 offen lds')
        OB=OPT.get('ob',4)
        for c in ((2,1,0) if HYB else {4:(3,2,1,0),2:(2,0),1:(0,)}[OB]): e(f's_waitcnt vmcnt({nj*c})\ns_barrier')
        e('s_endpgm')
        if par==0: e('K2_L1:')
    e('K2_C:')
    if OPT.get('prio'): e('s_setprio 3')
    e(f'''s_and_b32 s43, s42, 3
    s_lshl_b32 s41, s41, 2
    s_add_u32 s43, s43, s41
    s_lshl_b32 s51, s43, 1
    s_add_u32 s51, s51, s45
    s_lshl_b32 s52, s51, 4
    s_lshl_b32 s53, s46, 3
    s_add_u32 s52, s52, s53
    s_mul_i32 s52, s52, 3584
    s_add_u32 s57, s52, 4096
    s_waitcnt lgkmcnt(0)''')
    stamp(A,1)
    srd(A,SPH,12,64*16*3584,PHIQ_OFF)
    PHI=144; vF16=16
    e('v_mov_b32 v16, v15')
    def loads(s):
        L=[]
        for n in range(7):
            x=f'buffer_load_dwordx4 {vr(PHI+28*s+4*n,4)}, v{vF16}, s[{SPH}:{SPH+3}], s{52 if n<4 else 57} offen offset:{1024*(n&3)}'
            if n==6: x+='\ns_add_u32 s52, s52, 7168\ns_add_u32 s57, s57, 7168'
            L.append(x)
        return L
    NUP=OPT.get('nup',1)
    for s_ in range(NUP):
        for x in loads(s_): e(x)
    srd(A,SO,10,2048*1792)
    e(LANE)
    vK,vN0,vN1,vS0,vS1=17,18,19,20,21
    e(f"""s_mul_i32 s53, s46, 7168
    v_lshlrev_b32 v3, 2, v1
    v_add_u32 v{vK}, s53, v3
    s_mul_i32 s53, s46, 28672
    s_add_u32 s53, s53, 57344
    v_lshl_add_u32 v3, v9, 2, v10
    v_lshlrev_b32 v3, 7, v3
    v_lshrrev_b32 v4, 1, v10
    v_lshl_add_u32 v3, v4, 6, v3
    v_add3_u32 v{vN0}, v3, v11, s53
    s_lshl_b32 s55, s46, 6
    v_xor_b32 v{vN1}, s55, v{vN0}
    v_xor_b32 v{vN0}, 64, v{vN1}
    v_lshlrev_b32 v3, 1, v9
    v_xor_b32 v3, v3, v10
    v_lshrrev_b32 v4, 1, v3
    v_lshlrev_b32 v3, 7, v3
    v_lshl_add_u32 v3, v4, 6, v3
    v_add3_u32 v{vS0}, v3, v11, s53
    v_xor_b32 v{vS1}, s55, v{vS0}
    v_xor_b32 v{vS0}, 64, v{vS1}
    s_lshl_b32 s53, s{sWV}, 12
    s_add_u32 s53, s53, 114688
    v_add_u32 v6, s53, v{vF16}
    s_xor_b32 s53, s53, 8192
    v_add_u32 v7, s53, v{vF16}
    s_lshl_b32 s51, s51, 5""")
    if OPT.get('cst',1):
        e(f"""s_mul_i32 s53, s45, 4608
        s_lshl_b32 s55, s46, 6
        s_add_u32 s55, s55, s53
        v_mul_u32_u24 v2, 144, v8
        v_lshl_add_u32 v2, v9, 4, v2
        v_add_u32 v2, s55, v2
        s_mul_i32 s55, s46, {16*144}
        s_add_u32 s55, s55, s53
        v_mul_u32_u24 v3, 144, v13
        v_and_b32 v4, 7, v1
        v_lshl_add_u32 v3, v4, 4, v3
        v_add_u32 v3, s55, v3
        v_mul_u32_u24 v5, 1792, v13
        v_lshl_add_u32 v5, v4, 4, v5
        s_lshl_b32 s55, s46, 4
        s_add_u32 s51, s51, s55
        s_mul_i32 s54, s51, 1792
        s_lshl_b32 s55, s44, 7
        s_add_u32 s54, s54, s55
        s_add_u32 s54, s54, 896""")
    else:
        e(f"""v_add_u32 v5, s51, v8
        v_mul_u32_u24 v5, 1792, v5
        v_lshl_add_u32 v5, v9, 4, v5
        s_lshl_b32 s54, s44, 7
        s_lshl_b32 s55, s46, 6
        s_add_u32 s54, s54, s55
        s_add_u32 s54, s54, 896""")
    KF=[24,40]; NUM=[72,88]; OUT=[112,128]
    OPH=[104,8,PHI,PHI+8,PHI+16,PHI+28,PHI+36,PHI+44]
    WFB=[56,PHI+56,24,40]
    e(f'v_mov_b64 {vr(KF[0]+14,2)}, 0\nv_mov_b64 {vr(KF[1]+12,2)}, 0')
    e(f's_mov_b32 s56, {f2u(1e-6)}')
    def rdkv(hl):
        o=56*(hl>>1)+14*(hl&1)
        return [f'ds_read2st64_b32 {vr(KF[hl&1]+2*p+(2 if (p==6 and hl&1) else 0),2)}, v{vK} offset0:{o+2*p} offset1:{o+2*p+1}' for p in range(7)]
    def rdwo(hl):
        L=[]; WFR=WFB[hl&3] if (hl>=4 or not HYB) else 56
        for sp in range(2):
            for mt in range(2):
                for q in (2*sp,2*sp+1):
                    if q<3: L.append(f'ds_read_b64_tr_b16 {vr(WFR+8*mt+2*q,2)}, v{(vN0,vN1)[mt]} offset:{3584*hl+1024*q}')
                    else: L.append(f'ds_read_b64_tr_b16 {vr(WFR+8*mt+6,2)}, v{(vS0,vS1)[mt]} offset:{3584*hl+3072}')
        return L
    def num(hl):
        base=PHI+28*(hl>>1)
        ph=[base+12*(hl&1)+4*s for s in range(3)]+[base+24]
        return [MF(NUM[hl&1],KF[hl&1]+4*s,ph[s],NUM[hl&1] if s else None) for s in range(4)]
    def fin(hl):
        N=NUM[hl&1]; OP=OPH[hl]
        L=[f'v_add_f32 v22, s56, v{N+14}','v_rcp_f32 v22, v22',f'v_mov_b32 v{OP+7}, 0']
        for j in range(7): L+=[f'v_mul_f32 v{N+2*j}, v22, v{N+2*j}',f'v_mul_f32 v{N+2*j+1}, v22, v{N+2*j+1}']
        L+=[f'v_cvt_pk_bf16_f32 v{OP+j}, v{N+2*j}, v{N+2*j+1}' for j in range(7)]
        return L
    def outm(hl):
        OP=OPH[hl]; WFR=WFB[hl&3] if (hl>=4 or not HYB) else 56
        return [MF(OUT[mt],WFR+8*mt+4*sp,OP+4*sp,None if (hl==0 and sp==0) else OUT[mt]) for sp in range(2) for mt in range(2)]
    if OPT.get('ldonly'):
        stamp(A,3); e('s_waitcnt vmcnt(0)'); stamp(A,4); e('s_barrier\ns_barrier'); stamp(A,5); e('s_barrier\ns_barrier\ns_barrier\ns_barrier'); dump2(A,1); e('s_endpgm')
    e('s_barrier')
    stamp(A,3)
    for x in rdkv(0)+rdkv(1): e(x)
    later=[(s_,x) for s_ in range(NUP,4) for x in loads(s_)]
    nld=[int(c) for c in str(OPT.get('nld','77700000' if NUP==1 else '77000000')).zfill(8)]
    vm=[s_ for s_ in range(NUP) for _ in range(7)]
    lg=['k0']*7+['k1']*7
    def lwait(tag):
        n=0
        for t in reversed(lg):
            if t==tag: break
            n+=1
        del lg[:len(lg)-n]
        return f'lgkmcnt({n})'
    for h in range(8):
        Ld=[later.pop(0) for _ in range(nld[h])]
        w='s_waitcnt '+lwait(f'k{h}')
        if h%2==0: w+=' vmcnt(%d)'%sum(1 for t in vm if t>h//2)
        e(w)
        N=num(h); Fv=fin(h-1) if h else []
        if h<6: K=rdkv(h+2); K=[K[0:2],K[2:4],K[4:6],K[6:]]; tag=f'k{h+2}'
        else:
            K=rdwo(h-6) if h==6 else rdwo(1); K=[K[2*i:2*i+2] for i in range(4)]; tag=f'w{h-6}'
        nF=len(Fv)
        for i in range(4):
            e(N[i])
            if i==0 and h in (2,6): e('s_barrier')
            for x in K[i]: e(x); lg.append(tag)
            for x in Fv[i*nF//4:(i+1)*nF//4]: e(x)
            for _ in range(2):
                if Ld: t,x=Ld.pop(0); e(x); vm.append(t)
    assert not later
    stamp(A,4)
    if OPT.get('oc'): e('s_memtime s[82:83]')
    F7=fin(7)
    for h in range(6):
        e('s_waitcnt '+lwait(f'w{h}'))
        O=outm(h); W=rdwo(h+2)
        for i in range(4):
            e(O[i])
            if i==0 and h%2==0: e('s_barrier')
            for x in W[2*i:2*i+2]: e(x); lg.append(f'w{h+2}')
            k_=(4*h+i)*2
            for x in F7[k_:k_+2]: e(x)
    O6=outm(6); O7=outm(7)
    e('s_waitcnt '+lwait('w6')); e(O6[0]); e(O6[2]); e(O6[1])
    e('s_waitcnt '+lwait('w7')); e(O7[0]); e(O7[2]); e(O6[3]); e(O7[1]); e(O7[3])
    stamp(A,5)
    if OPT.get('oc'): e('s_memtime s[84:85]')
    for q in range(4): e(f'ds_write_b128 v6, {vr(OUT[0]+4*q,4)} offset:{1024*q}')
    e('s_waitcnt lgkmcnt(0)\ns_barrier')
    OUT=[OUT[1]]
    for q in range(4): e(f'ds_read_b128 {vr(24+4*q,4)}, v7 offset:{1024*q}')
    st=OPT['st_out']
    for i in range(2):
        e(f's_waitcnt lgkmcnt({2-i if OPT.get("cst",1) else 2-2*i})')
        for j in range(0,8,2): e(f'v_pk_add_f32 {vr(OUT[0]+8*i+j,2)}, {vr(OUT[0]+8*i+j,2)}, {vr(24+8*i+j,2)}')
        for j in range(4): e(f'v_cvt_pk_bf16_f32 v{56+4*i+j}, v{OUT[0]+8*i+2*j}, v{OUT[0]+8*i+2*j+1}')
        if OPT.get('cst',1): e(f'ds_write_b128 v2, {vr(56+4*i,4)} offset:{32*i}')
        else: e(f'buffer_store_dwordx4 {vr(56+4*i,4)}, v5, s[{SO}:{SO+3}], s54 offen offset:{32*i} {st}')
    if OPT.get('cst',1):
        e(f'''s_waitcnt lgkmcnt(0)
        s_barrier
        ds_read_b128 v[24:27], v3
        ds_read_b128 v[28:31], v3 offset:{8*144}
        s_add_u32 s55, s54, {8*1792}
        s_waitcnt lgkmcnt(1)
        buffer_store_dwordx4 v[24:27], v5, s[{SO}:{SO+3}], s54 offen {st}
        s_waitcnt lgkmcnt(0)
        buffer_store_dwordx4 v[28:31], v5, s[{SO}:{SO+3}], s55 offen {st}''')
    dump2(A,1)
    e('s_endpgm')
    e('K2_A:')
    SP_=904; SA_=122880
    e(f'''s_lshl_b32 s43, s41, 2
    s_add_u32 s43, s43, s42
    s_sub_u32 s43, s43, 28
    s_and_b32 s44, s43, 1
    s_lshr_b32 s43, s43, 1
    s_and_b32 s45, s{sWV}, 1
    s_lshr_b32 s46, s{sWV}, 1
    v_lshl_add_u32 v14, v13, 10, v12
    s_lshl_b32 s47, s43, 17
    s_lshl_b32 s48, s{sWV}, 14
    s_add_u32 s47, s47, s48
    s_add_u32 s49, s47, 8192
    s_lshl_b32 s48, s{sWV}, 11
    s_mov_b32 m0, s48''')
    Ld=[]
    for j in range(7):
        Ld.append(f'buffer_load_dwordx4 v14, s[{SD}:{SD+3}], s47 offen lds\ns_add_u32 m0, m0, 1024\ns_add_u32 s47, s47, 128')
        Ld.append(f'buffer_load_dwordx4 v14, s[{SD}:{SD+3}], s49 offen lds\ns_add_u32 m0, m0, {16384-1024}\ns_add_u32 s49, s49, 128')
    G=f"""s_lshl_b32 s56, s44, 10
    s_add_u32 s57, s43, s56
    s_lshl_b32 s59, s44, 4
    s_lshl_b32 s54, s44, 13
    s_cmp_eq_u32 s43, 0
    s_cselect_b32 s57, s59, s57
    s_cselect_b32 s54, s54, 0
    s_cselect_b32 s55, s54, 8192
    s_sub_u32 s58, 2048, s57
    s_add_u32 s59, s57, 1024
    s_cmp_eq_u32 s43, 0
    s_cselect_b32 s58, s59, s58
    s_cselect_b32 s53, {32*1792}, {(-32*1792)&0xffffffff}""".split('\n')
    npre=len(G)
    G+=LANE.split('\n')
    G+=f"""v_lshlrev_b32 v3, 5, v8
    v_add_u32 v3, s57, v3
    v_cvt_f32_u32 v4, v3
    v_mul_f32 v4, {f2u(1/2048)}, v4
    v_cvt_f32_u32 v5, v9
    v_mul_f32 v5, {f2u(8.0)}, v5
    v_mul_f32 v5, v4, v5""".split('\n')
    C,S,M2,M3=24,40,56,72; TT=88; ML=114688
    G+=f"""s_lshr_b32 s60, s{sWV}, 1
    v_cvt_f32_u32 v6, s60
    v_mul_f32 v6, {f2u(16.0)}, v6
    v_fma_f32 v5, v4, v6, v5
    s_and_b32 s60, s{sWV}, 1
    v_cvt_f32_u32 v6, s60
    v_fmamk_f32 v5, v6, {f2u(-0.25)}, v5""".split('\n')
    for j in range(8): G.append(f'v_fmamk_f32 v{TT+j}, v4, {f2u(1.*j)}, v5')
    for j in range(8): G.append(f'v_cos_f32 v{TT+j}, v{TT+j}')
    for j in range(4): G.append(f'v_cvt_pk_bf16_f32 v{TT+8+j}, v{TT+2*j}, v{TT+2*j+1}')
    G+=[f's_lshl_b32 s60, s{sWV}, 10',f'v_add_u32 v7, {ML}, v15','v_add_u32 v6, s60, v7',f'ds_write_b128 v6, {vr(TT+8,4)}']
    for x in G: e(x)
    e('s_waitcnt lgkmcnt(0)')
    stamp(A,1)
    srd(A,SD,12,2<<20,AINT_OFF)
    for x in Ld: e(x)
    srd(A,SO,10,2048*1792)
    aR,aS,bS,bR=16,17,18,19
    e(f"""v_lshl_add_u32 v3, v9, 3, v10
    v_lshlrev_b32 v3, 7, v3
    v_lshrrev_b32 v4, 1, v10
    v_lshl_add_u32 v3, v4, 6, v3
    s_lshl_b32 s60, s{sWV}, 14
    v_add3_u32 v3, v3, v11, s60
    v_add_u32 v{aR}, s54, v3
    v_add_u32 v{aS}, s55, v3
    v_xor_b32 v{bR}, 64, v{aR}
    v_xor_b32 v{bS}, 64, v{aS}
    v_mul_u32_u24 v22, {SP_}, v8
    s_lshl_b32 s60, s{sWV}, 6
    v_lshl_add_u32 v3, v9, 4, s60
    v_add_u32 v20, v22, v3
    v_sub_u32 v21, v22, v3
    v_add_u32 v21, 850, v21
    v_add_u32 v12, {SA_}, v20
    v_add_u32 v13, {SA_}, v21
    s_mul_i32 s50, s57, 1792
    s_mul_i32 s58, s58, 1792
    s_lshl_b32 s56, s{sWV}, 2
    s_mul_i32 s59, s56, s53
    s_add_u32 s58, s58, s59
    s_mul_i32 s59, s56, {32*1792}
    s_add_u32 s50, s50, s59
    s_mul_i32 s56, s56, {SP_}
    v_add_u32 v4, s56, v15
    v_add_u32 v5, {2*SP_}, v4
    v_add_u32 v2, {SA_}, v4
    v_add_u32 v0, {SA_}, v5""")
    FR=88; AC=[152,168,184,200]; AX,AY=216,232; PS=22
    e('s_waitcnt lgkmcnt(0)\ns_barrier')
    for ks in range(4): e(f'ds_read_b128 {vr(C+4*ks,4)}, v7 offset:{2048*ks}\nds_read_b128 {vr(S+4*ks,4)}, v7 offset:{2048*ks+1024}')
    e('s_waitcnt lgkmcnt(0)\ns_cmp_eq_u32 s43, 0\ns_cbranch_scc1 K2A_G1')
    for j in range(0,16,2): e(f'v_mov_b64 {vr(M2+j,2)}, {vr(S+j,2)}\nv_mov_b64 {vr(M3+j,2)}, {vr(C+j,2)}')
    e('s_branch K2A_G2\nK2A_G1:')
    for j in range(16): e(f'v_xor_b32 v{M2+j}, 0x80000000, v{C+j}\nv_xor_b32 v{M3+j}, 0x80000000, v{S+j}')
    e('K2A_G2:')
    stamp(A,3)
    A2M=OPT.get('a2m',1)
    if A2M==0:
        e('s_waitcnt vmcnt(6)\ns_barrier')
        stamp(A,4)
        e(f's_cmp_lt_u32 s{sWV}, 4\ns_cbranch_scc1 K2A_GO\ns_waitcnt vmcnt(0)\ns_barrier\ns_cmp_eq_u32 s{sWV}, 7\ns_cbranch_scc1 K2A_OUT\nK2A_GO:')
    else:
        e('s_waitcnt vmcnt(0)\ns_barrier')
        stamp(A,4)
        e(f's_cmp_eq_u32 s{sWV}, 7\ns_cbranch_scc1 K2A_B2')
    srcs=[(aR,C),(aS,M2),(bS,M3),(bR,S)]
    def rdA(n):
        ks,q=n>>2,n&3
        for jj in range(2): e(f'ds_read_b64_tr_b16 {vr(FR+4*n+2*jj,2)}, v{srcs[q][0]} offset:{2048*ks+512*jj}')
    for n in range(6): rdA(n)
    for n in range(16):
        if n+6<16: rdA(n+6); e('s_waitcnt lgkmcnt(12)')
        else: e(f's_waitcnt lgkmcnt({2*(15-n)})')
        ks,q=n>>2,n&3
        e(MF(AC[q],FR+4*n,srcs[q][1]+4*ks,AC[q] if ks else None))
    e(f's_cmp_eq_u32 s{sWV}, 0\ns_cbranch_scc0 K2A_NS')
    for ks in range(4):
        e(MF(AX,FR+4*(4*ks+3),C+4*ks,AX if ks else None)); e(MF(AY,FR+4*(4*ks+2),M2+4*ks,AY if ks else None))
    e('s_mov_b32 exec_hi, 0')
    e(f'v_mov_b32 v{AC[2]}, 0\nv_mov_b32 v{AC[3]}, 0\nv_sub_f32 v3, v{AX}, v{AY}\nv_cvt_pk_bf16_f32 v{PS}, v{AX}, v{AY}\nv_cvt_pk_bf16_f32 v3, v3, v3')
    e(f's_cmp_eq_u32 s43, 0\ns_cselect_b64 vcc, -1, 0\nv_cndmask_b32 v{PS}, v3, v{PS}, vcc')
    e('s_mov_b32 exec_hi, -1')
    e('K2A_NS:\ns_nop 7\ns_nop 1\ns_cmp_eq_u32 s43, 0\ns_cbranch_scc1 K2A_C1')
    NEG=' neg_lo:[0,1] neg_hi:[0,1]'
    AF,AM,BF,BM=88,104,120,136
    for j in range(0,16,2):
        e(f'v_pk_add_f32 {vr(AC[0]+j,2)}, {vr(AC[0]+j,2)}, {vr(AC[1]+j,2)}{NEG}')
        e(f'v_pk_add_f32 {vr(AC[2]+j,2)}, {vr(AC[2]+j,2)}, {vr(AC[3]+j,2)}')
    PK=152
    def packs(tiles):
        for tl,(F_,M_) in enumerate(tiles):
            p=PK+16*tl
            for j in range(8): e(f'v_cvt_pk_bf16_f32 v{p+j}, v{F_+2*j}, v{F_+2*j+1}')
            for i in range(2):
                b_=M_+8*i
                e(f'v_cvt_pk_bf16_f32 v{p+8+4*i}, v{b_+7}, v{b_}\nv_cvt_pk_bf16_f32 v{p+9+4*i}, v{b_+6}, v{b_+5}\nv_cvt_pk_bf16_f32 v{p+10+4*i}, v{b_+4}, v{b_+3}\nv_cvt_pk_bf16_f32 v{p+11+4*i}, v{b_+2}, v{b_+1}')
    for j in range(0,16,2):
        e(f'v_pk_add_f32 {vr(AF+j,2)}, {vr(AC[0]+j,2)}, {vr(AC[2]+j,2)}{NEG}')
        e(f'v_pk_add_f32 {vr(AM+j,2)}, {vr(AC[0]+j,2)}, {vr(AC[2]+j,2)}')
    packs(((AF,AM),(AM,AF)))
    e('s_branch K2A_C2\nK2A_C1:')
    for j in range(0,16,2):
        e(f'v_pk_add_f32 {vr(AF+j,2)}, {vr(AC[0]+j,2)}, {vr(AC[3]+j,2)}{NEG}')
        e(f'v_pk_add_f32 {vr(AM+j,2)}, {vr(AC[0]+j,2)}, {vr(AC[3]+j,2)}')
        e(f'v_pk_add_f32 {vr(BF+j,2)}, {vr(AC[1]+j,2)}, {vr(AC[2]+j,2)}{NEG}')
        e(f'v_pk_add_f32 {vr(BM+j,2)}, {vr(AC[1]+j,2)}, {vr(AC[2]+j,2)}')
    packs(((AF,AM),(BF,BM)))
    e('K2A_C2:')
    def writes(tl,vf,vm_):
        p=PK+16*tl
        for i in range(2):
            e(f'ds_write_b64 v{vf}, {vr(p+4*i,2)} offset:{32*i}\nds_write_b64 v{vf}, {vr(p+4*i+2,2)} offset:{32*i+8}')
            o=32-32*i; r=p+8+4*i
            e(f'ds_write_b16 v{vm_}, v{r} offset:{o}\nds_write_b32 v{vm_}, v{r+1} offset:{o+2}\nds_write_b64 v{vm_}, {vr(r+2,2)} offset:{o+6}\nds_write_b16_d16_hi v{vm_}, v{r} offset:{o+14}')
    writes(0,12,13)
    e(f"""s_cmp_eq_u32 s{sWV}, 0
    s_cbranch_scc0 K2A_B2
    s_mov_b32 exec_hi, 0
    ds_write_b16 v12, v{PS} offset:448
    s_mov_b32 exec_hi, -1
    K2A_B2:
    s_waitcnt lgkmcnt(0)
    s_barrier""")
    stamp(A,5)
    for i in range(4): e(f'ds_read2_b64 {vr(24+4*i,4)}, v{(2,0)[i>>1]} offset0:{113*(i&1)} offset1:{113*(i&1)+1}')
    e(f's_cmp_eq_u32 s{sWV}, 7\ns_cbranch_scc1 K2A_W7')
    writes(1,20,21)
    e(f"""s_cmp_eq_u32 s{sWV}, 0
    s_cbranch_scc0 K2A_W7
    s_mov_b32 exec_hi, 0
    ds_write_b16_d16_hi v20, v{PS} offset:448
    K2A_W7:
    s_mov_b32 exec_hi, 0x00ffffff
    s_waitcnt lgkmcnt(0)""")
    for i in range(4):
        e(f'buffer_store_dwordx4 {vr(24+4*i,4)}, v15, s[{SO}:{SO+3}], s50 offen {st}\ns_add_u32 s50, s50, {32*1792}')
    e('s_barrier')
    for i in range(4): e(f'ds_read2_b64 {vr(40+4*i,4)}, v{4+(i>>1)} offset0:{113*(i&1)} offset1:{113*(i&1)+1}')
    for i in range(4):
        e(f's_waitcnt lgkmcnt({3-i})')
        e(f'buffer_store_dwordx4 {vr(40+4*i,4)}, v15, s[{SO}:{SO+3}], s58 offen {st}\ns_add_u32 s58, s58, s53')
    dump2(A,3)
    e('K2_END:\ns_endpgm')

def k3(A):
    e=A.e
    kk,si,role,stat,scale=[int(x) for x in OPT['x'].split(',')]
    e('k3_kernel:')
    e('s_cmp_ge_u32 s2, 1\ns_cbranch_scc1 K3_END')
    e('s_load_dwordx2 s[4:5], s[0:1], 88\nv_lshlrev_b32 v1, 6, v0\nv_mov_b32 v2, 0\nv_mov_b32 v3, -1\nv_mov_b32 v4, 0')
    e('ds_write_b32 v2, v3\nds_write_b32 v2, v4 offset:4\nds_write_b32 v2, v4 offset:8\ns_waitcnt lgkmcnt(0)\ns_barrier')
    e('s_add_u32 s8, s4, 0x800000\ns_addc_u32 s9, s5, 0\ns_mov_b32 s10, 0x20000\ns_mov_b32 s11, 0x20000')
    e(f'buffer_load_dword v5, v1, s[8:11], 0 offen\ns_mov_b32 s12, {0x10000*kk}')
    e(f'buffer_load_dword v6, v1, s[8:11], s12 offen offset:{4*si}\nbuffer_load_dword v7, v1, s[8:11], s12 offen offset:40\ns_waitcnt vmcnt(0)')
    e('ds_min_u32 v2, v5\ns_waitcnt lgkmcnt(0)\ns_barrier\nds_read_b32 v8, v2\ns_waitcnt lgkmcnt(0)\nv_sub_u32 v6, v6, v8')
    e(f'v_cmp_eq_u32 vcc, {role}, v7\nv_cndmask_b32 v6, 0, v6, vcc\nv_cndmask_b32 v9, 0, 1, vcc')
    e(('ds_max_u32 v2, v6 offset:4' if stat==0 else 'ds_add_u32 v2, v6 offset:4')+'\nds_add_u32 v2, v9 offset:8\ns_waitcnt lgkmcnt(0)\ns_barrier')
    e('ds_read_b32 v6, v2 offset:4\nds_read_b32 v9, v2 offset:8\ns_waitcnt lgkmcnt(0)')
    e(f'v_cvt_f32_u32 v6, v6\nv_mul_f32 v6, {f2u(float(scale))}, v6')
    if stat==1: e('v_cvt_f32_u32 v9, v9\nv_rcp_f32 v9, v9\nv_mul_f32 v6, v6, v9')
    e('v_cvt_u32_f32 v6, v6\nv_min_u32 v6, 100000, v6\nv_readfirstlane_b32 s14, v6')
    e('s_memrealtime s[16:17]\ns_waitcnt lgkmcnt(0)\nK3_L:\ns_memrealtime s[18:19]\ns_waitcnt lgkmcnt(0)\ns_sub_u32 s20, s18, s16\ns_cmp_lt_u32 s20, s14\ns_cbranch_scc1 K3_L')
    e('K3_END:\ns_endpgm')

def desc(name,vgpr,sgpr,acc):
    return f'''.amdhsa_kernel {name}
  .amdhsa_next_free_vgpr {vgpr}
  .amdhsa_next_free_sgpr {sgpr}
  .amdhsa_accum_offset {acc}
  .amdhsa_group_segment_fixed_size 0
  .amdhsa_kernarg_size 96
  .amdhsa_user_sgpr_count 2
  .amdhsa_user_sgpr_kernarg_segment_ptr 1
  .amdhsa_system_sgpr_workgroup_id_x 1
.end_amdhsa_kernel
'''
def main():
    A1=Asm(); k1(A1); A2=Asm(); k2(A2)
    assert A1.verify_branches()==0 and A2.verify_branches()==0
    v1=A1.maxreg('v')+1; v2=A2.maxreg('v')+1; a2=A2.maxreg('a')+1
    r4=lambda x:(x+3)//4*4
    hdr=open('concat_heads__spectral_fnet__linear_kernel_hedgehog__prompt.s.ref').read().split('; Override')[0]
    out=hdr+'; @launch kernel=k1_kernel grid=(256,1,1) block=(512,1,1) lds=163840\n; @launch kernel=k2_kernel grid=(256,1,1) block=(512,1,1) lds=163840\n'
    ks=[('k1_kernel',A1),('k2_kernel',A2)]
    if 'x' in OPT:
        A3=Asm(); k3(A3); ks.append(('k3_kernel',A3)); out+='; @launch kernel=k3_kernel grid=(1,1,1) block=(256,1,1) lds=64\n'
    out+='.amdgcn_target "amdgcn-amd-amdhsa--gfx950"\n.text\n'
    for n,A in ks:
        out+=f'.globl {n}\n.p2align 8\n.type {n},@function\n'+A.text()
    out+='.section .rodata,"a"\n.p2align 6\n'+desc('k1_kernel',v1,102,r4(v1))+'.p2align 6\n'+desc('k2_kernel',v2,102,r4(v2))
    if 'x' in OPT: out+='.p2align 6\n'+desc('k3_kernel',16,32,16)
    open(sys.argv[1],'w').write(out)
    print('k1 vgpr',v1,'k2 vgpr',v2,'agpr',a2, 'k1 sgpr',A1.maxreg('s')+1,'k2 sgpr',A2.maxreg('s')+1)
main()
```

```python
import sys, math
from asmlib import *

PHIQ_OFF=0; KV_OFF=0x400000; AINT_OFF=0x500000
LOG2E=1.4426950408889634
OPT=dict(st_phi='sc1', st_aint='sc1', st_out='sc1', prof=0, rot=1, ldx='', lda='', D=2, apf=1, wpf=1, cpf=1, bpf=1, ob=4, eb=1)
for a in sys.argv[2:]:
    k,v=a.split('='); OPT[k]=int(v) if v.lstrip('-').isdigit() else v

def srd(A,d,base,nbytes,off=0):
    if off: A.e(f's_add_u32 s{d}, s{base}, {hex(off)}\ns_addc_u32 s{d+1}, s{base+1}, 0')
    else: A.e(f's_mov_b32 s{d}, s{base}\ns_mov_b32 s{d+1}, s{base+1}')
    A.e(f's_mov_b32 s{d+2}, {hex(nbytes)}\ns_mov_b32 s{d+3}, 0x20000')

NST=[0]
def stamp(A,i):
    if OPT.get('lp') and 1<=i<=6 and not OPT.get('k2'): return
    if OPT.get('kl') and 1<=i<=6 and OPT.get('k2'): return
    if OPT['prof']:
        A.e(f's_memrealtime s[{80+2*i}:{81+2*i}]')
        if i==0: A.e('s_memtime s[98:99]')
def dump(A,role,ws,ko):
    if not OPT['prof']: return
    NST[0]+=1; L=f'PD{NST[0]}'
    A.e(f's_memrealtime s[94:95]\ns_waitcnt vmcnt(0) lgkmcnt(0)\ns_memrealtime s[96:97]\ns_memtime s[78:79]\ns_waitcnt lgkmcnt(0)')
    A.e(f's_cmp_eq_u32 s40, {OPT.get("pw",0)}\ns_cbranch_scc0 {L}')
    A.e(f's_add_u32 s72, s{ws}, {ko}\ns_addc_u32 s73, s{ws+1}, 0\ns_mov_b32 s74, 0x10000\ns_mov_b32 s75, 0x20000\ns_mov_b64 exec, 1\ns_lshl_b32 s76, s2, 6\ns_sub_u32 s78, s78, s98')
    for i in range(9): A.e(f'v_mov_b32 v0, s{80+2*i}\nbuffer_store_dword v0, off, s[72:75], s76 offset:{4*i}')
    A.e(f'v_mov_b32 v0, s78\nbuffer_store_dword v0, off, s[72:75], s76 offset:36\nv_mov_b32 v0, {role}\nbuffer_store_dword v0, off, s[72:75], s76 offset:40')
    A.e(f'{L}:')
def dump1(A,role): dump(A,role,18,0x800000)
def dump2(A,role): dump(A,role,12,0x810000)

def MF(d,a,b,c=None):
    cc='0' if c is None else vr(c,16)
    return f'v_mfma_f32_32x32x16_bf16 {vr(d,16)}, {vr(a,4)}, {vr(b,4)}, {cc}'

def k1(A):
    e=A.e
    SX,SW,SP,SWS,SDB=20,24,28,32,36
    sWV=40
    e('k1_kernel:')
    e('s_cmp_ge_u32 s2, 256\ns_cbranch_scc1 K1_END')
    stamp(A,0)
    e('s_load_dwordx8 s[8:15], s[0:1], 40\ns_load_dwordx4 s[16:19], s[0:1], 80\ns_load_dwordx2 s[4:5], s[0:1], 0\ns_load_dwordx2 s[6:7], s[0:1], 72')
    e('v_and_b32 v1, 63, v0\nv_lshrrev_b32 v2, 6, v0')
    e('s_and_b32 s41, s2, 7\ns_lshr_b32 s42, s2, 3')
    e(f'v_readfirstlane_b32 s{sWV}, v2')
    e('s_cmp_ge_u32 s42, 24\ns_cbranch_scc1 K1_A')
    e('''s_and_b32 s43, s42, 1
    s_lshl_b32 s50, s41, 1
    s_add_u32 s43, s43, s50
    s_lshr_b32 s50, s42, 1
    s_and_b32 s50, s50, 7
    s_lshr_b32 s44, s42, 4
    s_add_u32 s53, s44, 1
    s_lshl_b32 s49, s50, s53''')
    vRX=10; vRW,vRB,vX0,vX1,vW,vP,vSA,vFL,vW0,vW1=14,15,16,17,18,19,20,21,22,23
    TM=24; WF=[32,48]; ACC0,ACC1=64,80; WPH=96; QB=112; EN=120; XF=144
    SLOT=24576; WBL=98304; WPL=155648
    e(f"""s_cmp_eq_u32 s44, 1
    s_cselect_b32 s46, 112, 896
    s_cselect_b32 s51, 224, 112
    s_cselect_b32 s52, 0, 896
    s_mul_i32 s45, s50, s51
    s_add_u32 s45, s45, s52
    v_lshrrev_b32 v3, 3, v1
    v_lshrrev_b32 v4, 4, v1
    v_and_b32 v5, 7, v1
    v_xor_b32 v6, v5, v4
    v_lshlrev_b32 v6, 4, v6
    v_mul_u32_u24 v7, 896, v3
    v_add_u32 v{vX0}, v7, v6
    v_xor_b32 v{vX1}, 64, v{vX0}
    v_add_u32 v{vX1}, {8*896}, v{vX1}
    v_and_b32 v4, 1, v4
    v_lshlrev_b32 v4, 2, v4
    v_xor_b32 v5, v5, v4
    v_min_u32 v5, 6, v5
    v_mul_u32_u24 v7, 2688, v3
    v_lshl_add_u32 v{vW}, v5, 4, v7
    v_lshlrev_b32 v3, 4, v0
    s_lshl_b32 s54, s43, 3
    s_add_u32 s54, s54, s{sWV}
    s_mul_i32 s54, s54, {16*896}
    s_mul_i32 s62, s{sWV}, {8*2688}
    s_add_u32 s62, s62, s45
    s_lshl_b32 s56, s{sWV}, 11
    s_lshl_b32 s61, s{sWV}, 10
    s_mul_i32 s57, s49, 1568
    s_add_u32 m0, s61, {WPL}""")
    if OPT['rot']:
        e(f"""s_min_u32 s58, s41, 6
        s_lshl_b32 s60, s58, 7
        s_add_u32 s54, s54, s60
        s_mul_i32 s55, s58, {64*2688}
        s_add_u32 s55, s55, s62""")
    else: e('s_mov_b32 s58, 0\ns_mov_b32 s55, s62')
    e('s_add_u32 s59, s55, s46\ns_mov_b32 s63, s58\ns_add_u32 s47, s62, s46')
    e('s_waitcnt lgkmcnt(0)')
    stamp(A,1)
    srd(A,SX,8,2048*896); srd(A,SW,10,448*2688); srd(A,SP,12,16*1568)
    lx=OPT['ldx']
    def issue(st):
        sl=SLOT*(st%4)
        return [f's_add_u32 m0, s56, {sl}\ns_add_u32 s58, s58, 1\nbuffer_load_dwordx4 v{vX0}, s[{SX}:{SX+3}], s54 offen {lx} lds',
                f's_add_u32 m0, s61, {sl+16384}\ns_cmp_eq_u32 s58, 7\nbuffer_load_dwordx4 v{vW}, s[{SW}:{SW+3}], s55 offen lds\ns_cselect_b32 s60, {128-896+(1<<32)}, 128\ns_cselect_b32 s55, {-64*2688*6+(1<<32)}, {64*2688}'.replace('s_cselect_b32 s55','s_cselect_b32 s64'),
                f's_add_u32 m0, s56, {sl+1024}\ns_add_u32 s55, s55, s64\nbuffer_load_dwordx4 v{vX1}, s[{SX}:{SX+3}], s54 offen {lx} lds\ns_add_u32 s54, s54, s60']
    def issueB(t):
        return [f's_add_u32 m0, s61, {WBL+8192*t}\ns_add_u32 s63, s63, 1\nbuffer_load_dwordx4 v{vW}, s[{SW}:{SW+3}], s59 offen lds\ns_add_u32 s59, s59, {64*2688}\ns_cmp_eq_u32 s63, 7\ns_cselect_b32 s59, s47, s59']
    D=OPT['D']
    e(f'buffer_load_dwordx4 v3, s[{SP}:{SP+3}], s57 offen lds')
    for st in range(D):
        for x in issue(st): e(x)
    e(f"""v_and_b32 v3, 3, v2
    v_and_b32 v4, 31, v1
    v_lshl_add_u32 v8, v3, 5, v4
    v_lshrrev_b32 v9, 5, v1
    v_bfe_u32 v5, v8, 1, 3
    v_xor_b32 v5, v5, v9
    v_lshlrev_b32 v5, 4, v5
    v_lshl_add_u32 v{vRX}, v8, 7, v5
    v_bfe_u32 v3, v1, 4, 1
    v_and_b32 v4, 3, v1
    v_lshl_add_u32 v3, v3, 2, v4
    v_min_u32 v3, 6, v3
    v_lshlrev_b32 v7, 3, v3
    v_lshrrev_b32 v2, 2, v2
    v_mad_u32_u24 v3, v2, 56, v7
    v_bfe_u32 v0, v1, 2, 2
    v_lshl_add_u32 v5, v9, 3, v0
    v_lshlrev_b32 v5, 7, v5
    v_bfe_u32 v4, v1, 3, 1
    v_lshlrev_b32 v4, 6, v4
    v_xor_b32 v6, v3, v4
    v_add_u32 v5, v5, v6
    v_add_u32 v{vRW}, 16384, v5
    v_add_u32 v{vRB}, {WBL}, v5
    v_lshl_add_u32 v4, v9, 2, v0
    v_mul_u32_u24 v4, 56, v4
    v_mul_u32_u24 v5, 1568, v2
    v_add3_u32 v3, v7, v4, v5
    v_add_u32 v{vP}, {WPL}, v3""")
    for ks in range(1,4): e(f'v_xor_b32 v{vRX+ks}, {32*ks}, v{vRX}')
    srd(A,SDB,16,256)
    e(f"""s_cmp_eq_u32 s44, 1
    s_cselect_b32 s60, {PHIQ_OFF}, {KV_OFF}
    s_cselect_b32 s{SWS+2}, {64*16*3584}, {16*3584}
    s_add_u32 s{SWS}, s18, s60
    s_addc_u32 s{SWS+1}, s19, 0
    s_mov_b32 s{SWS+3}, 0x20000
    s_and_b32 s65, s{sWV}, 3
    s_lshl_b32 s66, s43, 2
    s_add_u32 s65, s65, s66
    s_lshl_b32 s65, s65, 4
    s_lshr_b32 s66, s{sWV}, 2
    s_lshl_b32 s67, s66, 1
    s_add_u32 s65, s65, s67
    s_add_u32 s65, s65, s49
    s_mul_i32 s65, s65, 3584
    v_lshlrev_b32 v{vSA}, 4, v1
    s_mul_i32 s67, s66, 24576
    v_mul_u32_u24 v3, 192, v8
    v_bfe_u32 v4, v8, 1, 2
    v_lshlrev_b32 v5, 1, v9
    v_xor_b32 v4, v4, v5
    v_lshl_add_u32 v3, v4, 4, v3
    v_add_u32 v{vW0}, s67, v3
    v_xor_b32 v{vW1}, 16, v{vW0}
    s_mov_b32 s68, {f2u(LOG2E)}
    s_lshr_b32 s66, s{sWV}, 1
    s_and_b32 s67, s{sWV}, 1
    s_mul_i32 s71, s66, 24576
    s_lshl_b32 s69, s67, 6
    v_lshl_add_u32 v4, v9, 3, v0
    v_mul_u32_u24 v4, 192, v4
    v_and_b32 v5, 1, v1
    v_bfe_u32 v6, v1, 4, 1
    v_lshl_add_u32 v5, v5, 1, v6
    v_lshrrev_b32 v3, 1, v0
    v_xor_b32 v5, v5, v3
    v_lshl_add_u32 v4, v5, 4, v4
    v_bfe_u32 v5, v1, 1, 1
    v_lshl_add_u32 v4, v5, 3, v4
    v_add_u32 v4, s71, v4
    v_xor_b32 v5, 32, v4
    v_add_u32 v6, s69, v4
    v_add_u32 v7, s69, v5
    s_and_b32 s71, s50, 2
    s_add_u32 s71, s71, s66
    s_lshl_b32 s71, s71, 1
    s_lshr_b32 s69, s50, 2
    s_add_u32 s71, s71, s69
    s_lshl_b32 s71, s71, 1
    s_and_b32 s69, s50, 1
    s_add_u32 s71, s71, s69
    s_mul_i32 s71, s71, 3584
    s_lshl_b32 s69, s67, 11
    s_add_u32 s71, s71, s69
    v_lshlrev_b32 v3, 2, v1
    v_mov_b32 v2, 0x3f80""")
    def rdW(ad,buf,off):
        return [f'ds_read_b64_tr_b16 {vr(WF[buf]+4*ks+2*jj,2)}, v{ad} offset:{off+2048*ks+512*jj}' for ks in range(4) for jj in range(2)]
    def shift():
        e(('s_memtime' if OPT.get('cyc') else 's_memrealtime')+' s[76:77]\ns_waitcnt lgkmcnt(0)')
        for i in range(1,7): e(f's_mov_b32 s{80+2*i}, s{82+2*i}')
        e('s_mov_b32 s92, s76')
    stamp(A,2)
    issued=[('p',1)]+[(k,3) for k in range(D)]
    def younger(tag):
        n=0
        for t,c in reversed(issued):
            if t==tag: return n
            n+=c
        raise
    nB=0
    for s_ in range(7):
        e(f's_waitcnt vmcnt({younger(s_)}) lgkmcnt(0)\ns_barrier')
        if s_==0: stamp(A,3)
        elif OPT.get('lp')==1: shift()
        I=[]
        if s_+D<7: I=issue(s_+D); issued.append((s_+D,3))
        k=int(str(OPT.get('bs','0000043')).zfill(7)[s_])
        for t in range(nB,nB+k): I+=issueB(t); issued.append((f'B{t}',1))
        nB+=k
        R=[]
        for ks in range(4): R+=[f'ds_read_b128 {vr(XF+16*s_+4*ks,4)}, v{vRX+ks}']+rdW(vRW,s_&1,0)[2*ks:2*ks+2]
        if s_==0: R+=[f'ds_read_b64_tr_b16 {vr(WPH+8*u+2*q,2)}, v{vP} offset:{3136*u+448*q}' for u in range(2) for q in range(4)]
        M=[MF(ACC0,WF[(s_-1)&1]+4*ks,XF+16*(s_-1)+4*ks,ACC0 if (s_>1 or ks) else None) for ks in range(4)] if s_ else []
        d=SLOT if (s_+1)%4 else -3*SLOT
        V=[f'v_add_u32 v{r}, {d&0xffffffff}, v{r}' for r in (vRX,vRX+1,vRX+2,vRX+3,vRW)] if s_<6 else []
        for i in range(4):
            if M: e(M[i])
            for x in R[i*len(R)//4:(i+1)*len(R)//4]: e(x)
            if i<len(I): e(I[i])
        for x in I[4:]: e(x)
        for x in V: e(x)
    P=ACC0; EP=ACC0
    PHR=[112+j for j in range(8)]+[136+j for j in range(4)]
    def unit(P,EN,PH,pk=1):
        U=[]
        mx,nm,t0,t1=TM,TM+1,TM+2,TM+3; EP=P
        U+=[f'v_permlane32_swap_b32 v{P+12}, v{P+14}',f'v_permlane32_swap_b32 v{P+13}, v{P+15}']
        U+=[f'v_max3_f32 v{mx}, v{P}, v{P+1}, v{P+2}',f'v_min3_f32 v{nm}, v{P}, v{P+1}, v{P+2}']
        for j in range(3,13,2): U+=[f'v_max3_f32 v{mx}, v{mx}, v{P+j}, v{P+j+1}',f'v_min3_f32 v{nm}, v{nm}, v{P+j}, v{P+j+1}']
        U+=[f'v_max_f32 v{mx}, v{mx}, v{P+13}',f'v_min_f32 v{nm}, v{nm}, v{P+13}']
        U+=[f'v_mul_f32 v{mx}, s68, v{mx}',f'v_mul_f32 v{nm}, {f2u(-LOG2E)}, v{nm}']
        U+=[f'v_permlane32_swap_b32 v{mx}, v{nm}',f'v_max_f32 v{t0}, v{mx}, v{nm}',f'v_max_f32 v{t1}, v{mx}, v{nm}',f'v_permlane32_swap_b32 v{t0}, v{t1}']
        if pk:
            for j in range(0,14,2):
                U+=[f'v_pk_fma_f32 {vr(EN+j,2)}, {vr(P+j,2)}, s[68:69], {vr(t0,2)} op_sel:[0,0,1] op_sel_hi:[1,0,1] neg_lo:[0,1,1] neg_hi:[0,1,1]',
                    f'v_pk_fma_f32 {vr(EP+j,2)}, {vr(P+j,2)}, s[68:69], {vr(t0,2)} op_sel_hi:[1,0,0] neg_lo:[0,0,1] neg_hi:[0,0,1]']
        else:
            for j in range(14): U+=[f'v_fma_f32 v{EN+j}, -v{P+j}, s68, -v{t1}',f'v_fma_f32 v{EP+j}, v{P+j}, s68, -v{t0}']
        for j in range(14): U+=[f'v_exp_f32 v{EP+j}, v{EP+j}',f'v_exp_f32 v{EN+j}, v{EN+j}']
        sp,sn=TM+4,TM+6
        if pk:
            U+=[f'v_pk_add_f32 {vr(sp,2)}, {vr(EP,2)}, {vr(EP+2,2)}',f'v_pk_add_f32 {vr(sn,2)}, {vr(EN,2)}, {vr(EN+2,2)}']
            for j in range(4,14,2): U+=[f'v_pk_add_f32 {vr(sp,2)}, {vr(sp,2)}, {vr(EP+j,2)}',f'v_pk_add_f32 {vr(sn,2)}, {vr(sn,2)}, {vr(EN+j,2)}']
            U+=[f'v_add_f32 v{mx}, v{sp}, v{sp+1}',f'v_add_f32 v{nm}, v{sn}, v{sn+1}']
        else:
            U+=[f'v_add_f32 v{mx}, v{EP}, v{EP+1}',f'v_add_f32 v{nm}, v{EN}, v{EN+1}']
            for j in range(2,14): U+=[f'v_add_f32 v{mx}, v{mx}, v{EP+j}',f'v_add_f32 v{nm}, v{nm}, v{EN+j}']
        U+=[f'v_permlane32_swap_b32 v{mx}, v{nm}',f'v_add_f32 v{t0}, v{mx}, v{nm}',f'v_rcp_f32 v{t0}, v{t0}',f'v_mov_b32 v{t1}, v{t0}',f'v_permlane32_swap_b32 v{t0}, v{t1}']
        if pk: U+=[f'v_pk_mul_f32 {vr(EP+j,2)}, {vr(EP+j,2)}, {vr(t0,2)} op_sel_hi:[1,0]' for j in range(0,14,2)]
        else: U+=[f'v_mul_f32 v{EP+j}, v{t0}, v{EP+j}' for j in range(14)]
        U+=[f'v_cvt_pk_bf16_f32 v{PH[j]}, v{EP+2*j}, v{EP+2*j+1}' for j in range(7)]
        if pk: U+=[f'v_pk_mul_f32 {vr(EN+j,2)}, {vr(EN+j,2)}, {vr(t0,2)} op_sel:[0,1] op_sel_hi:[1,1]' for j in range(0,14,2)]
        else: U+=[f'v_mul_f32 v{EN+j}, v{t1}, v{EN+j}' for j in range(14)]
        U+=[f'v_cvt_pk_bf16_f32 v{PH[7+j]}, v{EN+2*j}, v{EN+2*j+1}' for j in range(7)]
        return U
    e('s_waitcnt lgkmcnt(0)')
    for ks in range(4): e(MF(ACC0,WF[0]+4*ks,XF+96+4*ks,ACC0))
    e('v_cmp_gt_u32 vcc, 32, v1')
    for j in (6,7,14,15): e(f'v_cndmask_b32 v{WPH+j}, 0, v{WPH+j}, vcc')
    for j in range(8): e(f'v_cvt_pk_bf16_f32 v{QB+j}, v{ACC0+2*j}, v{ACC0+2*j+1}')
    e(MF(P,WPH,QB)); e(MF(P,WPH+4,QB+4,P))
    n1=OPT.get('n1',36)
    Ua=unit(P,EN,PHR+[140,141],1); Ub=unit(P,EN,PHR+[140,141],0)
    cutA=22+14; cutB=22+28
    U=Ua[:cutA]+Ub[cutB:]
    for x in U[:n1]: e(x)
    e(f's_waitcnt vmcnt({younger("B2")})\ns_barrier')
    stamp(A,4)
    if OPT.get('oc'): e('s_memtime s[82:83]')
    for x in rdW(vRB,1,0)+rdW(vRB,0,8192): e(x)
    gaps=[1]*24+[0]*4
    cost=lambda x: 2.0 if x.startswith(('v_exp','v_rcp')) else 1.0
    tot=sum(gaps); k=n1; acc=0; ctot=sum(cost(x) for x in U[n1:]); cdone=0
    for t in range(7):
        e('s_waitcnt lgkmcnt(%d)'%(8 if t<6 else 0))
        for ks in range(4):
            e(MF(ACC1,WF[(t+1)&1]+4*ks,XF+16*t+4*ks,ACC1 if (t or ks) else None))
            if t+2<7:
                if t==1 and ks==0: e('s_waitcnt vmcnt(0)\ns_barrier'); e(f'buffer_load_dword v{vFL}, off, s[{SDB}:{SDB+3}], 0 sc1')
                for x in rdW(vRB,(t+1)&1,8192*(t+2))[2*ks:2*ks+2]: e(x)
            if t==6 and ks==0:
                st=OPT['st_phi']
                e('s_cmp_eq_u32 s44, 0\ns_cbranch_scc1 K1_S1')
                for c,r in enumerate((112,116,136)): e(f'buffer_store_dwordx4 {vr(r,4)}, v{vSA}, s[{SWS}:{SWS+3}], s65 offen offset:{1024*c} {st}')
                e(f'''s_branch K1_S2
                K1_S1:
                ds_write_b128 v{vW0}, v[112:115]
                ds_write_b128 v{vW1}, v[116:119]
                ds_write_b128 v{vW0}, v[136:139] offset:64
                ds_write_b64 v{vW1}, v[140:141] offset:64
                K1_S2:''')
            acc+=gaps[4*t+ks]
            while k<len(U) and cdone<ctot*acc/tot-1e-9: e(U[k]); cdone+=cost(U[k]); k+=1
    assert k==len(U)
    stamp(A,5)
    if OPT.get('oc'): e('s_memtime s[84:85]')
    e('s_cmp_eq_u32 s44, 0\ns_cbranch_scc1 K1_KV')
    st=OPT['st_phi']
    e('s_add_u32 s65, s65, 3072')
    Q2=144; P2=160; E2=176; H2=192
    for j in range(8): e(f'v_cvt_pk_bf16_f32 v{Q2+j}, v{ACC1+2*j}, v{ACC1+2*j+1}')
    e(MF(P2,WPH+8,Q2)); e(MF(P2,WPH+12,Q2+4,P2))
    for x in unit(P2,E2,[H2+j for j in range(12)]+[142,143]): e(x)
    for c in range(3): e(f'buffer_store_dwordx4 {vr(H2+4*c,4)}, v{vSA}, s[{SWS}:{SWS+3}], s65 offen offset:{1024*c} {st}')
    e(f'buffer_store_dwordx4 v[140:143], v{vSA}, s[{SWS}:{SWS+3}], s65 offen offset:3072 {st}')
    if OPT.get('ppf'):
        e(f'''v_lshlrev_b32 v3, 7, v1
        s_sub_u32 s65, s65, 3072
        s_mov_b32 exec_hi, 0x00ffffff
        s_waitcnt vmcnt(0)
        buffer_load_dword v4, v3, s[{SWS}:{SWS+3}], s65 offen''')
    dump1(A,2)
    e('s_endpgm')
    e('K1_KV:')
    T2=144
    e('s_nop 7\ns_nop 1')
    for j in range(8): e(f'v_cvt_pk_bf16_f32 v{T2+j}, v{ACC1+2*j}, v{ACC1+2*j+1}')
    e(f"""v_cndmask_b32 v{T2+6}, v2, v{T2+6}, vcc
    v_cndmask_b32 v{T2+7}, v2, v{T2+7}, vcc
    ds_write_b128 v{vW0}, {vr(T2,4)} offset:128
    v_permlane32_swap_b32 v{T2+6}, v{T2+7}
    ds_write_b128 v{vW1}, {vr(T2+4,4)} offset:128
    s_mov_b32 s70, 0""")
    e(f's_waitcnt vmcnt(0)\nv_readfirstlane_b32 s69, v{vFL}')
    e('s_waitcnt lgkmcnt(0)\ns_barrier')
    stamp(A,6)
    if OPT.get('pw',0)>=4:
        e(f's_cmp_ge_u32 s{sWV}, 4\ns_cbranch_scc0 K1_KV2'); dump1(A,1); e('s_endpgm\nK1_KV2:')
    e(f's_cmp_ge_u32 s{sWV}, 4\ns_cbranch_scc1 K1_END')
    FA,FB,KA=160,192,224
    for ks in range(8):
        e(f'ds_read_b64_tr_b16 {vr(FA+4*ks,2)}, v6 offset:{3072*ks}')
        e(f'ds_read_b64_tr_b16 {vr(FA+4*ks+2,2)}, v7 offset:{3072*ks+768}')
        e(f'ds_read_b64_tr_b16 {vr(FB+4*ks,2)}, v4 offset:{3072*ks+128}')
        e(f'ds_read_b64_tr_b16 {vr(FB+4*ks+2,2)}, v5 offset:{3072*ks+768+128}')
        if ks>=2:
            e('s_waitcnt lgkmcnt(8)'); e(MF(KA,FA+4*(ks-2),FB+4*(ks-2),KA if ks>2 else None))
    e('s_waitcnt lgkmcnt(4)'); e(MF(KA,FA+24,FB+24,KA))
    e('s_waitcnt lgkmcnt(0)'); e(MF(KA,FA+28,FB+28,KA))
    e('K1_POLL:\ns_cmp_ge_u32 s69, 64\ns_cbranch_scc1 K1_GO\ns_add_u32 s70, s70, 1\ns_cmp_ge_u32 s70, 0x40000\ns_cbranch_scc1 K1_GO\ns_sleep 2')
    e(f'buffer_load_dword v{vFL}, off, s[{SDB}:{SDB+3}], 0 sc1\ns_waitcnt vmcnt(0)\nv_readfirstlane_b32 s69, v{vFL}')
    e('s_branch K1_POLL\nK1_GO:\ns_nop 7\ns_nop 1')
    for j in range(6):
        e(f'v_cvt_pk_bf16_f32 v{FA+j}, v{KA+2*j}, v{KA+2*j+1}')
        e(f'buffer_atomic_pk_add_bf16 v{FA+j}, v3, s[{SWS}:{SWS+3}], s71 offen offset:{256*j}')
    e('s_cmp_eq_u32 s67, 1\ns_cbranch_scc1 K1_END')
    for j in range(6,8):
        e(f'v_cvt_pk_bf16_f32 v{FA+j}, v{KA+2*j}, v{KA+2*j+1}')
        e(f'buffer_atomic_pk_add_bf16 v{FA+j}, v3, s[{SWS}:{SWS+3}], s71 offen offset:{256*j}')
    dump1(A,1)
    e('s_endpgm')
    e('K1_A:')
    e(f"""s_lshl_b32 s43, s41, 3
    s_add_u32 s43, s43, s42
    s_sub_u32 s43, s43, 24
    v_lshlrev_b32 v3, 4, v1
    v_lshlrev_b32 v17, 7, v1""")
    if OPT['cpf']:
        e(f"""s_cmp_eq_u32 s{sWV}, 6
        s_cbranch_scc0 K1A_H1
        s_getpc_b64 s[44:45]
        K1_PC:
        s_sub_u32 s44, s44, K1_PC-k1_kernel
        s_subb_u32 s45, s45, 0
        global_load_dword v18, v17, s[44:45]
        global_load_dword v18, v17, s[44:45] offset:4032
        K1A_H1:""".replace("global_load_dword v18, v17, s[44:45] offset:4032\n","s_add_u32 s44, s44, 8192\ns_addc_u32 s45, s45, 0\nglobal_load_dword v18, v17, s[44:45]\n"))
    e(f"""s_lshl_b32 s44, s{sWV}, 8
    s_add_u32 s44, s44, s43
    s_mul_i32 s44, s44, 896
    s_mul_i32 s45, s{sWV}, {4*960}
    s_lshl_b32 s46, s43, 2
    s_add_u32 s46, s46, s{sWV}
    s_mul_i32 s46, s46, {56*128}
    s_mul_i32 s47, s43, 896
    s_mov_b32 m0, s45
    s_mov_b32 exec_hi, 0x00ffffff
    s_waitcnt lgkmcnt(0)""")
    stamp(A,1)
    if OPT['apf']:
        srd(A,SW,8,2048*896)
        e(f's_cmp_lt_u32 s{sWV}, 4\ns_cbranch_scc0 K1A_H2\nbuffer_load_dword v18, v17, s[{SW}:{SW+3}], s46 offen {lx}\nK1A_H2:')
    e(f's_cmp_eq_u32 s{sWV}, 7\ns_cbranch_scc0 K1A_H3')
    srd(A,SWS,18,16*3584,KV_OFF); srd(A,SDB,16,256)
    e(f"""v_mov_b64 v[12:13], 0
    v_mov_b64 v[14:15], 0
    v_mov_b32 v16, 1
    buffer_store_dwordx4 v[12:15], v3, s[{SWS}:{SWS+3}], s47 offen sc1
    s_waitcnt vmcnt(0)
    s_mov_b64 exec, 1
    buffer_atomic_add v16, off, s[{SDB}:{SDB+3}], 0 sc1
    s_mov_b32 exec_lo, -1
    s_mov_b32 exec_hi, 0x00ffffff
    K1A_H3:""")
    srd(A,SX,4,2048*896)
    for i in range(4):
        if i: e(f's_add_u32 m0, s45, {960*i}\ns_add_u32 s44, s44, {64*896}')
        e(f'buffer_load_dwordx4 v3, s[{SX}:{SX+3}], s44 offen {OPT["lda"]} lds')
    if OPT.get('tlb',0):
        e(f's_cmp_eq_u32 s{sWV}, 5\ns_cbranch_scc0 K1A_T\ns_mov_b32 exec_hi, -1\nv_lshlrev_b32 v19, 16, v1')
        srd(A,SW,6,2048*1792)
        e(f'buffer_load_dword v18, v19, s[{SW}:{SW+3}], 0 offen')
        srd(A,SW,18,8<<20)
        e(f'buffer_load_dword v18, v19, s[{SW}:{SW+3}], 0 offen\ns_mov_b32 s46, 0x400000\nbuffer_load_dword v18, v19, s[{SW}:{SW+3}], s46 offen\nK1A_T:')
    if OPT.get('bpf'):
        srd(A,SW,10,448*2688)
        e(f'''s_mov_b32 exec_hi, -1
        v_mul_u32_u24 v19, 37, v1
        v_lshrrev_b32 v19, 8, v19
        v_mul_u32_u24 v4, {2688-7*128}, v19
        v_add_u32 v19, v4, v17
        s_sub_u32 s46, s42, 24
        s_lshl_b32 s46, s46, 3
        s_add_u32 s46, s46, s{sWV}
        s_mul_i32 s46, s46, {7*2688}
        s_add_u32 s46, s46, 1792
        s_mov_b32 exec_hi, 0x1ffff
        buffer_load_dword v18, v19, s[{SW}:{SW+3}], s46 offen''')
        if OPT['bpf']==2:
            e(f's_sub_u32 s46, s46, 896\nbuffer_load_dword v18, v19, s[{SW}:{SW+3}], s46 offen')
    VL=32768; OL=73728
    e('s_mov_b32 exec_hi, -1\nv_and_b32 v8, 31, v1\nv_lshrrev_b32 v9, 5, v1')
    e(f'''v_mul_u32_u24 v10, {8*2560}, v9
    v_mul_u32_u24 v16, 80, v8
    v_add_u32 v10, v16, v10
    v_lshl_add_u32 v10, v2, 3, v10
    v_add_u32 v10, {VL}, v10''')
    FF=20; HH=28; CP=32; SPn=40; A2=48; B2=56; TT=64
    e(f'''v_lshrrev_b32 v4, 1, v8
    v_and_b32 v5, 1, v8
    v_cvt_f32_u32 v5, v5
    v_mul_f32 v5, {f2u(-0.25)}, v5
    v_cmp_eq_u32 vcc, 1, v8
    v_cndmask_b32 v4, v4, 16, vcc
    v_cndmask_b32 v5, v5, 0, vcc
    v_cvt_f32_u32 v4, v4
    v_mul_f32 v4, {f2u(1/32)}, v4
    v_cvt_f32_u32 v11, v9
    v_mul_f32 v12, 4.0, v11
    v_add_f32 v11, v12, v12
    v_fma_f32 v5, v4, v11, v5''')
    for ks in range(2):
        for j in range(8): e(f'v_fmamk_f32 v{TT+8*ks+j}, v4, {f2u(16.*ks+j)}, v5')
    for j in range(16): e(f'v_cos_f32 v{TT+j}, v{TT+j}')
    for j in range(8): e(f'v_cvt_pk_bf16_f32 v{FF+j}, v{TT+2*j}, v{TT+2*j+1}')
    e(f'''v_bfe_u32 v4, v8, 2, 1
    v_bfe_u32 v5, v8, 3, 1
    v_lshl_add_u32 v4, v4, 1, v5
    v_bfe_u32 v5, v8, 1, 1
    v_lshl_add_u32 v4, v4, 1, v5
    v_and_b32 v5, 1, v8
    v_cvt_f32_u32 v5, v5
    v_mul_f32 v5, {f2u(-0.25)}, v5
    v_and_b32 v6, 15, v8
    v_cmp_eq_u32 vcc, 1, v6
    v_cndmask_b32 v4, v4, 8, vcc
    v_cndmask_b32 v5, v5, 0, vcc
    v_cvt_f32_u32 v4, v4
    v_mul_f32 v4, {f2u(1/16)}, v4
    v_fma_f32 v5, v4, v12, v5''')
    for j in range(8): e(f'v_fmamk_f32 v{TT+j}, v4, {f2u(8.*(j>>2)+(j&3))}, v5')
    for j in range(8): e(f'v_cos_f32 v{TT+j}, v{TT+j}')
    for j in range(4): e(f'v_cvt_pk_bf16_f32 v{HH+j}, v{TT+2*j}, v{TT+2*j+1}')
    e(f'''s_cmp_eq_u32 s{sWV}, 0
    s_cselect_b32 s47, 8, s{sWV}
    s_sub_u32 s48, 0, s47
    v_lshrrev_b32 v4, 2, v8
    v_lshlrev_b32 v4, 5, v4
    v_and_b32 v5, 3, v8
    v_add_u32 v5, 1, v5
    v_lshrrev_b32 v5, 1, v5
    v_lshl_add_u32 v4, v5, 4, v4
    v_and_b32 v5, 1, v8
    v_cmp_eq_u32 vcc, 1, v5
    v_mov_b32 v6, s48
    v_cndmask_b32 v6, v2, v6, vcc
    v_add_u32 v4, v4, v6
    v_cvt_f32_u32 v4, v4
    v_mul_f32 v4, {f2u(1/448)}, v4
    v_mul_f32 v5, v4, v11''')
    for ks in range(2):
        for j in range(8): e(f'v_fmamk_f32 v{TT+8*ks+j}, v4, {f2u(16.*ks+j)}, v5')
    for j in range(16): e(f'v_sin_f32 v{TT+16+j}, v{TT+j}\nv_cos_f32 v{TT+j}, v{TT+j}')
    for j in range(8): e(f'v_cvt_pk_bf16_f32 v{CP+j}, v{TT+2*j}, v{TT+2*j+1}\nv_cvt_pk_bf16_f32 v{SPn+j}, v{TT+16+2*j}, v{TT+16+2*j+1}')
    e(f's_cmp_eq_u32 s{sWV}, 0\ns_cbranch_scc1 K1A_SPEC')
    e('''v_mov_b32 v4, 0x80008000
    v_cndmask_b32 v5, v4, 0, vcc
    v_cndmask_b32 v6, 0, v4, vcc''')
    for j in range(8): e(f'v_xor_b32 v{A2+j}, v5, v{SPn+j}\nv_xor_b32 v{B2+j}, v6, v{CP+j}')
    e('s_branch K1A_ST1\nK1A_SPEC:')
    for j in range(8):
        e(f'''v_cndmask_b32 v{A2+j}, 0, v{CP+j}, vcc
        v_cndmask_b32 v{B2+j}, 0, v{SPn+j}, vcc
        v_cndmask_b32 v{CP+j}, v{CP+j}, 0, vcc
        v_cndmask_b32 v{SPn+j}, v{SPn+j}, 0, vcc''')
    e('v_mov_b32 v4, 0xbf803f80\nv_cmp_eq_u32 vcc, 0, v8')
    for j in range(8): e(f'v_cndmask_b32 v{SPn+j}, v{SPn+j}, v4, vcc')
    e('K1A_ST1:')
    XA=64; BO=80; U0=96; U1=112; VU=96
    e(f'''v_bfe_u32 v4, v1, 2, 2
    v_lshl_add_u32 v4, v9, 3, v4
    v_mul_u32_u24 v4, 960, v4
    v_and_b32 v5, 1, v1
    v_bfe_u32 v6, v1, 4, 1
    v_lshl_add_u32 v5, v5, 1, v6
    v_bfe_u32 v6, v1, 1, 1
    v_lshl_add_u32 v5, v5, 1, v6
    v_mad_u32_u24 v4, v5, 56, v4
    v_lshl_add_u32 v4, v2, 3, v4
    v_mul_u32_u24 v13, 5120, v2
    v_add_u32 v13, v16, v13
    v_lshl_add_u32 v13, v9, 4, v13
    v_add_u32 v13, {VL}, v13
    v_mul_u32_u24 v14, 1032, v8
    v_lshl_add_u32 v14, v9, 7, v14
    v_add_u32 v14, {OL}, v14
    s_lshl_b32 s48, s48, 1
    v_add_u32 v15, s48, v14
    v_lshl_add_u32 v14, v2, 1, v14''')
    for r in range(8): e(f'v_mov_b64 {vr(XA+2*r,2)}, 0')
    stamp(A,3)
    e('s_waitcnt vmcnt(0)\ns_barrier')
    stamp(A,4)
    e(f's_cmp_eq_u32 s{sWV}, 7\ns_cbranch_scc1 K1A_VW')
    for dh in range(2):
        for ks in range(2):
            for jj in range(2):
                e(f'ds_read_b64_tr_b16 {vr(XA+8*dh+4*ks+2*jj,2)}, v4 offset:{15360*ks+3840*jj+448*dh}')
    e('s_waitcnt lgkmcnt(4)')
    e(MF(U0,XA,FF)); e(MF(U0,XA+4,FF+4,U0))
    e('s_waitcnt lgkmcnt(0)')
    e(MF(U1,XA+8,FF)); e(MF(U1,XA+12,FF+4,U1))
    for u in range(4):
        e(f'v_cvt_pk_bf16_f32 v{BO+4*u}, v{U0+u}, v{U0+4+u}\nv_cvt_pk_bf16_f32 v{BO+4*u+1}, v{U0+8+u}, v{U0+12+u}')
    for u in range(4):
        e(f'v_cvt_pk_bf16_f32 v{BO+4*u+2}, v{U1+u}, v{U1+4+u}\nv_cvt_pk_bf16_f32 v{BO+4*u+3}, v{U1+8+u}, v{U1+12+u}')
    for u in range(4): e(MF(VU+16*u,HH,BO+4*u))
    for r in range(8): e(f'v_cvt_pk_bf16_f32 v{XA+2*r}, v{VU+r}, v{VU+16+r}')
    for r in range(8): e(f'v_cvt_pk_bf16_f32 v{XA+2*r+1}, v{VU+32+r}, v{VU+48+r}')
    e('K1A_VW:')
    for r in range(8): e(f'ds_write_b64 v10, {vr(XA+2*r,2)} offset:{2560*r}')
    e('s_waitcnt lgkmcnt(0)\ns_barrier')
    for ks in range(4): e(f'ds_read_b128 {vr(XA+4*ks,4)}, v13 offset:{32*(ks&1)+2560*(ks>>1)}')
    GA=[CP,CP+4,A2,A2+4]; GB=[SPn,SPn+4,B2,B2+4]
    for ks in range(4):
        e(f's_waitcnt lgkmcnt({3-ks})')
        e(MF(U0,GA[ks],XA+4*ks,U0 if ks else None)); e(MF(U1,GB[ks],XA+4*ks,U1 if ks else None))
    stamp(A,5)
    srd(A,SWS,18,2<<20,AINT_OFF)
    for (U,ab) in ((U0,0),(U1,64)):
        for j in range(8): e(f'v_cvt_pk_bf16_f32 v{BO+(ab>>3)+j}, v{U+2*j}, v{U+2*j+1}')
        for a in range(4):
            r=BO+(ab>>3)+2*a
            e(f'''ds_write_b16 v14, v{r} offset:{256*a+ab}
            ds_write_b16_d16_hi v15, v{r} offset:{256*a+32+ab}
            ds_write_b16 v14, v{r+1} offset:{256*a+32+ab}
            ds_write_b16_d16_hi v15, v{r+1} offset:{256*a+64+ab}''')
    e(f'''s_mul_i32 s45, s{sWV}, {4*1032}
    s_add_u32 s45, s45, {OL}
    v_add_u32 v4, s45, v3
    v_add_u32 v5, 2064, v4
    s_lshl_b32 s44, s{sWV}, 8
    s_add_u32 s44, s44, s43
    s_lshl_b32 s44, s44, 10
    v_lshlrev_b32 v6, 7, v1
    s_waitcnt lgkmcnt(0)
    s_barrier
    s_mov_b32 exec_hi, 0x00ffffff''')
    for i in range(4): e(f'ds_read2_b64 {vr(XA+4*i,4)}, v{4+(i>>1)} offset0:{129*(i&1)} offset1:{129*(i&1)+1}')
    st=OPT['st_aint']
    for i in range(4):
        e(f's_waitcnt lgkmcnt({3-i})')
        e(f'buffer_store_dwordx4 {vr(XA+4*i,4)}, v3, s[{SWS}:{SWS+3}], s44 offen {st}')
        e(f's_add_u32 s44, s44, 65536')
    if OPT['wpf']:
        srd(A,SW,14,448*896)
        e(f'''s_cmp_eq_u32 s{sWV}, 7
        s_cbranch_scc1 K1A_CP
        s_sub_u32 s46, s42, 24
        s_mul_i32 s46, s46, 7
        s_add_u32 s46, s46, s{sWV}
        s_mul_i32 s46, s46, {56*128}
        buffer_load_dword v7, v6, s[{SW}:{SW+3}], s46 offen
        s_branch K1A_E
        K1A_CP:
        s_mov_b32 exec_hi, -1
        s_getpc_b64 s[44:45]
        K1_PC2:
        s_add_u32 s44, s44, k2_kernel-K1_PC2
        s_addc_u32 s45, s45, 0
        global_load_dword v7, v6, s[44:45]
        v_add_u32 v6, 8192, v6
        v_min_u32 v6, K2_END-k2_kernel, v6
        global_load_dword v7, v6, s[44:45]
        K1A_E:''')
    dump1(A,3)
    e('K1_END:\ns_endpgm')

def k2(A):
    e=A.e
    OPT['k2']=1
    SD,SPH,SO=20,24,28
    sWV=40
    e('k2_kernel:')
    e('s_cmp_ge_u32 s2, 256\ns_cbranch_scc1 K2_END')
    stamp(A,0)
    e('s_load_dwordx4 s[8:11], s[0:1], 64\ns_load_dwordx2 s[12:13], s[0:1], 88')
    e('v_and_b32 v1, 63, v0\nv_lshrrev_b32 v2, 6, v0')
    e('s_and_b32 s41, s2, 7\ns_lshr_b32 s42, s2, 3')
    e(f'v_readfirstlane_b32 s{sWV}, v2')
    e('''v_bfe_u32 v3, v1, 4, 1
    v_and_b32 v4, 7, v1
    v_lshlrev_b32 v5, 2, v3
    v_xor_b32 v4, v4, v5
    v_lshlrev_b32 v12, 4, v4
    v_lshrrev_b32 v13, 3, v1
    v_lshlrev_b32 v15, 4, v1''')
    LANE='''v_and_b32 v8, 31, v1
    v_lshrrev_b32 v9, 5, v1
    v_bfe_u32 v10, v1, 2, 2
    v_bfe_u32 v3, v1, 4, 1
    v_and_b32 v4, 1, v1
    v_lshl_add_u32 v4, v3, 1, v4
    v_bfe_u32 v5, v1, 1, 1
    v_lshl_add_u32 v4, v4, 1, v5
    v_lshlrev_b32 v11, 3, v4'''
    e('s_cmp_ge_u32 s42, 28\ns_cbranch_scc1 K2_A')
    e(f'''s_lshr_b32 s44, s42, 2
    s_and_b32 s45, s{sWV}, 1
    s_bfe_u32 s46, s{sWV}, 0x10001
    s_cmp_ge_u32 s{sWV}, 4
    s_cbranch_scc0 K2_C''')
    e(f"""v_mul_u32_u24 v3, 896, v13
    v_add_u32 v14, v3, v12
    v_lshrrev_b32 v4, 5, v1
    v_mul_u32_u24 v4, {28*896}, v4
    v_add_u32 v16, v14, v4
    s_and_b32 s50, s{sWV}, 3
    s_lshl_b32 s50, s50, 10
    s_mul_i32 s48, s45, {224*896}
    s_lshl_b32 s49, s44, 7
    s_add_u32 s48, s48, s49
    s_mul_i32 s49, s45, 28672
    s_add_u32 s49, s49, 57344
    s_mov_b32 m0, s50
    s_waitcnt lgkmcnt(0)""")
    if OPT.get('npf',0):
        srd(A,SO,12,2<<20,AINT_OFF)
        e(f'''s_cmp_eq_u32 s{sWV}, 7
        s_cbranch_scc0 K2_NP
        s_lshl_b32 s51, s42, 6
        v_add_u32 v3, s51, v1
        v_mul_u32_u24 v4, 9363, v3
        v_lshrrev_b32 v4, 16, v4
        v_lshlrev_b32 v3, 7, v3
        v_lshl_add_u32 v3, v4, 7, v3
        s_lshl_b32 s51, s41, 18
        buffer_load_dword v5, v3, s[{SO}:{SO+3}], s51 offen
        K2_NP:''')
    srd(A,SD,12,16*3584,KV_OFF)
    if OPT.get('kvrot'):
        e(f's_mul_i32 s51, s42, {OPT["kvrot"]*4096}\ns_add_u32 s50, s50, s51\nK2_RW:\ns_cmp_ge_u32 s50, 57344\ns_cbranch_scc0 K2_RX\ns_sub_u32 s50, s50, 57344\ns_branch K2_RW\nK2_RX:')
    for n in range(14 if not OPT.get('nokv') else 0):
        e(f'buffer_load_dwordx4 v15, s[{SD}:{SD+3}], s50 offen lds\ns_add_u32 m0, m0, 4096\ns_add_u32 s50, s50, 4096')
        if OPT.get('kvrot'): e('s_cmp_ge_u32 s50, 57344\ns_cselect_b32 s51, 57344, 0\ns_sub_u32 s50, s50, s51')
    srd(A,SPH,8,448*896)
    e('s_cmp_eq_u32 s46, 0\ns_cbranch_scc0 K2_L1')
    HYB=OPT.get('hyb',0); W0=OPT.get('w0',0); W1=OPT.get('w1',0)
    for par in range(2):
        js=(0,2,4,6) if par==0 else (1,3,5); nj=len(js)
        for st_ in range(5):
            if st_==W0: e(f's_waitcnt vmcnt({(0 if OPT.get("nob1") else 7)+W0*nj})\ns_barrier')
            if st_==W1 and not OPT.get('nob1'): e(f's_waitcnt vmcnt({W1*nj})\ns_barrier')
            if st_==4: break
            for j in (js if not OPT.get('nowo') else ()):
                row=112*(st_>>1)+28*(st_&1)+8*j+(28 if j>3 else 0)
                e(f's_add_u32 m0, s49, {7168*st_+1024*j}\ns_add_u32 s50, s48, {row*896}\nbuffer_load_dwordx4 v{16 if j==3 else 14}, s[{SPH}:{SPH+3}], s50 offen lds')
        OB=OPT.get('ob',4)
        for c in ((2,1,0) if HYB else {4:(3,2,1,0),2:(2,0),1:(0,)}[OB]): e(f's_waitcnt vmcnt({nj*c})\ns_barrier')
        e('s_endpgm')
        if par==0: e('K2_L1:')
    e('K2_C:')
    if OPT.get('prio'): e('s_setprio 3')
    e(f'''s_and_b32 s43, s42, 3
    s_lshl_b32 s41, s41, 2
    s_add_u32 s43, s43, s41
    s_lshl_b32 s51, s43, 1
    s_add_u32 s51, s51, s45
    s_lshl_b32 s52, s51, 4
    s_lshl_b32 s53, s46, 3
    s_add_u32 s52, s52, s53
    s_mul_i32 s52, s52, 3584
    s_add_u32 s57, s52, 4096
    s_waitcnt lgkmcnt(0)''')
    stamp(A,1)
    srd(A,SPH,12,64*16*3584,PHIQ_OFF)
    PHI=144; vF16=16
    e('v_mov_b32 v16, v15')
    def loads(s):
        L=[]
        for n in range(7):
            x=f'buffer_load_dwordx4 {vr(PHI+28*s+4*n,4)}, v{vF16}, s[{SPH}:{SPH+3}], s{52 if n<4 else 57} offen offset:{1024*(n&3)}'
            if n==6: x+='\ns_add_u32 s52, s52, 7168\ns_add_u32 s57, s57, 7168'
            L.append(x)
        return L
    NUP=OPT.get('nup',1)
    for s_ in range(NUP):
        for x in loads(s_): e(x)
    srd(A,SO,10,2048*1792)
    e(LANE)
    vK,vN0,vN1,vS0,vS1=17,18,19,20,21
    e(f"""s_mul_i32 s53, s46, 7168
    v_lshlrev_b32 v3, 2, v1
    v_add_u32 v{vK}, s53, v3
    s_mul_i32 s53, s46, 28672
    s_add_u32 s53, s53, 57344
    v_lshl_add_u32 v3, v9, 2, v10
    v_lshlrev_b32 v3, 7, v3
    v_lshrrev_b32 v4, 1, v10
    v_lshl_add_u32 v3, v4, 6, v3
    v_add3_u32 v{vN0}, v3, v11, s53
    s_lshl_b32 s55, s46, 6
    v_xor_b32 v{vN1}, s55, v{vN0}
    v_xor_b32 v{vN0}, 64, v{vN1}
    v_lshlrev_b32 v3, 1, v9
    v_xor_b32 v3, v3, v10
    v_lshrrev_b32 v4, 1, v3
    v_lshlrev_b32 v3, 7, v3
    v_lshl_add_u32 v3, v4, 6, v3
    v_add3_u32 v{vS0}, v3, v11, s53
    v_xor_b32 v{vS1}, s55, v{vS0}
    v_xor_b32 v{vS0}, 64, v{vS1}
    s_lshl_b32 s53, s{sWV}, 12
    s_add_u32 s53, s53, 114688
    v_add_u32 v6, s53, v{vF16}
    s_xor_b32 s53, s53, 8192
    v_add_u32 v7, s53, v{vF16}
    s_lshl_b32 s51, s51, 5""")
    if OPT.get('cst',1):
        e(f"""s_mul_i32 s53, s45, 4608
        s_lshl_b32 s55, s46, 6
        s_add_u32 s55, s55, s53
        v_mul_u32_u24 v2, 144, v8
        v_lshl_add_u32 v2, v9, 4, v2
        v_add_u32 v2, s55, v2
        s_mul_i32 s55, s46, {16*144}
        s_add_u32 s55, s55, s53
        v_mul_u32_u24 v3, 144, v13
        v_and_b32 v4, 7, v1
        v_lshl_add_u32 v3, v4, 4, v3
        v_add_u32 v3, s55, v3
        v_mul_u32_u24 v5, 1792, v13
        v_lshl_add_u32 v5, v4, 4, v5
        s_lshl_b32 s55, s46, 4
        s_add_u32 s51, s51, s55
        s_mul_i32 s54, s51, 1792
        s_lshl_b32 s55, s44, 7
        s_add_u32 s54, s54, s55
        s_add_u32 s54, s54, 896""")
    else:
        e(f"""v_add_u32 v5, s51, v8
        v_mul_u32_u24 v5, 1792, v5
        v_lshl_add_u32 v5, v9, 4, v5
        s_lshl_b32 s54, s44, 7
        s_lshl_b32 s55, s46, 6
        s_add_u32 s54, s54, s55
        s_add_u32 s54, s54, 896""")
    KF=[24,40]; NUM=[72,88]; OUT=[112,128]
    OPH=[104,8,PHI,PHI+8,PHI+16,PHI+28,PHI+36,PHI+44]
    WFB=[56,PHI+56,24,40]
    e(f'v_mov_b64 {vr(KF[0]+14,2)}, 0\nv_mov_b64 {vr(KF[1]+12,2)}, 0')
    e(f's_mov_b32 s56, {f2u(1e-6)}')
    def rdkv(hl):
        o=56*(hl>>1)+14*(hl&1)
        return [f'ds_read2st64_b32 {vr(KF[hl&1]+2*p+(2 if (p==6 and hl&1) else 0),2)}, v{vK} offset0:{o+2*p} offset1:{o+2*p+1}' for p in range(7)]
    def rdwo(hl):
        L=[]; WFR=WFB[hl&3] if (hl>=4 or not HYB) else 56
        for sp in range(2):
            for mt in range(2):
                for q in (2*sp,2*sp+1):
                    if q<3: L.append(f'ds_read_b64_tr_b16 {vr(WFR+8*mt+2*q,2)}, v{(vN0,vN1)[mt]} offset:{3584*hl+1024*q}')
                    else: L.append(f'ds_read_b64_tr_b16 {vr(WFR+8*mt+6,2)}, v{(vS0,vS1)[mt]} offset:{3584*hl+3072}')
        return L
    def num(hl):
        base=PHI+28*(hl>>1)
        ph=[base+12*(hl&1)+4*s for s in range(3)]+[base+24]
        return [MF(NUM[hl&1],KF[hl&1]+4*s,ph[s],NUM[hl&1] if s else None) for s in range(4)]
    def fin(hl):
        N=NUM[hl&1]; OP=OPH[hl]
        L=[f'v_add_f32 v22, s56, v{N+14}','v_rcp_f32 v22, v22',f'v_mov_b32 v{OP+7}, 0']
        for j in range(7): L+=[f'v_mul_f32 v{N+2*j}, v22, v{N+2*j}',f'v_mul_f32 v{N+2*j+1}, v22, v{N+2*j+1}']
        L+=[f'v_cvt_pk_bf16_f32 v{OP+j}, v{N+2*j}, v{N+2*j+1}' for j in range(7)]
        return L
    def outm(hl):
        OP=OPH[hl]; WFR=WFB[hl&3] if (hl>=4 or not HYB) else 56
        return [MF(OUT[mt],WFR+8*mt+4*sp,OP+4*sp,None if (hl==0 and sp==0) else OUT[mt]) for sp in range(2) for mt in range(2)]
    if OPT.get('ldonly'):
        stamp(A,3); e('s_waitcnt vmcnt(0)'); stamp(A,4); e('s_barrier\ns_barrier'); stamp(A,5); e('s_barrier\ns_barrier\ns_barrier\ns_barrier'); dump2(A,1); e('s_endpgm')
    e('s_barrier')
    stamp(A,3)
    for x in rdkv(0)+rdkv(1): e(x)
    later=[(s_,x) for s_ in range(NUP,4) for x in loads(s_)]
    nld=[int(c) for c in str(OPT.get('nld','77700000' if NUP==1 else '77000000')).zfill(8)]
    vm=[s_ for s_ in range(NUP) for _ in range(7)]
    lg=['k0']*7+['k1']*7
    def lwait(tag):
        n=0
        for t in reversed(lg):
            if t==tag: break
            n+=1
        del lg[:len(lg)-n]
        return f'lgkmcnt({n})'
    for h in range(8):
        Ld=[later.pop(0) for _ in range(nld[h])]
        w='s_waitcnt '+lwait(f'k{h}')
        if h%2==0: w+=' vmcnt(%d)'%sum(1 for t in vm if t>h//2)
        e(w)
        N=num(h); Fv=fin(h-1) if h else []
        if h<6: K=rdkv(h+2); K=[K[0:2],K[2:4],K[4:6],K[6:]]; tag=f'k{h+2}'
        else:
            K=rdwo(h-6) if h==6 else rdwo(1); K=[K[2*i:2*i+2] for i in range(4)]; tag=f'w{h-6}'
        nF=len(Fv)
        for i in range(4):
            e(N[i])
            if i==0 and h in (2,6): e('s_barrier')
            for x in K[i]: e(x); lg.append(tag)
            for x in Fv[i*nF//4:(i+1)*nF//4]: e(x)
            for _ in range(2):
                if Ld: t,x=Ld.pop(0); e(x); vm.append(t)
    assert not later
    stamp(A,4)
    if OPT.get('oc'): e('s_memtime s[82:83]')
    F7=fin(7)
    for h in range(6):
        e('s_waitcnt '+lwait(f'w{h}'))
        O=outm(h); W=rdwo(h+2)
        for i in range(4):
            e(O[i])
            if i==0 and h%2==0: e('s_barrier')
            for x in W[2*i:2*i+2]: e(x); lg.append(f'w{h+2}')
            k_=(4*h+i)*2
            for x in F7[k_:k_+2]: e(x)
    O6=outm(6); O7=outm(7)
    e('s_waitcnt '+lwait('w6')); e(O6[0]); e(O6[2]); e(O6[1])
    e('s_waitcnt '+lwait('w7')); e(O7[0]); e(O7[2]); e(O6[3]); e(O7[1]); e(O7[3])
    stamp(A,5)
    if OPT.get('oc'): e('s_memtime s[84:85]')
    for q in range(4): e(f'ds_write_b128 v6, {vr(OUT[0]+4*q,4)} offset:{1024*q}')
    e('s_waitcnt lgkmcnt(0)\ns_barrier')
    OUT=[OUT[1]]
    for q in range(4): e(f'ds_read_b128 {vr(24+4*q,4)}, v7 offset:{1024*q}')
    st=OPT['st_out']
    for i in range(2):
        e(f's_waitcnt lgkmcnt({2-i if OPT.get("cst",1) else 2-2*i})')
        for j in range(0,8,2): e(f'v_pk_add_f32 {vr(OUT[0]+8*i+j,2)}, {vr(OUT[0]+8*i+j,2)}, {vr(24+8*i+j,2)}')
        for j in range(4): e(f'v_cvt_pk_bf16_f32 v{56+4*i+j}, v{OUT[0]+8*i+2*j}, v{OUT[0]+8*i+2*j+1}')
        if OPT.get('cst',1): e(f'ds_write_b128 v2, {vr(56+4*i,4)} offset:{32*i}')
        else: e(f'buffer_store_dwordx4 {vr(56+4*i,4)}, v5, s[{SO}:{SO+3}], s54 offen offset:{32*i} {st}')
    if OPT.get('cst',1):
        e(f'''s_waitcnt lgkmcnt(0)
        s_barrier
        ds_read_b128 v[24:27], v3
        ds_read_b128 v[28:31], v3 offset:{8*144}
        s_add_u32 s55, s54, {8*1792}
        s_waitcnt lgkmcnt(1)
        buffer_store_dwordx4 v[24:27], v5, s[{SO}:{SO+3}], s54 offen {st}
        s_waitcnt lgkmcnt(0)
        buffer_store_dwordx4 v[28:31], v5, s[{SO}:{SO+3}], s55 offen {st}''')
    dump2(A,1)
    e('s_endpgm')
    e('K2_A:')
    SP_=904; SA_=122880
    e(f'''s_lshl_b32 s43, s41, 2
    s_add_u32 s43, s43, s42
    s_sub_u32 s43, s43, 28
    s_and_b32 s44, s43, 1
    s_lshr_b32 s43, s43, 1
    s_and_b32 s45, s{sWV}, 1
    s_lshr_b32 s46, s{sWV}, 1
    v_lshl_add_u32 v14, v13, 10, v12
    s_lshl_b32 s47, s43, 17
    s_lshl_b32 s48, s{sWV}, 14
    s_add_u32 s47, s47, s48
    s_add_u32 s49, s47, 8192
    s_lshl_b32 s48, s{sWV}, 11
    s_mov_b32 m0, s48''')
    Ld=[]
    for j in range(7):
        Ld.append(f'buffer_load_dwordx4 v14, s[{SD}:{SD+3}], s47 offen lds\ns_add_u32 m0, m0, 1024\ns_add_u32 s47, s47, 128')
        Ld.append(f'buffer_load_dwordx4 v14, s[{SD}:{SD+3}], s49 offen lds\ns_add_u32 m0, m0, {16384-1024}\ns_add_u32 s49, s49, 128')
    G=f"""s_lshl_b32 s56, s44, 10
    s_add_u32 s57, s43, s56
    s_lshl_b32 s59, s44, 4
    s_lshl_b32 s54, s44, 13
    s_cmp_eq_u32 s43, 0
    s_cselect_b32 s57, s59, s57
    s_cselect_b32 s54, s54, 0
    s_cselect_b32 s55, s54, 8192
    s_sub_u32 s58, 2048, s57
    s_add_u32 s59, s57, 1024
    s_cmp_eq_u32 s43, 0
    s_cselect_b32 s58, s59, s58
    s_cselect_b32 s53, {32*1792}, {(-32*1792)&0xffffffff}""".split('\n')
    npre=len(G)
    G+=LANE.split('\n')
    G+=f"""v_lshlrev_b32 v3, 5, v8
    v_add_u32 v3, s57, v3
    v_cvt_f32_u32 v4, v3
    v_mul_f32 v4, {f2u(1/2048)}, v4
    v_cvt_f32_u32 v5, v9
    v_mul_f32 v5, {f2u(8.0)}, v5
    v_mul_f32 v5, v4, v5""".split('\n')
    C,S,M2,M3=24,40,56,72; TT=88; ML=114688
    G+=f"""s_lshr_b32 s60, s{sWV}, 1
    v_cvt_f32_u32 v6, s60
    v_mul_f32 v6, {f2u(16.0)}, v6
    v_fma_f32 v5, v4, v6, v5
    s_and_b32 s60, s{sWV}, 1
    v_cvt_f32_u32 v6, s60
    v_fmamk_f32 v5, v6, {f2u(-0.25)}, v5""".split('\n')
    for j in range(8): G.append(f'v_fmamk_f32 v{TT+j}, v4, {f2u(1.*j)}, v5')
    for j in range(8): G.append(f'v_cos_f32 v{TT+j}, v{TT+j}')
    for j in range(4): G.append(f'v_cvt_pk_bf16_f32 v{TT+8+j}, v{TT+2*j}, v{TT+2*j+1}')
    G+=[f's_lshl_b32 s60, s{sWV}, 10',f'v_add_u32 v7, {ML}, v15','v_add_u32 v6, s60, v7',f'ds_write_b128 v6, {vr(TT+8,4)}']
    for x in G: e(x)
    e('s_waitcnt lgkmcnt(0)')
    stamp(A,1)
    srd(A,SD,12,2<<20,AINT_OFF)
    for x in Ld: e(x)
    srd(A,SO,10,2048*1792)
    aR,aS,bS,bR=16,17,18,19
    e(f"""v_lshl_add_u32 v3, v9, 3, v10
    v_lshlrev_b32 v3, 7, v3
    v_lshrrev_b32 v4, 1, v10
    v_lshl_add_u32 v3, v4, 6, v3
    s_lshl_b32 s60, s{sWV}, 14
    v_add3_u32 v3, v3, v11, s60
    v_add_u32 v{aR}, s54, v3
    v_add_u32 v{aS}, s55, v3
    v_xor_b32 v{bR}, 64, v{aR}
    v_xor_b32 v{bS}, 64, v{aS}
    v_mul_u32_u24 v22, {SP_}, v8
    s_lshl_b32 s60, s{sWV}, 6
    v_lshl_add_u32 v3, v9, 4, s60
    v_add_u32 v20, v22, v3
    v_sub_u32 v21, v22, v3
    v_add_u32 v21, 850, v21
    v_add_u32 v12, {SA_}, v20
    v_add_u32 v13, {SA_}, v21
    s_mul_i32 s50, s57, 1792
    s_mul_i32 s58, s58, 1792
    s_lshl_b32 s56, s{sWV}, 2
    s_mul_i32 s59, s56, s53
    s_add_u32 s58, s58, s59
    s_mul_i32 s59, s56, {32*1792}
    s_add_u32 s50, s50, s59
    s_mul_i32 s56, s56, {SP_}
    v_add_u32 v4, s56, v15
    v_add_u32 v5, {2*SP_}, v4
    v_add_u32 v2, {SA_}, v4
    v_add_u32 v0, {SA_}, v5""")
    FR=88; AC=[152,168,184,200]; AX,AY=216,232; PS=22
    e('s_waitcnt lgkmcnt(0)\ns_barrier')
    for ks in range(4): e(f'ds_read_b128 {vr(C+4*ks,4)}, v7 offset:{2048*ks}\nds_read_b128 {vr(S+4*ks,4)}, v7 offset:{2048*ks+1024}')
    e('s_waitcnt lgkmcnt(0)\ns_cmp_eq_u32 s43, 0\ns_cbranch_scc1 K2A_G1')
    for j in range(0,16,2): e(f'v_mov_b64 {vr(M2+j,2)}, {vr(S+j,2)}\nv_mov_b64 {vr(M3+j,2)}, {vr(C+j,2)}')
    e('s_branch K2A_G2\nK2A_G1:')
    for j in range(16): e(f'v_xor_b32 v{M2+j}, 0x80000000, v{C+j}\nv_xor_b32 v{M3+j}, 0x80000000, v{S+j}')
    e('K2A_G2:')
    stamp(A,3)
    A2M=OPT.get('a2m',1)
    if A2M==0:
        e('s_waitcnt vmcnt(6)\ns_barrier')
        stamp(A,4)
        e(f's_cmp_lt_u32 s{sWV}, 4\ns_cbranch_scc1 K2A_GO\ns_waitcnt vmcnt(0)\ns_barrier\ns_cmp_eq_u32 s{sWV}, 7\ns_cbranch_scc1 K2A_OUT\nK2A_GO:')
    else:
        e('s_waitcnt vmcnt(0)\ns_barrier')
        stamp(A,4)
        e(f's_cmp_eq_u32 s{sWV}, 7\ns_cbranch_scc1 K2A_B2')
    srcs=[(aR,C),(aS,M2),(bS,M3),(bR,S)]
    def rdA(n):
        ks,q=n>>2,n&3
        for jj in range(2): e(f'ds_read_b64_tr_b16 {vr(FR+4*n+2*jj,2)}, v{srcs[q][0]} offset:{2048*ks+512*jj}')
    for n in range(6): rdA(n)
    for n in range(16):
        if n+6<16: rdA(n+6); e('s_waitcnt lgkmcnt(12)')
        else: e(f's_waitcnt lgkmcnt({2*(15-n)})')
        ks,q=n>>2,n&3
        e(MF(AC[q],FR+4*n,srcs[q][1]+4*ks,AC[q] if ks else None))
    e(f's_cmp_eq_u32 s{sWV}, 0\ns_cbranch_scc0 K2A_NS')
    for ks in range(4):
        e(MF(AX,FR+4*(4*ks+3),C+4*ks,AX if ks else None)); e(MF(AY,FR+4*(4*ks+2),M2+4*ks,AY if ks else None))
    e('s_mov_b32 exec_hi, 0')
    e(f'v_mov_b32 v{AC[2]}, 0\nv_mov_b32 v{AC[3]}, 0\nv_sub_f32 v3, v{AX}, v{AY}\nv_cvt_pk_bf16_f32 v{PS}, v{AX}, v{AY}\nv_cvt_pk_bf16_f32 v3, v3, v3')
    e(f's_cmp_eq_u32 s43, 0\ns_cselect_b64 vcc, -1, 0\nv_cndmask_b32 v{PS}, v3, v{PS}, vcc')
    e('s_mov_b32 exec_hi, -1')
    e('K2A_NS:\ns_nop 7\ns_nop 1\ns_cmp_eq_u32 s43, 0\ns_cbranch_scc1 K2A_C1')
    NEG=' neg_lo:[0,1] neg_hi:[0,1]'
    AF,AM,BF,BM=88,104,120,136
    for j in range(0,16,2):
        e(f'v_pk_add_f32 {vr(AC[0]+j,2)}, {vr(AC[0]+j,2)}, {vr(AC[1]+j,2)}{NEG}')
        e(f'v_pk_add_f32 {vr(AC[2]+j,2)}, {vr(AC[2]+j,2)}, {vr(AC[3]+j,2)}')
    PK=152
    def packs(tiles):
        for tl,(F_,M_) in enumerate(tiles):
            p=PK+16*tl
            for j in range(8): e(f'v_cvt_pk_bf16_f32 v{p+j}, v{F_+2*j}, v{F_+2*j+1}')
            for i in range(2):
                b_=M_+8*i
                e(f'v_cvt_pk_bf16_f32 v{p+8+4*i}, v{b_+7}, v{b_}\nv_cvt_pk_bf16_f32 v{p+9+4*i}, v{b_+6}, v{b_+5}\nv_cvt_pk_bf16_f32 v{p+10+4*i}, v{b_+4}, v{b_+3}\nv_cvt_pk_bf16_f32 v{p+11+4*i}, v{b_+2}, v{b_+1}')
    for j in range(0,16,2):
        e(f'v_pk_add_f32 {vr(AF+j,2)}, {vr(AC[0]+j,2)}, {vr(AC[2]+j,2)}{NEG}')
        e(f'v_pk_add_f32 {vr(AM+j,2)}, {vr(AC[0]+j,2)}, {vr(AC[2]+j,2)}')
    packs(((AF,AM),(AM,AF)))
    e('s_branch K2A_C2\nK2A_C1:')
    for j in range(0,16,2):
        e(f'v_pk_add_f32 {vr(AF+j,2)}, {vr(AC[0]+j,2)}, {vr(AC[3]+j,2)}{NEG}')
        e(f'v_pk_add_f32 {vr(AM+j,2)}, {vr(AC[0]+j,2)}, {vr(AC[3]+j,2)}')
        e(f'v_pk_add_f32 {vr(BF+j,2)}, {vr(AC[1]+j,2)}, {vr(AC[2]+j,2)}{NEG}')
        e(f'v_pk_add_f32 {vr(BM+j,2)}, {vr(AC[1]+j,2)}, {vr(AC[2]+j,2)}')
    packs(((AF,AM),(BF,BM)))
    e('K2A_C2:')
    def writes(tl,vf,vm_):
        p=PK+16*tl
        for i in range(2):
            e(f'ds_write_b64 v{vf}, {vr(p+4*i,2)} offset:{32*i}\nds_write_b64 v{vf}, {vr(p+4*i+2,2)} offset:{32*i+8}')
            o=32-32*i; r=p+8+4*i
            e(f'ds_write_b16 v{vm_}, v{r} offset:{o}\nds_write_b32 v{vm_}, v{r+1} offset:{o+2}\nds_write_b64 v{vm_}, {vr(r+2,2)} offset:{o+6}\nds_write_b16_d16_hi v{vm_}, v{r} offset:{o+14}')
    writes(0,12,13)
    e(f"""s_cmp_eq_u32 s{sWV}, 0
    s_cbranch_scc0 K2A_B2
    s_mov_b32 exec_hi, 0
    ds_write_b16 v12, v{PS} offset:448
    s_mov_b32 exec_hi, -1
    K2A_B2:
    s_waitcnt lgkmcnt(0)
    s_barrier""")
    stamp(A,5)
    for i in range(4): e(f'ds_read2_b64 {vr(24+4*i,4)}, v{(2,0)[i>>1]} offset0:{113*(i&1)} offset1:{113*(i&1)+1}')
    e(f's_cmp_eq_u32 s{sWV}, 7\ns_cbranch_scc1 K2A_W7')
    writes(1,20,21)
    e(f"""s_cmp_eq_u32 s{sWV}, 0
    s_cbranch_scc0 K2A_W7
    s_mov_b32 exec_hi, 0
    ds_write_b16_d16_hi v20, v{PS} offset:448
    K2A_W7:
    s_mov_b32 exec_hi, 0x00ffffff
    s_waitcnt lgkmcnt(0)""")
    for i in range(4):
        e(f'buffer_store_dwordx4 {vr(24+4*i,4)}, v15, s[{SO}:{SO+3}], s50 offen {st}\ns_add_u32 s50, s50, {32*1792}')
    e('s_barrier')
    for i in range(4): e(f'ds_read2_b64 {vr(40+4*i,4)}, v{4+(i>>1)} offset0:{113*(i&1)} offset1:{113*(i&1)+1}')
    for i in range(4):
        e(f's_waitcnt lgkmcnt({3-i})')
        e(f'buffer_store_dwordx4 {vr(40+4*i,4)}, v15, s[{SO}:{SO+3}], s58 offen {st}\ns_add_u32 s58, s58, s53')
    dump2(A,3)
    e('K2_END:\ns_endpgm')

def k3(A):
    e=A.e
    kk,si,role,stat,scale=[int(x) for x in OPT['x'].split(',')]
    e('k3_kernel:')
    e('s_cmp_ge_u32 s2, 1\ns_cbranch_scc1 K3_END')
    e('s_load_dwordx2 s[4:5], s[0:1], 88\nv_lshlrev_b32 v1, 6, v0\nv_mov_b32 v2, 0\nv_mov_b32 v3, -1\nv_mov_b32 v4, 0')
    e('ds_write_b32 v2, v3\nds_write_b32 v2, v4 offset:4\nds_write_b32 v2, v4 offset:8\ns_waitcnt lgkmcnt(0)\ns_barrier')
    e('s_add_u32 s8, s4, 0x800000\ns_addc_u32 s9, s5, 0\ns_mov_b32 s10, 0x20000\ns_mov_b32 s11, 0x20000')
    e(f'buffer_load_dword v5, v1, s[8:11], 0 offen\ns_mov_b32 s12, {0x10000*kk}')
    e(f'buffer_load_dword v6, v1, s[8:11], s12 offen offset:{4*si}\nbuffer_load_dword v7, v1, s[8:11], s12 offen offset:40\ns_waitcnt vmcnt(0)')
    e('ds_min_u32 v2, v5\ns_waitcnt lgkmcnt(0)\ns_barrier\nds_read_b32 v8, v2\ns_waitcnt lgkmcnt(0)\nv_sub_u32 v6, v6, v8')
    e(f'v_cmp_eq_u32 vcc, {role}, v7\nv_cndmask_b32 v6, 0, v6, vcc\nv_cndmask_b32 v9, 0, 1, vcc')
    e(('ds_max_u32 v2, v6 offset:4' if stat==0 else 'ds_add_u32 v2, v6 offset:4')+'\nds_add_u32 v2, v9 offset:8\ns_waitcnt lgkmcnt(0)\ns_barrier')
    e('ds_read_b32 v6, v2 offset:4\nds_read_b32 v9, v2 offset:8\ns_waitcnt lgkmcnt(0)')
    e(f'v_cvt_f32_u32 v6, v6\nv_mul_f32 v6, {f2u(float(scale))}, v6')
    if stat==1: e('v_cvt_f32_u32 v9, v9\nv_rcp_f32 v9, v9\nv_mul_f32 v6, v6, v9')
    e('v_cvt_u32_f32 v6, v6\nv_min_u32 v6, 100000, v6\nv_readfirstlane_b32 s14, v6')
    e('s_memrealtime s[16:17]\ns_waitcnt lgkmcnt(0)\nK3_L:\ns_memrealtime s[18:19]\ns_waitcnt lgkmcnt(0)\ns_sub_u32 s20, s18, s16\ns_cmp_lt_u32 s20, s14\ns_cbranch_scc1 K3_L')
    e('K3_END:\ns_endpgm')

def desc(name,vgpr,sgpr,acc):
    return f'''.amdhsa_kernel {name}
  .amdhsa_next_free_vgpr {vgpr}
  .amdhsa_next_free_sgpr {sgpr}
  .amdhsa_accum_offset {acc}
  .amdhsa_group_segment_fixed_size 0
  .amdhsa_kernarg_size 96
  .amdhsa_user_sgpr_count 2
  .amdhsa_user_sgpr_kernarg_segment_ptr 1
  .amdhsa_system_sgpr_workgroup_id_x 1
.end_amdhsa_kernel
'''
def main():
    A1=Asm(); k1(A1); A2=Asm(); k2(A2)
    assert A1.verify_branches()==0 and A2.verify_branches()==0
    v1=A1.maxreg('v')+1; v2=A2.maxreg('v')+1; a2=A2.maxreg('a')+1
    r4=lambda x:(x+3)//4*4
    hdr=open('concat_heads__spectral_fnet__linear_kernel_hedgehog__prompt.s.ref').read().split('; Override')[0]
    out=hdr+'; @launch kernel=k1_kernel grid=(256,1,1) block=(512,1,1) lds=163840\n; @launch kernel=k2_kernel grid=(256,1,1) block=(512,1,1) lds=163840\n'
    ks=[('k1_kernel',A1),('k2_kernel',A2)]
    if 'x' in OPT:
        A3=Asm(); k3(A3); ks.append(('k3_kernel',A3)); out+='; @launch kernel=k3_kernel grid=(1,1,1) block=(256,1,1) lds=64\n'
    out+='.amdgcn_target "amdgcn-amd-amdhsa--gfx950"\n.text\n'
    for n,A in ks:
        out+=f'.globl {n}\n.p2align 8\n.type {n},@function\n'+A.text()
    out+='.section .rodata,"a"\n.p2align 6\n'+desc('k1_kernel',v1,102,r4(v1))+'.p2align 6\n'+desc('k2_kernel',v2,102,r4(v2))
    if 'x' in OPT: out+='.p2align 6\n'+desc('k3_kernel',16,32,16)
    open(sys.argv[1],'w').write(out)
    print('k1 vgpr',v1,'k2 vgpr',v2,'agpr',a2, 'k1 sgpr',A1.maxreg('s')+1,'k2 sgpr',A2.maxreg('s')+1)
main()
```

```python
import sys, math
from asmlib import *

PHIQ_OFF=0; KV_OFF=0x400000; AINT_OFF=0x500000
LOG2E=1.4426950408889634
OPT=dict(st_phi='sc1', st_aint='sc1', st_out='sc1', prof=0, rot=1, ldx='', lda='', D=2, apf=1, wpf=1, cpf=1, bpf=1, ob=4, eb=1, xl=2, bl=4)
for a in sys.argv[2:]:
    k,v=a.split('='); OPT[k]=int(v) if v.lstrip('-').isdigit() else v

def srd(A,d,base,nbytes,off=0):
    if off: A.e(f's_add_u32 s{d}, s{base}, {hex(off)}\ns_addc_u32 s{d+1}, s{base+1}, 0')
    else: A.e(f's_mov_b32 s{d}, s{base}\ns_mov_b32 s{d+1}, s{base+1}')
    A.e(f's_mov_b32 s{d+2}, {hex(nbytes)}\ns_mov_b32 s{d+3}, 0x20000')

NST=[0]
def stamp(A,i):
    if OPT.get('lp') and 1<=i<=6 and not OPT.get('k2'): return
    if OPT.get('kl') and 1<=i<=6 and OPT.get('k2'): return
    if OPT['prof']:
        A.e(f's_memrealtime s[{80+2*i}:{81+2*i}]')
        if i==0: A.e('s_memtime s[98:99]')
def dump(A,role,ws,ko):
    if not OPT['prof']: return
    NST[0]+=1; L=f'PD{NST[0]}'
    A.e(f's_memrealtime s[94:95]\ns_waitcnt vmcnt(0) lgkmcnt(0)\ns_memrealtime s[96:97]\ns_memtime s[78:79]\ns_waitcnt lgkmcnt(0)')
    A.e(f's_cmp_eq_u32 s40, {OPT.get("pw",0)}\ns_cbranch_scc0 {L}')
    A.e(f's_add_u32 s72, s{ws}, {ko}\ns_addc_u32 s73, s{ws+1}, 0\ns_mov_b32 s74, 0x10000\ns_mov_b32 s75, 0x20000\ns_mov_b64 exec, 1\ns_lshl_b32 s76, s2, 6\ns_sub_u32 s78, s78, s98')
    for i in range(9): A.e(f'v_mov_b32 v0, s{80+2*i}\nbuffer_store_dword v0, off, s[72:75], s76 offset:{4*i}')
    A.e(f'v_mov_b32 v0, s78\nbuffer_store_dword v0, off, s[72:75], s76 offset:36\nv_mov_b32 v0, {role}\nbuffer_store_dword v0, off, s[72:75], s76 offset:40')
    A.e(f'{L}:')
def dump1(A,role): dump(A,role,18,0x800000)
def dump2(A,role): dump(A,role,12,0x810000)

def MF(d,a,b,c=None):
    cc='0' if c is None else vr(c,16)
    return f'v_mfma_f32_32x32x16_bf16 {vr(d,16)}, {vr(a,4)}, {vr(b,4)}, {cc}'

def k1(A):
    e=A.e
    SX,SW,SP,SWS,SDB=20,24,28,32,36
    sWV=40
    e('k1_kernel:')
    e('s_cmp_ge_u32 s2, 256\ns_cbranch_scc1 K1_END')
    stamp(A,0)
    e('s_load_dwordx8 s[8:15], s[0:1], 40\ns_load_dwordx4 s[16:19], s[0:1], 80\ns_load_dwordx2 s[4:5], s[0:1], 0\ns_load_dwordx2 s[6:7], s[0:1], 72')
    e('v_and_b32 v1, 63, v0\nv_lshrrev_b32 v2, 6, v0')
    e('s_and_b32 s41, s2, 7\ns_lshr_b32 s42, s2, 3')
    e(f'v_readfirstlane_b32 s{sWV}, v2')
    e('s_cmp_ge_u32 s42, 24\ns_cbranch_scc1 K1_A')
    e('''s_and_b32 s43, s42, 1
    s_lshl_b32 s50, s41, 1
    s_add_u32 s43, s43, s50
    s_lshr_b32 s50, s42, 1
    s_and_b32 s50, s50, 7
    s_lshr_b32 s44, s42, 4
    s_add_u32 s53, s44, 1
    s_lshl_b32 s49, s50, s53''')
    vRX=10; vRW,vRB,vX0,vX1,vW,vP,vSA,vFL,vW0,vW1=14,15,16,17,18,19,20,21,22,23
    TM=24; WF=[32,48]; ACC0,ACC1=64,80; WPH=96; QB=112; EN=120; XF=144
    SLOT=24576; WBL=98304; WPL=155648
    e(f"""s_cmp_eq_u32 s44, 1
    s_cselect_b32 s46, 112, 896
    s_cselect_b32 s51, 224, 112
    s_cselect_b32 s52, 0, 896
    s_mul_i32 s45, s50, s51
    s_add_u32 s45, s45, s52
    v_lshrrev_b32 v3, 3, v1
    v_lshrrev_b32 v4, 4, v1
    v_and_b32 v5, 7, v1
    v_xor_b32 v6, v5, v4
    v_lshlrev_b32 v6, 4, v6
    v_mul_u32_u24 v7, 896, v3
    v_add_u32 v{vX0}, v7, v6
    v_xor_b32 v{vX1}, 64, v{vX0}
    v_add_u32 v{vX1}, {8*896}, v{vX1}
    v_and_b32 v4, 1, v4
    v_lshlrev_b32 v4, 2, v4
    v_xor_b32 v5, v5, v4
    v_min_u32 v5, 6, v5
    v_mul_u32_u24 v7, 2688, v3
    v_lshl_add_u32 v{vW}, v5, 4, v7
    v_lshlrev_b32 v3, 4, v0
    s_lshl_b32 s54, s43, 3
    s_add_u32 s54, s54, s{sWV}
    s_mul_i32 s54, s54, {16*896}
    s_mul_i32 s62, s{sWV}, {8*2688}
    s_add_u32 s62, s62, s45
    s_lshl_b32 s56, s{sWV}, 11
    s_lshl_b32 s61, s{sWV}, 10
    s_mul_i32 s57, s49, 1568
    s_add_u32 m0, s61, {WPL}""")
    if OPT['rot']:
        e(f"""s_min_u32 s58, s41, 6
        s_lshl_b32 s60, s58, 7
        s_add_u32 s54, s54, s60
        s_mul_i32 s55, s58, {64*2688}
        s_add_u32 s55, s55, s62""")
    else: e('s_mov_b32 s58, 0\ns_mov_b32 s55, s62')
    e('s_add_u32 s59, s55, s46\ns_mov_b32 s63, s58\ns_add_u32 s47, s62, s46')
    for d_,n_ in ((SX,2048*896),(SW,448*2688),(SP,16*1568)): e(f's_mov_b32 s{d_+2}, {hex(n_)}\ns_mov_b32 s{d_+3}, 0x20000')
    e('s_waitcnt lgkmcnt(0)')
    stamp(A,1)
    for d_,b_ in ((SX,8),(SW,10),(SP,12)): e(f's_mov_b64 s[{d_}:{d_+1}], s[{b_}:{b_+1}]')
    lx=OPT['ldx']
    def issue(st):
        sl=SLOT*(st%4)
        return [f's_add_u32 m0, s56, {sl}\ns_add_u32 s58, s58, 1\nbuffer_load_dwordx4 v{vX0}, s[{SX}:{SX+3}], s54 offen {lx} lds',
                f's_add_u32 m0, s61, {sl+16384}\ns_cmp_eq_u32 s58, 7\nbuffer_load_dwordx4 v{vW}, s[{SW}:{SW+3}], s55 offen lds\ns_cselect_b32 s60, {128-896+(1<<32)}, 128\ns_cselect_b32 s55, {-64*2688*6+(1<<32)}, {64*2688}'.replace('s_cselect_b32 s55','s_cselect_b32 s64'),
                f's_add_u32 m0, s56, {sl+1024}\ns_add_u32 s55, s55, s64\nbuffer_load_dwordx4 v{vX1}, s[{SX}:{SX+3}], s54 offen {lx} lds\ns_add_u32 s54, s54, s60']
    def issueB(t):
        return [f's_add_u32 m0, s61, {WBL+8192*t}\ns_add_u32 s63, s63, 1\nbuffer_load_dwordx4 v{vW}, s[{SW}:{SW+3}], s59 offen lds\ns_add_u32 s59, s59, {64*2688}\ns_cmp_eq_u32 s63, 7\ns_cselect_b32 s59, s47, s59']
    D=OPT['D']
    WL=OPT.get('wl',0)
    if not WL: e(f'buffer_load_dwordx4 v3, s[{SP}:{SP+3}], s57 offen lds')
    for st in range(D):
        for x in issue(st): e(x)
    if WL: e(f's_add_u32 m0, s61, {WPL}\ns_nop 0\nbuffer_load_dwordx4 v3, s[{SP}:{SP+3}], s57 offen lds')
    e(f"""v_and_b32 v3, 3, v2
    v_and_b32 v4, 31, v1
    v_lshl_add_u32 v8, v3, 5, v4
    v_lshrrev_b32 v9, 5, v1
    v_bfe_u32 v5, v8, 1, 3
    v_xor_b32 v5, v5, v9
    v_lshlrev_b32 v5, 4, v5
    v_lshl_add_u32 v{vRX}, v8, 7, v5
    v_bfe_u32 v3, v1, 4, 1
    v_and_b32 v4, 3, v1
    v_lshl_add_u32 v3, v3, 2, v4
    v_min_u32 v3, 6, v3
    v_lshlrev_b32 v7, 3, v3
    v_lshrrev_b32 v2, 2, v2
    v_mad_u32_u24 v3, v2, 56, v7
    v_bfe_u32 v0, v1, 2, 2
    v_lshl_add_u32 v5, v9, 3, v0
    v_lshlrev_b32 v5, 7, v5
    v_bfe_u32 v4, v1, 3, 1
    v_lshlrev_b32 v4, 6, v4
    v_xor_b32 v6, v3, v4
    v_add_u32 v5, v5, v6
    v_add_u32 v{vRW}, 16384, v5
    v_add_u32 v{vRB}, {WBL}, v5
    v_lshl_add_u32 v4, v9, 2, v0
    v_mul_u32_u24 v4, 56, v4
    v_mul_u32_u24 v5, 1568, v2
    v_add3_u32 v3, v7, v4, v5
    v_add_u32 v{vP}, {WPL}, v3""")
    for ks in range(1,4): e(f'v_xor_b32 v{vRX+ks}, {32*ks}, v{vRX}')
    srd(A,SDB,16,256)
    e(f"""s_cmp_eq_u32 s44, 1
    s_cselect_b32 s60, {PHIQ_OFF}, {KV_OFF}
    s_cselect_b32 s{SWS+2}, {64*16*3584}, {16*3584}
    s_add_u32 s{SWS}, s18, s60
    s_addc_u32 s{SWS+1}, s19, 0
    s_mov_b32 s{SWS+3}, 0x20000
    s_and_b32 s65, s{sWV}, 3
    s_lshl_b32 s66, s43, 2
    s_add_u32 s65, s65, s66
    s_lshl_b32 s65, s65, 4
    s_lshr_b32 s66, s{sWV}, 2
    s_lshl_b32 s67, s66, 1
    s_add_u32 s65, s65, s67
    s_add_u32 s65, s65, s49
    s_mul_i32 s65, s65, 3584
    v_lshlrev_b32 v{vSA}, 4, v1
    s_mul_i32 s67, s66, 24576
    v_mul_u32_u24 v3, 192, v8
    v_bfe_u32 v4, v8, 1, 2
    v_lshlrev_b32 v5, 1, v9
    v_xor_b32 v4, v4, v5
    v_lshl_add_u32 v3, v4, 4, v3
    v_add_u32 v{vW0}, s67, v3
    v_xor_b32 v{vW1}, 16, v{vW0}
    s_mov_b32 s68, {f2u(LOG2E)}
    s_lshr_b32 s66, s{sWV}, {2 if OPT.get('sub',1) else 1}
    s_and_b32 s67, s{sWV}, 1
    s_mul_i32 s71, s66, 24576
    s_lshl_b32 s69, s67, 6
    v_lshl_add_u32 v4, v9, 3, v0
    v_mul_u32_u24 v4, 192, v4
    v_and_b32 v5, 1, v1
    v_bfe_u32 v6, v1, 4, 1
    v_lshl_add_u32 v5, v5, 1, v6
    v_lshrrev_b32 v3, 1, v0
    v_xor_b32 v5, v5, v3
    v_lshl_add_u32 v4, v5, 4, v4
    v_bfe_u32 v5, v1, 1, 1
    v_lshl_add_u32 v4, v5, 3, v4
    v_add_u32 v4, s71, v4
    v_xor_b32 v5, 32, v4
    v_add_u32 v6, s69, v4
    v_add_u32 v7, s69, v5
    s_and_b32 s71, s50, 2
    s_add_u32 s71, s71, s66
    s_lshl_b32 s71, s71, 1
    s_lshr_b32 s69, s50, 2
    s_add_u32 s71, s71, s69
    s_lshl_b32 s71, s71, 1
    s_and_b32 s69, s50, 1
    s_add_u32 s71, s71, s69
    s_mul_i32 s71, s71, 3584
    s_lshl_b32 s69, s67, 11
    s_add_u32 s71, s71, s69
    v_lshlrev_b32 v3, 2, v1
    v_mov_b32 v2, 0x3f80""")
    def rdW(ad,buf,off):
        return [f'ds_read_b64_tr_b16 {vr(WF[buf]+4*ks+2*jj,2)}, v{ad} offset:{off+2048*ks+512*jj}' for ks in range(4) for jj in range(2)]
    def shift():
        e(('s_memtime' if OPT.get('cyc') else 's_memrealtime')+' s[76:77]\ns_waitcnt lgkmcnt(0)')
        for i in range(1,7): e(f's_mov_b32 s{80+2*i}, s{82+2*i}')
        e('s_mov_b32 s92, s76')
    stamp(A,2)
    issued=[('p',1)]+[(k,3) for k in range(D)] if not WL else [(k,3) for k in range(D)]+[('p',1)]
    def younger(tag):
        n=0
        for t,c in reversed(issued):
            if t==tag: return n
            n+=c
        raise
    nB=0
    for s_ in range(7):
        e(f's_waitcnt vmcnt({younger(s_)}) lgkmcnt(0)\ns_barrier')
        if s_==0: stamp(A,3)
        elif OPT.get('lp')==1: shift()
        I=[]
        if s_+D<7: I=issue(s_+D); issued.append((s_+D,3))
        k=int(str(OPT.get('bs','0000043')).zfill(7)[s_])
        for t in range(nB,nB+k): I+=issueB(t); issued.append((f'B{t}',1))
        nB+=k
        R=[]
        for ks in range(4): R+=[f'ds_read_b128 {vr(XF+16*s_+4*ks,4)}, v{vRX+ks}']+rdW(vRW,s_&1,0)[2*ks:2*ks+2]
        if s_==(D+1 if WL else 1) and OPT.get('sub',1): R+=[f'v_mov_b32 v{TM}, 163832\nv_mov_b64 {vr(TM+2,2)}, 0\nds_write_b64 v{TM}, {vr(TM+2,2)}']
        if s_==(D if WL else 0): R+=[f'ds_read_b64_tr_b16 {vr(WPH+8*u+2*q,2)}, v{vP} offset:{3136*u+448*q}' for u in range(2) for q in range(4)]
        M=[MF(ACC0,WF[(s_-1)&1]+4*ks,XF+16*(s_-1)+4*ks,ACC0 if (s_>1 or ks) else None) for ks in range(4)] if s_ else []
        d=SLOT if (s_+1)%4 else -3*SLOT
        V=[f'v_add_u32 v{r}, {d&0xffffffff}, v{r}' for r in (vRX,vRX+1,vRX+2,vRX+3,vRW)] if s_<6 else []
        for i in range(4):
            if M: e(M[i])
            for x in R[i*len(R)//4:(i+1)*len(R)//4]: e(x)
            if i<len(I): e(I[i])
        for x in I[4:]: e(x)
        for x in V: e(x)
    P=ACC0; EP=ACC0
    PHR=[112+j for j in range(8)]+[136+j for j in range(4)]
    def unit(P,EN,PH,pk=1):
        U=[]
        mx,nm,t0,t1=TM,TM+1,TM+2,TM+3; EP=P
        U+=[f'v_permlane32_swap_b32 v{P+12}, v{P+14}',f'v_permlane32_swap_b32 v{P+13}, v{P+15}']
        U+=[f'v_max3_f32 v{mx}, v{P}, v{P+1}, v{P+2}',f'v_min3_f32 v{nm}, v{P}, v{P+1}, v{P+2}']
        for j in range(3,13,2): U+=[f'v_max3_f32 v{mx}, v{mx}, v{P+j}, v{P+j+1}',f'v_min3_f32 v{nm}, v{nm}, v{P+j}, v{P+j+1}']
        U+=[f'v_max_f32 v{mx}, v{mx}, v{P+13}',f'v_min_f32 v{nm}, v{nm}, v{P+13}']
        U+=[f'v_mul_f32 v{mx}, s68, v{mx}',f'v_mul_f32 v{nm}, {f2u(-LOG2E)}, v{nm}']
        U+=[f'v_permlane32_swap_b32 v{mx}, v{nm}',f'v_max_f32 v{t0}, v{mx}, v{nm}',f'v_max_f32 v{t1}, v{mx}, v{nm}',f'v_permlane32_swap_b32 v{t0}, v{t1}']
        if pk:
            for j in range(0,14,2):
                U+=[f'v_pk_fma_f32 {vr(EN+j,2)}, {vr(P+j,2)}, s[68:69], {vr(t0,2)} op_sel:[0,0,1] op_sel_hi:[1,0,1] neg_lo:[0,1,1] neg_hi:[0,1,1]',
                    f'v_pk_fma_f32 {vr(EP+j,2)}, {vr(P+j,2)}, s[68:69], {vr(t0,2)} op_sel_hi:[1,0,0] neg_lo:[0,0,1] neg_hi:[0,0,1]']
        else:
            for j in range(14): U+=[f'v_fma_f32 v{EN+j}, -v{P+j}, s68, -v{t1}',f'v_fma_f32 v{EP+j}, v{P+j}, s68, -v{t0}']
        for j in range(14): U+=[f'v_exp_f32 v{EP+j}, v{EP+j}',f'v_exp_f32 v{EN+j}, v{EN+j}']
        sp,sn=TM+4,TM+6
        if pk:
            U+=[f'v_pk_add_f32 {vr(sp,2)}, {vr(EP,2)}, {vr(EP+2,2)}',f'v_pk_add_f32 {vr(sn,2)}, {vr(EN,2)}, {vr(EN+2,2)}']
            for j in range(4,14,2): U+=[f'v_pk_add_f32 {vr(sp,2)}, {vr(sp,2)}, {vr(EP+j,2)}',f'v_pk_add_f32 {vr(sn,2)}, {vr(sn,2)}, {vr(EN+j,2)}']
            U+=[f'v_add_f32 v{mx}, v{sp}, v{sp+1}',f'v_add_f32 v{nm}, v{sn}, v{sn+1}']
        else:
            U+=[f'v_add_f32 v{mx}, v{EP}, v{EP+1}',f'v_add_f32 v{nm}, v{EN}, v{EN+1}']
            for j in range(2,14): U+=[f'v_add_f32 v{mx}, v{mx}, v{EP+j}',f'v_add_f32 v{nm}, v{nm}, v{EN+j}']
        U+=[f'v_permlane32_swap_b32 v{mx}, v{nm}',f'v_add_f32 v{t0}, v{mx}, v{nm}',f'v_rcp_f32 v{t0}, v{t0}',f'v_mov_b32 v{t1}, v{t0}',f'v_permlane32_swap_b32 v{t0}, v{t1}']
        if pk: U+=[f'v_pk_mul_f32 {vr(EP+j,2)}, {vr(EP+j,2)}, {vr(t0,2)} op_sel_hi:[1,0]' for j in range(0,14,2)]
        else: U+=[f'v_mul_f32 v{EP+j}, v{t0}, v{EP+j}' for j in range(14)]
        U+=[f'v_cvt_pk_bf16_f32 v{PH[j]}, v{EP+2*j}, v{EP+2*j+1}' for j in range(7)]
        if pk: U+=[f'v_pk_mul_f32 {vr(EN+j,2)}, {vr(EN+j,2)}, {vr(t0,2)} op_sel:[0,1] op_sel_hi:[1,1]' for j in range(0,14,2)]
        else: U+=[f'v_mul_f32 v{EN+j}, v{t1}, v{EN+j}' for j in range(14)]
        U+=[f'v_cvt_pk_bf16_f32 v{PH[7+j]}, v{EN+2*j}, v{EN+2*j+1}' for j in range(7)]
        return U
    e('s_waitcnt lgkmcnt(0)')
    for ks in range(4): e(MF(ACC0,WF[0]+4*ks,XF+96+4*ks,ACC0))
    e('v_cmp_gt_u32 vcc, 32, v1')
    for j in (6,7,14,15): e(f'v_cndmask_b32 v{WPH+j}, 0, v{WPH+j}, vcc')
    for j in range(8): e(f'v_cvt_pk_bf16_f32 v{QB+j}, v{ACC0+2*j}, v{ACC0+2*j+1}')
    e(MF(P,WPH,QB)); e(MF(P,WPH+4,QB+4,P))
    n1=OPT.get('n1',36)
    Ua=unit(P,EN,PHR+[140,141],1); Ub=unit(P,EN,PHR+[140,141],0)
    cutA=22+14; cutB=22+28
    U=Ua[:cutA]+Ub[cutB:]
    for x in U[:n1]: e(x)
    e(f's_waitcnt vmcnt({younger("B2")})\ns_barrier')
    stamp(A,4)
    if OPT.get('oc'): e('s_memtime s[82:83]')
    for x in rdW(vRB,1,0)+rdW(vRB,0,8192): e(x)
    gaps=[1]*24+[0]*4
    cost=lambda x: 2.0 if x.startswith(('v_exp','v_rcp')) else 1.0
    tot=sum(gaps); k=n1; acc=0; ctot=sum(cost(x) for x in U[n1:]); cdone=0
    for t in range(7):
        e('s_waitcnt lgkmcnt(%d)'%(8 if t<6 else 0))
        for ks in range(4):
            e(MF(ACC1,WF[(t+1)&1]+4*ks,XF+16*t+4*ks,ACC1 if (t or ks) else None))
            if t+2<7:
                if t==1 and ks==0: e('s_waitcnt vmcnt(0)\ns_barrier')
                if t==4 and ks==0: e(f'buffer_load_dword v{vFL}, off, s[{SDB}:{SDB+3}], 0 sc1')
                for x in rdW(vRB,(t+1)&1,8192*(t+2))[2*ks:2*ks+2]: e(x)
            if t==6 and ks==0:
                st=OPT['st_phi']
                e('s_cmp_eq_u32 s44, 0\ns_cbranch_scc1 K1_S1')
                for c,r in enumerate((112,116,136)): e(f'buffer_store_dwordx4 {vr(r,4)}, v{vSA}, s[{SWS}:{SWS+3}], s65 offen offset:{1024*c} {st}')
                e(f'''s_branch K1_S2
                K1_S1:
                ds_write_b128 v{vW0}, v[112:115]
                ds_write_b128 v{vW1}, v[116:119]
                ds_write_b128 v{vW0}, v[136:139] offset:64
                ds_write_b64 v{vW1}, v[140:141] offset:64
                K1_S2:''')
            acc+=gaps[4*t+ks]
            while k<len(U) and cdone<ctot*acc/tot-1e-9: e(U[k]); cdone+=cost(U[k]); k+=1
    assert k==len(U)
    stamp(A,5)
    if OPT.get('oc'): e('s_memtime s[84:85]')
    e('s_cmp_eq_u32 s44, 0\ns_cbranch_scc1 K1_KV')
    st=OPT['st_phi']
    e('s_add_u32 s65, s65, 3072')
    Q2=144; P2=160; E2=176; H2=192
    for j in range(8): e(f'v_cvt_pk_bf16_f32 v{Q2+j}, v{ACC1+2*j}, v{ACC1+2*j+1}')
    e(MF(P2,WPH+8,Q2)); e(MF(P2,WPH+12,Q2+4,P2))
    for x in unit(P2,E2,[H2+j for j in range(12)]+[142,143]): e(x)
    for c in range(3): e(f'buffer_store_dwordx4 {vr(H2+4*c,4)}, v{vSA}, s[{SWS}:{SWS+3}], s65 offen offset:{1024*c} {st}')
    e(f'buffer_store_dwordx4 v[140:143], v{vSA}, s[{SWS}:{SWS+3}], s65 offen offset:3072 {st}')
    if OPT.get('ppf'):
        e(f'''v_lshlrev_b32 v3, 7, v1
        s_sub_u32 s65, s65, 3072
        s_mov_b32 exec_hi, 0x00ffffff
        s_waitcnt vmcnt(0)
        buffer_load_dword v4, v3, s[{SWS}:{SWS+3}], s65 offen''')
    dump1(A,2)
    e('s_endpgm')
    e('K1_KV:')
    T2=144
    e('s_nop 7\ns_nop 1')
    for j in range(8): e(f'v_cvt_pk_bf16_f32 v{T2+j}, v{ACC1+2*j}, v{ACC1+2*j+1}')
    e(f"""v_cndmask_b32 v{T2+6}, v2, v{T2+6}, vcc
    v_cndmask_b32 v{T2+7}, v2, v{T2+7}, vcc
    ds_write_b128 v{vW0}, {vr(T2,4)} offset:128
    v_permlane32_swap_b32 v{T2+6}, v{T2+7}
    ds_write_b128 v{vW1}, {vr(T2+4,4)} offset:128
    s_mov_b32 s70, 0""")
    e(f's_waitcnt vmcnt(0)\nv_readfirstlane_b32 s69, v{vFL}')
    if OPT.get('sub',1):
        e(f'''s_lshl_b32 s64, s66, 2
        s_add_u32 s64, s64, 163832
        v_mov_b32 v{TM}, s64
        v_mov_b32 v{TM+1}, 1
        s_mov_b64 exec, 1
        s_waitcnt lgkmcnt(0)
        ds_add_u32 v{TM}, v{TM+1}
        s_mov_b64 exec, -1
        s_bitcmp1_b32 s{sWV}, 1
        s_cbranch_scc1 K1_END
        K1_SUB:
        ds_read_b32 v{TM+1}, v{TM}
        s_waitcnt lgkmcnt(0)
        v_readfirstlane_b32 s64, v{TM+1}
        s_cmp_lt_u32 s64, 4
        s_cbranch_scc1 K1_SUB''')
        stamp(A,6)
    else:
        e('s_waitcnt lgkmcnt(0)\ns_barrier')
        stamp(A,6)
        e(f's_cmp_ge_u32 s{sWV}, 4\ns_cbranch_scc1 K1_END')
    FA,FB,KA=160,192,224
    for ks in range(8):
        e(f'ds_read_b64_tr_b16 {vr(FA+4*ks,2)}, v6 offset:{3072*ks}')
        e(f'ds_read_b64_tr_b16 {vr(FA+4*ks+2,2)}, v7 offset:{3072*ks+768}')
        e(f'ds_read_b64_tr_b16 {vr(FB+4*ks,2)}, v4 offset:{3072*ks+128}')
        e(f'ds_read_b64_tr_b16 {vr(FB+4*ks+2,2)}, v5 offset:{3072*ks+768+128}')
        if ks>=2:
            e('s_waitcnt lgkmcnt(8)'); e(MF(KA,FA+4*(ks-2),FB+4*(ks-2),KA if ks>2 else None))
    e('s_waitcnt lgkmcnt(4)'); e(MF(KA,FA+24,FB+24,KA))
    e('s_waitcnt lgkmcnt(0)'); e(MF(KA,FA+28,FB+28,KA))
    e('K1_POLL:\ns_cmp_ge_u32 s69, 64\ns_cbranch_scc1 K1_GO\ns_add_u32 s70, s70, 1\ns_cmp_ge_u32 s70, 0x40000\ns_cbranch_scc1 K1_GO\ns_sleep 2')
    e(f'buffer_load_dword v{vFL}, off, s[{SDB}:{SDB+3}], 0 sc1\ns_waitcnt vmcnt(0)\nv_readfirstlane_b32 s69, v{vFL}')
    e('s_branch K1_POLL\nK1_GO:\ns_nop 7\ns_nop 1')
    for j in range(6):
        e(f'v_cvt_pk_bf16_f32 v{FA+j}, v{KA+2*j}, v{KA+2*j+1}')
        e(f'buffer_atomic_pk_add_bf16 v{FA+j}, v3, s[{SWS}:{SWS+3}], s71 offen offset:{256*j}')
    e('s_cmp_eq_u32 s67, 1\ns_cbranch_scc1 K1_END')
    for j in range(6,8):
        e(f'v_cvt_pk_bf16_f32 v{FA+j}, v{KA+2*j}, v{KA+2*j+1}')
        e(f'buffer_atomic_pk_add_bf16 v{FA+j}, v3, s[{SWS}:{SWS+3}], s71 offen offset:{256*j}')
    dump1(A,1)
    e('s_endpgm')
    e('K1_A:')
    e(f"""s_lshl_b32 s43, s41, 3
    s_add_u32 s43, s43, s42
    s_sub_u32 s43, s43, 24
    v_lshlrev_b32 v3, 4, v1
    v_lshlrev_b32 v17, 7, v1""")
    if OPT['cpf']:
        e(f"""s_cmp_eq_u32 s{sWV}, 6
        s_cbranch_scc0 K1A_H1
        s_getpc_b64 s[44:45]
        K1_PC:
        s_sub_u32 s44, s44, K1_PC-k1_kernel
        s_subb_u32 s45, s45, 0
        global_load_dword v18, v17, s[44:45]
        global_load_dword v18, v17, s[44:45] offset:4032
        K1A_H1:""".replace("global_load_dword v18, v17, s[44:45] offset:4032\n","s_add_u32 s44, s44, 8192\ns_addc_u32 s45, s45, 0\nglobal_load_dword v18, v17, s[44:45]\n"))
    e(f"""s_lshl_b32 s44, s{sWV}, 8
    s_add_u32 s44, s44, s43
    s_mul_i32 s44, s44, 896
    s_mul_i32 s45, s{sWV}, {4*960}
    s_lshl_b32 s46, s43, 3
    s_add_u32 s46, s46, s{sWV}
    s_mul_i32 s46, s46, {28*128}
    s_mul_i32 s47, s43, 896
    v_mul_u32_u24 v19, 37, v1
    v_lshrrev_b32 v19, 8, v19
    v_mul_u32_u24 v4, {2688-7*128}, v19
    v_add_u32 v19, v4, v17
    s_sub_u32 s49, s42, 24
    s_lshl_b32 s49, s49, 3
    s_add_u32 s49, s49, s{sWV}
    s_mul_i32 s50, s49, {7*2688}
    s_add_u32 s50, s50, 1792
    s_mul_i32 s49, s49, {49*128}
    s_mov_b32 m0, s45
    s_mov_b32 exec_hi, 0x00ffffff
    s_waitcnt lgkmcnt(0)""")
    stamp(A,1)
    srd(A,SDB,16,256)
    e(f's_cmp_eq_u32 s{sWV}, 7\ns_cbranch_scc0 K1A_H3')
    srd(A,SWS,18,16*3584,KV_OFF)
    e(f"""s_mov_b32 exec_hi, 0x00ffffff
    v_mov_b64 v[12:13], 0
    v_mov_b64 v[14:15], 0
    buffer_store_dwordx4 v[12:15], v3, s[{SWS}:{SWS+3}], s47 offen sc1
    K1A_H3:""")
    if OPT['apf']:
        srd(A,SW,8,2048*896)
        e(f's_mov_b64 exec, 0x0fffffff\nbuffer_load_dword v18, v17, s[{SW}:{SW+3}], s46 offen {lx}\ns_mov_b32 exec_lo, -1')
    def bpf(pos):
        if not OPT.get('bpf') or OPT.get('bl',0)!=pos: return
        srd(A,SW,10,448*2688)
        e(f's_mov_b32 exec_hi, 0x1ffff\nbuffer_load_dword v18, v19, s[{SW}:{SW+3}], s50 offen\ns_mov_b32 exec_hi, -1')
    bpf(0)
    srd(A,SX,4,2048*896)
    def xdma(pos):
        if OPT.get('xl',0)!=pos: return
        e('s_mov_b32 exec_hi, 0x00ffffff')
        for i in range(4):
            if i: e(f's_add_u32 m0, s45, {960*i}\ns_add_u32 s44, s44, {64*896}')
            e(f'buffer_load_dwordx4 v3, s[{SX}:{SX+3}], s44 offen {OPT["lda"]} lds')
        e('s_mov_b32 exec_hi, -1')
    xdma(0)
    VL=32768; OL=73728
    e('s_mov_b32 exec_hi, -1\nv_and_b32 v8, 31, v1\nv_lshrrev_b32 v9, 5, v1')
    e(f'''v_mul_u32_u24 v10, {8*2560}, v9
    v_mul_u32_u24 v16, 80, v8
    v_add_u32 v10, v16, v10
    v_lshl_add_u32 v10, v2, 3, v10
    v_add_u32 v10, {VL}, v10''')
    FF=20; HH=28; CP=32; SPn=40; A2=48; B2=56; TT=64
    e(f'''v_lshrrev_b32 v4, 1, v8
    v_and_b32 v5, 1, v8
    v_cvt_f32_u32 v5, v5
    v_mul_f32 v5, {f2u(-0.25)}, v5
    v_cmp_eq_u32 vcc, 1, v8
    v_cndmask_b32 v4, v4, 16, vcc
    v_cndmask_b32 v5, v5, 0, vcc
    v_cvt_f32_u32 v4, v4
    v_mul_f32 v4, {f2u(1/32)}, v4
    v_cvt_f32_u32 v11, v9
    v_mul_f32 v12, 4.0, v11
    v_add_f32 v11, v12, v12
    v_fma_f32 v5, v4, v11, v5''')
    for ks in range(2):
        for j in range(8): e(f'v_fmamk_f32 v{TT+8*ks+j}, v4, {f2u(16.*ks+j)}, v5')
    for j in range(16): e(f'v_cos_f32 v{TT+j}, v{TT+j}')
    for j in range(8): e(f'v_cvt_pk_bf16_f32 v{FF+j}, v{TT+2*j}, v{TT+2*j+1}')
    bpf(1)
    xdma(1)
    e(f'''v_bfe_u32 v4, v8, 2, 1
    v_bfe_u32 v5, v8, 3, 1
    v_lshl_add_u32 v4, v4, 1, v5
    v_bfe_u32 v5, v8, 1, 1
    v_lshl_add_u32 v4, v4, 1, v5
    v_and_b32 v5, 1, v8
    v_cvt_f32_u32 v5, v5
    v_mul_f32 v5, {f2u(-0.25)}, v5
    v_and_b32 v6, 15, v8
    v_cmp_eq_u32 vcc, 1, v6
    v_cndmask_b32 v4, v4, 8, vcc
    v_cndmask_b32 v5, v5, 0, vcc
    v_cvt_f32_u32 v4, v4
    v_mul_f32 v4, {f2u(1/16)}, v4
    v_fma_f32 v5, v4, v12, v5''')
    for j in range(8): e(f'v_fmamk_f32 v{TT+j}, v4, {f2u(8.*(j>>2)+(j&3))}, v5')
    for j in range(8): e(f'v_cos_f32 v{TT+j}, v{TT+j}')
    for j in range(4): e(f'v_cvt_pk_bf16_f32 v{HH+j}, v{TT+2*j}, v{TT+2*j+1}')
    e(f's_cmp_eq_u32 s{sWV}, 7\ns_cbranch_scc0 K1A_N7\nv_mov_b32 v7, 1\ns_waitcnt vmcnt({(1 if OPT["apf"] else 0)+(1 if OPT.get("bpf") and OPT.get("bl",0)<2 else 0)+(4 if OPT.get("xl",0)<2 else 0)})\ns_mov_b64 exec, 1')
    e(f'buffer_atomic_add v7, off, s[{SDB}:{SDB+3}], 0 sc1\ns_mov_b64 exec, -1\nK1A_N7:')
    bpf(2)
    xdma(2)
    e(f'''s_cmp_eq_u32 s{sWV}, 0
    s_cselect_b32 s47, 8, s{sWV}
    s_sub_u32 s48, 0, s47
    v_lshrrev_b32 v4, 2, v8
    v_lshlrev_b32 v4, 5, v4
    v_and_b32 v5, 3, v8
    v_add_u32 v5, 1, v5
    v_lshrrev_b32 v5, 1, v5
    v_lshl_add_u32 v4, v5, 4, v4
    v_and_b32 v5, 1, v8
    v_cmp_eq_u32 vcc, 1, v5
    v_mov_b32 v6, s48
    v_cndmask_b32 v6, v2, v6, vcc
    v_add_u32 v4, v4, v6
    v_cvt_f32_u32 v4, v4
    v_mul_f32 v4, {f2u(1/448)}, v4
    v_mul_f32 v5, v4, v11''')
    for ks in range(2):
        for j in range(8): e(f'v_fmamk_f32 v{TT+8*ks+j}, v4, {f2u(16.*ks+j)}, v5')
    for j in range(16): e(f'v_sin_f32 v{TT+16+j}, v{TT+j}\nv_cos_f32 v{TT+j}, v{TT+j}')
    for j in range(8): e(f'v_cvt_pk_bf16_f32 v{CP+j}, v{TT+2*j}, v{TT+2*j+1}\nv_cvt_pk_bf16_f32 v{SPn+j}, v{TT+16+2*j}, v{TT+16+2*j+1}')
    e(f's_cmp_eq_u32 s{sWV}, 0\ns_cbranch_scc1 K1A_SPEC')
    e('''v_mov_b32 v4, 0x80008000
    v_cndmask_b32 v5, v4, 0, vcc
    v_cndmask_b32 v6, 0, v4, vcc''')
    for j in range(8): e(f'v_xor_b32 v{A2+j}, v5, v{SPn+j}\nv_xor_b32 v{B2+j}, v6, v{CP+j}')
    e('s_branch K1A_ST1\nK1A_SPEC:')
    for j in range(8):
        e(f'''v_cndmask_b32 v{A2+j}, 0, v{CP+j}, vcc
        v_cndmask_b32 v{B2+j}, 0, v{SPn+j}, vcc
        v_cndmask_b32 v{CP+j}, v{CP+j}, 0, vcc
        v_cndmask_b32 v{SPn+j}, v{SPn+j}, 0, vcc''')
    e('v_mov_b32 v4, 0xbf803f80\nv_cmp_eq_u32 vcc, 0, v8')
    for j in range(8): e(f'v_cndmask_b32 v{SPn+j}, v{SPn+j}, v4, vcc')
    e('K1A_ST1:')
    bpf(3)
    xdma(3)
    bpf(4)
    XA=64; BO=80; U0=96; U1=112; VU=96
    e(f'''v_bfe_u32 v4, v1, 2, 2
    v_lshl_add_u32 v4, v9, 3, v4
    v_mul_u32_u24 v4, 960, v4
    v_and_b32 v5, 1, v1
    v_bfe_u32 v6, v1, 4, 1
    v_lshl_add_u32 v5, v5, 1, v6
    v_bfe_u32 v6, v1, 1, 1
    v_lshl_add_u32 v5, v5, 1, v6
    v_mad_u32_u24 v4, v5, 56, v4
    v_lshl_add_u32 v4, v2, 3, v4
    v_mul_u32_u24 v13, 5120, v2
    v_add_u32 v13, v16, v13
    v_lshl_add_u32 v13, v9, 4, v13
    v_add_u32 v13, {VL}, v13
    v_mul_u32_u24 v14, 1032, v8
    v_lshl_add_u32 v14, v9, 7, v14
    v_add_u32 v14, {OL}, v14
    s_lshl_b32 s48, s48, 1
    v_add_u32 v15, s48, v14
    v_lshl_add_u32 v14, v2, 1, v14''')
    for r in range(8): e(f'v_mov_b64 {vr(XA+2*r,2)}, 0')
    stamp(A,3)
    e(f's_waitcnt vmcnt({1 if OPT.get("bl",0)==4 else 0})\ns_barrier\ns_cmp_eq_u32 s{sWV}, 7\ns_cbranch_scc1 K1A_VW')
    stamp(A,4)
    for dh in range(2):
        for ks in range(2):
            for jj in range(2):
                e(f'ds_read_b64_tr_b16 {vr(XA+8*dh+4*ks+2*jj,2)}, v4 offset:{15360*ks+3840*jj+448*dh}')
    e('s_waitcnt lgkmcnt(4)')
    e(MF(U0,XA,FF)); e(MF(U0,XA+4,FF+4,U0))
    e('s_waitcnt lgkmcnt(0)')
    e(MF(U1,XA+8,FF)); e(MF(U1,XA+12,FF+4,U1))
    for u in range(4):
        e(f'v_cvt_pk_bf16_f32 v{BO+4*u}, v{U0+u}, v{U0+4+u}\nv_cvt_pk_bf16_f32 v{BO+4*u+1}, v{U0+8+u}, v{U0+12+u}')
    for u in range(4):
        e(f'v_cvt_pk_bf16_f32 v{BO+4*u+2}, v{U1+u}, v{U1+4+u}\nv_cvt_pk_bf16_f32 v{BO+4*u+3}, v{U1+8+u}, v{U1+12+u}')
    for u in range(4): e(MF(VU+16*u,HH,BO+4*u))
    for r in range(8): e(f'v_cvt_pk_bf16_f32 v{XA+2*r}, v{VU+r}, v{VU+16+r}')
    for r in range(8): e(f'v_cvt_pk_bf16_f32 v{XA+2*r+1}, v{VU+32+r}, v{VU+48+r}')
    e('K1A_VW:')
    for r in range(8): e(f'ds_write_b64 v10, {vr(XA+2*r,2)} offset:{2560*r}')
    e('s_waitcnt lgkmcnt(0)\ns_barrier')
    for ks in range(4): e(f'ds_read_b128 {vr(XA+4*ks,4)}, v13 offset:{32*(ks&1)+2560*(ks>>1)}')
    def wpf_blk():
            srd(A,SW,14,448*896)
            e(f'''buffer_load_dword v18, v17, s[{SW}:{SW+3}], s49 offen
            s_cmp_ge_u32 s{sWV}, 6
            s_cbranch_scc0 K1A_E
            s_getpc_b64 s[44:45]
            K1_PC2:
            s_add_u32 s44, s44, k2_kernel-K1_PC2
            s_addc_u32 s45, s45, 0
            s_sub_u32 s46, s{sWV}, 6
            s_lshl_b32 s46, s46, 13
            v_add_u32 v6, s46, v17
            v_min_u32 v6, K2_END-k2_kernel, v6
            global_load_dword v18, v6, s[44:45]
            K1A_E:''')
    if OPT['wpf']==1: wpf_blk()
    GA=[CP,CP+4,A2,A2+4]; GB=[SPn,SPn+4,B2,B2+4]
    for ks in range(4):
        e(f's_waitcnt lgkmcnt({3-ks})')
        e(MF(U0,GA[ks],XA+4*ks,U0 if ks else None)); e(MF(U1,GB[ks],XA+4*ks,U1 if ks else None))
    stamp(A,5)
    srd(A,SWS,18,2<<20,AINT_OFF)
    for (U,ab) in ((U0,0),(U1,64)):
        for j in range(8): e(f'v_cvt_pk_bf16_f32 v{BO+(ab>>3)+j}, v{U+2*j}, v{U+2*j+1}')
        for a in range(4):
            r=BO+(ab>>3)+2*a
            e(f'''ds_write_b16 v14, v{r} offset:{256*a+ab}
            ds_write_b16_d16_hi v15, v{r} offset:{256*a+32+ab}
            ds_write_b16 v14, v{r+1} offset:{256*a+32+ab}
            ds_write_b16_d16_hi v15, v{r+1} offset:{256*a+64+ab}''')
    if OPT['wpf']==2: wpf_blk()
    e(f'''s_mul_i32 s45, s{sWV}, {4*1032}
    s_add_u32 s45, s45, {OL}
    v_add_u32 v4, s45, v3
    v_add_u32 v5, 2064, v4
    s_lshl_b32 s44, s{sWV}, 8
    s_add_u32 s44, s44, s43
    s_lshl_b32 s44, s44, 10
    v_lshlrev_b32 v6, 7, v1
    s_waitcnt lgkmcnt(0)
    s_barrier
    s_mov_b32 exec_hi, 0x00ffffff''')
    for i in range(4): e(f'ds_read2_b64 {vr(XA+4*i,4)}, v{4+(i>>1)} offset0:{129*(i&1)} offset1:{129*(i&1)+1}')
    st=OPT['st_aint']
    for i in range(4):
        e(f's_waitcnt lgkmcnt({3-i})')
        e(f'buffer_store_dwordx4 {vr(XA+4*i,4)}, v3, s[{SWS}:{SWS+3}], s44 offen {st}')
        e(f's_add_u32 s44, s44, 65536')
    dump1(A,3)
    e('K1_END:\ns_endpgm')

def k2(A):
    e=A.e
    OPT['k2']=1
    SD,SPH,SO=20,24,28
    sWV=40
    e('k2_kernel:')
    e('s_cmp_ge_u32 s2, 256\ns_cbranch_scc1 K2_END')
    stamp(A,0)
    e('s_load_dwordx4 s[8:11], s[0:1], 64\ns_load_dwordx2 s[12:13], s[0:1], 88')
    e('v_and_b32 v1, 63, v0\nv_lshrrev_b32 v2, 6, v0')
    e('s_and_b32 s41, s2, 7\ns_lshr_b32 s42, s2, 3')
    e(f'v_readfirstlane_b32 s{sWV}, v2')
    e('''v_bfe_u32 v3, v1, 4, 1
    v_and_b32 v4, 7, v1
    v_lshlrev_b32 v5, 2, v3
    v_xor_b32 v4, v4, v5
    v_lshlrev_b32 v12, 4, v4
    v_lshrrev_b32 v13, 3, v1
    v_lshlrev_b32 v15, 4, v1''')
    LANE='''v_and_b32 v8, 31, v1
    v_lshrrev_b32 v9, 5, v1
    v_bfe_u32 v10, v1, 2, 2
    v_bfe_u32 v3, v1, 4, 1
    v_and_b32 v4, 1, v1
    v_lshl_add_u32 v4, v3, 1, v4
    v_bfe_u32 v5, v1, 1, 1
    v_lshl_add_u32 v4, v4, 1, v5
    v_lshlrev_b32 v11, 3, v4'''
    e('s_cmp_ge_u32 s42, 28\ns_cbranch_scc1 K2_A')
    e(f'''s_lshr_b32 s44, s42, 2
    s_and_b32 s45, s{sWV}, 1
    s_bfe_u32 s46, s{sWV}, 0x10001
    s_cmp_ge_u32 s{sWV}, 4
    s_cbranch_scc0 K2_C''')
    e(f"""v_mul_u32_u24 v3, 896, v13
    v_add_u32 v14, v3, v12
    v_lshrrev_b32 v4, 5, v1
    v_mul_u32_u24 v4, {28*896}, v4
    v_add_u32 v16, v14, v4
    s_and_b32 s50, s{sWV}, 3
    s_lshl_b32 s50, s50, 10
    s_mul_i32 s48, s45, {224*896}
    s_lshl_b32 s49, s44, 7
    s_add_u32 s48, s48, s49
    s_mul_i32 s49, s45, 28672
    s_add_u32 s49, s49, 57344
    s_mov_b32 m0, s50
    s_waitcnt lgkmcnt(0)""")
    if OPT.get('npf',0):
        srd(A,SO,12,2<<20,AINT_OFF)
        e(f'''s_cmp_eq_u32 s{sWV}, 7
        s_cbranch_scc0 K2_NP
        s_lshl_b32 s51, s42, 6
        v_add_u32 v3, s51, v1
        v_mul_u32_u24 v4, 9363, v3
        v_lshrrev_b32 v4, 16, v4
        v_lshlrev_b32 v3, 7, v3
        v_lshl_add_u32 v3, v4, 7, v3
        s_lshl_b32 s51, s41, 18
        buffer_load_dword v5, v3, s[{SO}:{SO+3}], s51 offen
        K2_NP:''')
    srd(A,SD,12,16*3584,KV_OFF)
    if OPT.get('kvrot'):
        e(f's_mul_i32 s51, s42, {OPT["kvrot"]*4096}\ns_add_u32 s50, s50, s51\nK2_RW:\ns_cmp_ge_u32 s50, 57344\ns_cbranch_scc0 K2_RX\ns_sub_u32 s50, s50, 57344\ns_branch K2_RW\nK2_RX:')
    for n in range(14 if not OPT.get('nokv') else 0):
        e(f'buffer_load_dwordx4 v15, s[{SD}:{SD+3}], s50 offen lds\ns_add_u32 m0, m0, 4096\ns_add_u32 s50, s50, 4096')
        if OPT.get('kvrot'): e('s_cmp_ge_u32 s50, 57344\ns_cselect_b32 s51, 57344, 0\ns_sub_u32 s50, s50, s51')
    srd(A,SPH,8,448*896)
    e('s_cmp_eq_u32 s46, 0\ns_cbranch_scc0 K2_L1')
    HYB=OPT.get('hyb',0); W0=OPT.get('w0',0); W1=OPT.get('w1',0)
    for par in range(2):
        js=(0,2,4,6) if par==0 else (1,3,5); nj=len(js)
        for st_ in range(5):
            if st_==W0: e(f's_waitcnt vmcnt({(0 if OPT.get("nob1") else 7)+W0*nj})\ns_barrier')
            if st_==W1 and not OPT.get('nob1'): e(f's_waitcnt vmcnt({W1*nj})\ns_barrier')
            if st_==4: break
            for j in (js if not OPT.get('nowo') else ()):
                row=112*(st_>>1)+28*(st_&1)+8*j+(28 if j>3 else 0)
                e(f's_add_u32 m0, s49, {7168*st_+1024*j}\ns_add_u32 s50, s48, {row*896}\nbuffer_load_dwordx4 v{16 if j==3 else 14}, s[{SPH}:{SPH+3}], s50 offen lds')
        OB=OPT.get('ob',4)
        for c in ((2,1,0) if HYB else {4:(3,2,1,0),2:(2,0),1:(0,)}[OB]): e(f's_waitcnt vmcnt({nj*c})\ns_barrier')
        e('s_endpgm')
        if par==0: e('K2_L1:')
    e('K2_C:')
    if OPT.get('prio'): e('s_setprio 3')
    e(f'''s_and_b32 s43, s42, 3
    s_lshl_b32 s41, s41, 2
    s_add_u32 s43, s43, s41
    s_lshl_b32 s51, s43, 1
    s_add_u32 s51, s51, s45
    s_lshl_b32 s52, s51, 4
    s_lshl_b32 s53, s46, 3
    s_add_u32 s52, s52, s53
    s_mul_i32 s52, s52, 3584
    s_add_u32 s57, s52, 4096
    s_waitcnt lgkmcnt(0)''')
    stamp(A,1)
    srd(A,SPH,12,64*16*3584,PHIQ_OFF)
    PHI=144; vF16=16
    e('v_mov_b32 v16, v15')
    def loads(s):
        L=[]
        for n in range(7):
            x=f'buffer_load_dwordx4 {vr(PHI+28*s+4*n,4)}, v{vF16}, s[{SPH}:{SPH+3}], s{52 if n<4 else 57} offen offset:{1024*(n&3)}'
            if n==6: x+='\ns_add_u32 s52, s52, 7168\ns_add_u32 s57, s57, 7168'
            L.append(x)
        return L
    NUP=OPT.get('nup',1)
    for s_ in range(NUP):
        for x in loads(s_): e(x)
    srd(A,SO,10,2048*1792)
    e(LANE)
    vK,vN0,vN1,vS0,vS1=17,18,19,20,21
    e(f"""s_mul_i32 s53, s46, 7168
    v_lshlrev_b32 v3, 2, v1
    v_add_u32 v{vK}, s53, v3
    s_mul_i32 s53, s46, 28672
    s_add_u32 s53, s53, 57344
    v_lshl_add_u32 v3, v9, 2, v10
    v_lshlrev_b32 v3, 7, v3
    v_lshrrev_b32 v4, 1, v10
    v_lshl_add_u32 v3, v4, 6, v3
    v_add3_u32 v{vN0}, v3, v11, s53
    s_lshl_b32 s55, s46, 6
    v_xor_b32 v{vN1}, s55, v{vN0}
    v_xor_b32 v{vN0}, 64, v{vN1}
    v_lshlrev_b32 v3, 1, v9
    v_xor_b32 v3, v3, v10
    v_lshrrev_b32 v4, 1, v3
    v_lshlrev_b32 v3, 7, v3
    v_lshl_add_u32 v3, v4, 6, v3
    v_add3_u32 v{vS0}, v3, v11, s53
    v_xor_b32 v{vS1}, s55, v{vS0}
    v_xor_b32 v{vS0}, 64, v{vS1}
    s_lshl_b32 s53, s{sWV}, 12
    s_add_u32 s53, s53, 114688
    v_add_u32 v6, s53, v{vF16}
    s_xor_b32 s53, s53, 8192
    v_add_u32 v7, s53, v{vF16}
    s_lshl_b32 s51, s51, 5""")
    if OPT.get('cst',1):
        e(f"""s_mul_i32 s53, s45, 4608
        s_lshl_b32 s55, s46, 6
        s_add_u32 s55, s55, s53
        v_mul_u32_u24 v2, 144, v8
        v_lshl_add_u32 v2, v9, 4, v2
        v_add_u32 v2, s55, v2
        s_mul_i32 s55, s46, {16*144}
        s_add_u32 s55, s55, s53
        v_mul_u32_u24 v3, 144, v13
        v_and_b32 v4, 7, v1
        v_lshl_add_u32 v3, v4, 4, v3
        v_add_u32 v3, s55, v3
        v_mul_u32_u24 v5, 1792, v13
        v_lshl_add_u32 v5, v4, 4, v5
        s_lshl_b32 s55, s46, 4
        s_add_u32 s51, s51, s55
        s_mul_i32 s54, s51, 1792
        s_lshl_b32 s55, s44, 7
        s_add_u32 s54, s54, s55
        s_add_u32 s54, s54, 896""")
    else:
        e(f"""v_add_u32 v5, s51, v8
        v_mul_u32_u24 v5, 1792, v5
        v_lshl_add_u32 v5, v9, 4, v5
        s_lshl_b32 s54, s44, 7
        s_lshl_b32 s55, s46, 6
        s_add_u32 s54, s54, s55
        s_add_u32 s54, s54, 896""")
    KF=[24,40]; NUM=[72,88]; OUT=[112,128]
    OPH=[104,8,PHI,PHI+8,PHI+16,PHI+28,PHI+36,PHI+44]
    WFB=[56,PHI+56,24,40]
    e(f'v_mov_b64 {vr(KF[0]+14,2)}, 0\nv_mov_b64 {vr(KF[1]+12,2)}, 0')
    e(f's_mov_b32 s56, {f2u(1e-6)}')
    def rdkv(hl):
        o=56*(hl>>1)+14*(hl&1)
        return [f'ds_read2st64_b32 {vr(KF[hl&1]+2*p+(2 if (p==6 and hl&1) else 0),2)}, v{vK} offset0:{o+2*p} offset1:{o+2*p+1}' for p in range(7)]
    def rdwo(hl):
        L=[]; WFR=WFB[hl&3] if (hl>=4 or not HYB) else 56
        for sp in range(2):
            for mt in range(2):
                for q in (2*sp,2*sp+1):
                    if q<3: L.append(f'ds_read_b64_tr_b16 {vr(WFR+8*mt+2*q,2)}, v{(vN0,vN1)[mt]} offset:{3584*hl+1024*q}')
                    else: L.append(f'ds_read_b64_tr_b16 {vr(WFR+8*mt+6,2)}, v{(vS0,vS1)[mt]} offset:{3584*hl+3072}')
        return L
    def num(hl):
        base=PHI+28*(hl>>1)
        ph=[base+12*(hl&1)+4*s for s in range(3)]+[base+24]
        return [MF(NUM[hl&1],KF[hl&1]+4*s,ph[s],NUM[hl&1] if s else None) for s in range(4)]
    def fin(hl):
        N=NUM[hl&1]; OP=OPH[hl]
        L=[f'v_add_f32 v22, s56, v{N+14}','v_rcp_f32 v22, v22',f'v_mov_b32 v{OP+7}, 0']
        for j in range(7): L+=[f'v_mul_f32 v{N+2*j}, v22, v{N+2*j}',f'v_mul_f32 v{N+2*j+1}, v22, v{N+2*j+1}']
        L+=[f'v_cvt_pk_bf16_f32 v{OP+j}, v{N+2*j}, v{N+2*j+1}' for j in range(7)]
        return L
    def outm(hl):
        OP=OPH[hl]; WFR=WFB[hl&3] if (hl>=4 or not HYB) else 56
        return [MF(OUT[mt],WFR+8*mt+4*sp,OP+4*sp,None if (hl==0 and sp==0) else OUT[mt]) for sp in range(2) for mt in range(2)]
    if OPT.get('ldonly'):
        stamp(A,3); e('s_waitcnt vmcnt(0)'); stamp(A,4); e('s_barrier\ns_barrier'); stamp(A,5); e('s_barrier\ns_barrier\ns_barrier\ns_barrier'); dump2(A,1); e('s_endpgm')
    e('s_barrier')
    stamp(A,3)
    for x in rdkv(0)+rdkv(1): e(x)
    later=[(s_,x) for s_ in range(NUP,4) for x in loads(s_)]
    nld=[int(c) for c in str(OPT.get('nld','77700000' if NUP==1 else '77000000')).zfill(8)]
    vm=[s_ for s_ in range(NUP) for _ in range(7)]
    lg=['k0']*7+['k1']*7
    def lwait(tag):
        n=0
        for t in reversed(lg):
            if t==tag: break
            n+=1
        del lg[:len(lg)-n]
        return f'lgkmcnt({n})'
    for h in range(8):
        Ld=[later.pop(0) for _ in range(nld[h])]
        w='s_waitcnt '+lwait(f'k{h}')
        if h%2==0: w+=' vmcnt(%d)'%sum(1 for t in vm if t>h//2)
        e(w)
        N=num(h); Fv=fin(h-1) if h else []
        if h<6: K=rdkv(h+2); K=[K[0:2],K[2:4],K[4:6],K[6:]]; tag=f'k{h+2}'
        else:
            K=rdwo(h-6) if h==6 else rdwo(1); K=[K[2*i:2*i+2] for i in range(4)]; tag=f'w{h-6}'
        nF=len(Fv)
        for i in range(4):
            e(N[i])
            if i==0 and h in (2,6): e('s_barrier')
            for x in K[i]: e(x); lg.append(tag)
            for x in Fv[i*nF//4:(i+1)*nF//4]: e(x)
            for _ in range(2):
                if Ld: t,x=Ld.pop(0); e(x); vm.append(t)
    assert not later
    stamp(A,4)
    if OPT.get('oc'): e('s_memtime s[82:83]')
    F7=fin(7)
    for h in range(6):
        e('s_waitcnt '+lwait(f'w{h}'))
        O=outm(h); W=rdwo(h+2)
        for i in range(4):
            e(O[i])
            if i==0 and h%2==0: e('s_barrier')
            for x in W[2*i:2*i+2]: e(x); lg.append(f'w{h+2}')
            k_=(4*h+i)*2
            for x in F7[k_:k_+2]: e(x)
    O6=outm(6); O7=outm(7)
    e('s_waitcnt '+lwait('w6')); e(O6[0]); e(O6[2]); e(O6[1])
    e('s_waitcnt '+lwait('w7')); e(O7[0]); e(O7[2]); e(O6[3]); e(O7[1]); e(O7[3])
    stamp(A,5)
    if OPT.get('oc'): e('s_memtime s[84:85]')
    for q in range(4): e(f'ds_write_b128 v6, {vr(OUT[0]+4*q,4)} offset:{1024*q}')
    e('s_waitcnt lgkmcnt(0)\ns_barrier')
    OUT=[OUT[1]]
    for q in range(4): e(f'ds_read_b128 {vr(24+4*q,4)}, v7 offset:{1024*q}')
    st=OPT['st_out']
    for i in range(2):
        e(f's_waitcnt lgkmcnt({2-i if OPT.get("cst",1) else 2-2*i})')
        for j in range(0,8,2): e(f'v_pk_add_f32 {vr(OUT[0]+8*i+j,2)}, {vr(OUT[0]+8*i+j,2)}, {vr(24+8*i+j,2)}')
        for j in range(4): e(f'v_cvt_pk_bf16_f32 v{56+4*i+j}, v{OUT[0]+8*i+2*j}, v{OUT[0]+8*i+2*j+1}')
        if OPT.get('cst',1): e(f'ds_write_b128 v2, {vr(56+4*i,4)} offset:{32*i}')
        else: e(f'buffer_store_dwordx4 {vr(56+4*i,4)}, v5, s[{SO}:{SO+3}], s54 offen offset:{32*i} {st}')
    if OPT.get('cst',1):
        e(f'''s_waitcnt lgkmcnt(0)
        s_barrier
        ds_read_b128 v[24:27], v3
        ds_read_b128 v[28:31], v3 offset:{8*144}
        s_add_u32 s55, s54, {8*1792}
        s_waitcnt lgkmcnt(1)
        buffer_store_dwordx4 v[24:27], v5, s[{SO}:{SO+3}], s54 offen {st}
        s_waitcnt lgkmcnt(0)
        buffer_store_dwordx4 v[28:31], v5, s[{SO}:{SO+3}], s55 offen {st}''')
    dump2(A,1)
    e('s_endpgm')
    e('K2_A:')
    SP_=904; SA_=122880
    e(f'''s_lshl_b32 s43, s41, 2
    s_add_u32 s43, s43, s42
    s_sub_u32 s43, s43, 28
    s_and_b32 s44, s43, 1
    s_lshr_b32 s43, s43, 1
    s_and_b32 s45, s{sWV}, 1
    s_lshr_b32 s46, s{sWV}, 1
    v_lshl_add_u32 v14, v13, 10, v12
    s_lshl_b32 s47, s43, 17
    s_lshl_b32 s48, s{sWV}, 14
    s_add_u32 s47, s47, s48
    s_add_u32 s49, s47, 8192
    s_lshl_b32 s48, s{sWV}, 11
    s_mov_b32 m0, s48''')
    Ld=[]
    for j in range(7):
        Ld.append(f'buffer_load_dwordx4 v14, s[{SD}:{SD+3}], s47 offen lds\ns_add_u32 m0, m0, 1024\ns_add_u32 s47, s47, 128')
        Ld.append(f'buffer_load_dwordx4 v14, s[{SD}:{SD+3}], s49 offen lds\ns_add_u32 m0, m0, {16384-1024}\ns_add_u32 s49, s49, 128')
    G=f"""s_lshl_b32 s56, s44, 10
    s_add_u32 s57, s43, s56
    s_lshl_b32 s59, s44, 4
    s_lshl_b32 s54, s44, 13
    s_cmp_eq_u32 s43, 0
    s_cselect_b32 s57, s59, s57
    s_cselect_b32 s54, s54, 0
    s_cselect_b32 s55, s54, 8192
    s_sub_u32 s58, 2048, s57
    s_add_u32 s59, s57, 1024
    s_cmp_eq_u32 s43, 0
    s_cselect_b32 s58, s59, s58
    s_cselect_b32 s53, {32*1792}, {(-32*1792)&0xffffffff}""".split('\n')
    npre=len(G)
    G+=LANE.split('\n')
    G+=f"""v_lshlrev_b32 v3, 5, v8
    v_add_u32 v3, s57, v3
    v_cvt_f32_u32 v4, v3
    v_mul_f32 v4, {f2u(1/2048)}, v4
    v_cvt_f32_u32 v5, v9
    v_mul_f32 v5, {f2u(8.0)}, v5
    v_mul_f32 v5, v4, v5""".split('\n')
    C,S,M2,M3=24,40,56,72; TT=88; ML=114688
    G+=f"""s_lshr_b32 s60, s{sWV}, 1
    v_cvt_f32_u32 v6, s60
    v_mul_f32 v6, {f2u(16.0)}, v6
    v_fma_f32 v5, v4, v6, v5
    s_and_b32 s60, s{sWV}, 1
    v_cvt_f32_u32 v6, s60
    v_fmamk_f32 v5, v6, {f2u(-0.25)}, v5""".split('\n')
    for j in range(8): G.append(f'v_fmamk_f32 v{TT+j}, v4, {f2u(1.*j)}, v5')
    for j in range(8): G.append(f'v_cos_f32 v{TT+j}, v{TT+j}')
    for j in range(4): G.append(f'v_cvt_pk_bf16_f32 v{TT+8+j}, v{TT+2*j}, v{TT+2*j+1}')
    G+=[f's_lshl_b32 s60, s{sWV}, 10',f'v_add_u32 v7, {ML}, v15','v_add_u32 v6, s60, v7',f'ds_write_b128 v6, {vr(TT+8,4)}']
    for x in G: e(x)
    e('s_waitcnt lgkmcnt(0)')
    stamp(A,1)
    srd(A,SD,12,2<<20,AINT_OFF)
    for x in Ld: e(x)
    srd(A,SO,10,2048*1792)
    aR,aS,bS,bR=16,17,18,19
    e(f"""v_lshl_add_u32 v3, v9, 3, v10
    v_lshlrev_b32 v3, 7, v3
    v_lshrrev_b32 v4, 1, v10
    v_lshl_add_u32 v3, v4, 6, v3
    s_lshl_b32 s60, s{sWV}, 14
    v_add3_u32 v3, v3, v11, s60
    v_add_u32 v{aR}, s54, v3
    v_add_u32 v{aS}, s55, v3
    v_xor_b32 v{bR}, 64, v{aR}
    v_xor_b32 v{bS}, 64, v{aS}
    v_mul_u32_u24 v22, {SP_}, v8
    s_lshl_b32 s60, s{sWV}, 6
    v_lshl_add_u32 v3, v9, 4, s60
    v_add_u32 v20, v22, v3
    v_sub_u32 v21, v22, v3
    v_add_u32 v21, 850, v21
    v_add_u32 v12, {SA_}, v20
    v_add_u32 v13, {SA_}, v21
    s_mul_i32 s50, s57, 1792
    s_mul_i32 s58, s58, 1792
    s_lshl_b32 s56, s{sWV}, 2
    s_mul_i32 s59, s56, s53
    s_add_u32 s58, s58, s59
    s_mul_i32 s59, s56, {32*1792}
    s_add_u32 s50, s50, s59
    s_mul_i32 s56, s56, {SP_}
    v_add_u32 v4, s56, v15
    v_add_u32 v5, {2*SP_}, v4
    v_add_u32 v2, {SA_}, v4
    v_add_u32 v0, {SA_}, v5""")
    FR=88; AC=[152,168,184,200]; AX,AY=216,232; PS=22
    e('s_waitcnt lgkmcnt(0)\ns_barrier')
    for ks in range(4): e(f'ds_read_b128 {vr(C+4*ks,4)}, v7 offset:{2048*ks}\nds_read_b128 {vr(S+4*ks,4)}, v7 offset:{2048*ks+1024}')
    e('s_waitcnt lgkmcnt(0)\ns_cmp_eq_u32 s43, 0\ns_cbranch_scc1 K2A_G1')
    for j in range(0,16,2): e(f'v_mov_b64 {vr(M2+j,2)}, {vr(S+j,2)}\nv_mov_b64 {vr(M3+j,2)}, {vr(C+j,2)}')
    e('s_branch K2A_G2\nK2A_G1:')
    for j in range(16): e(f'v_xor_b32 v{M2+j}, 0x80000000, v{C+j}\nv_xor_b32 v{M3+j}, 0x80000000, v{S+j}')
    e('K2A_G2:')
    stamp(A,3)
    A2M=OPT.get('a2m',1)
    if A2M==0:
        e('s_waitcnt vmcnt(6)\ns_barrier')
        stamp(A,4)
        e(f's_cmp_lt_u32 s{sWV}, 4\ns_cbranch_scc1 K2A_GO\ns_waitcnt vmcnt(0)\ns_barrier\ns_cmp_eq_u32 s{sWV}, 7\ns_cbranch_scc1 K2A_OUT\nK2A_GO:')
    else:
        e('s_waitcnt vmcnt(0)\ns_barrier')
        stamp(A,4)
        e(f's_cmp_eq_u32 s{sWV}, 7\ns_cbranch_scc1 K2A_B2')
    srcs=[(aR,C),(aS,M2),(bS,M3),(bR,S)]
    def rdA(n):
        ks,q=n>>2,n&3
        for jj in range(2): e(f'ds_read_b64_tr_b16 {vr(FR+4*n+2*jj,2)}, v{srcs[q][0]} offset:{2048*ks+512*jj}')
    for n in range(6): rdA(n)
    for n in range(16):
        if n+6<16: rdA(n+6); e('s_waitcnt lgkmcnt(12)')
        else: e(f's_waitcnt lgkmcnt({2*(15-n)})')
        ks,q=n>>2,n&3
        e(MF(AC[q],FR+4*n,srcs[q][1]+4*ks,AC[q] if ks else None))
    e(f's_cmp_eq_u32 s{sWV}, 0\ns_cbranch_scc0 K2A_NS')
    for ks in range(4):
        e(MF(AX,FR+4*(4*ks+3),C+4*ks,AX if ks else None)); e(MF(AY,FR+4*(4*ks+2),M2+4*ks,AY if ks else None))
    e('s_mov_b32 exec_hi, 0')
    e(f'v_mov_b32 v{AC[2]}, 0\nv_mov_b32 v{AC[3]}, 0\nv_sub_f32 v3, v{AX}, v{AY}\nv_cvt_pk_bf16_f32 v{PS}, v{AX}, v{AY}\nv_cvt_pk_bf16_f32 v3, v3, v3')
    e(f's_cmp_eq_u32 s43, 0\ns_cselect_b64 vcc, -1, 0\nv_cndmask_b32 v{PS}, v3, v{PS}, vcc')
    e('s_mov_b32 exec_hi, -1')
    e('K2A_NS:\ns_nop 7\ns_nop 1\ns_cmp_eq_u32 s43, 0\ns_cbranch_scc1 K2A_C1')
    NEG=' neg_lo:[0,1] neg_hi:[0,1]'
    AF,AM,BF,BM=88,104,120,136
    for j in range(0,16,2):
        e(f'v_pk_add_f32 {vr(AC[0]+j,2)}, {vr(AC[0]+j,2)}, {vr(AC[1]+j,2)}{NEG}')
        e(f'v_pk_add_f32 {vr(AC[2]+j,2)}, {vr(AC[2]+j,2)}, {vr(AC[3]+j,2)}')
    PK=152
    def packs(tiles):
        for tl,(F_,M_) in enumerate(tiles):
            p=PK+16*tl
            for j in range(8): e(f'v_cvt_pk_bf16_f32 v{p+j}, v{F_+2*j}, v{F_+2*j+1}')
            for i in range(2):
                b_=M_+8*i
                e(f'v_cvt_pk_bf16_f32 v{p+8+4*i}, v{b_+7}, v{b_}\nv_cvt_pk_bf16_f32 v{p+9+4*i}, v{b_+6}, v{b_+5}\nv_cvt_pk_bf16_f32 v{p+10+4*i}, v{b_+4}, v{b_+3}\nv_cvt_pk_bf16_f32 v{p+11+4*i}, v{b_+2}, v{b_+1}')
    for j in range(0,16,2):
        e(f'v_pk_add_f32 {vr(AF+j,2)}, {vr(AC[0]+j,2)}, {vr(AC[2]+j,2)}{NEG}')
        e(f'v_pk_add_f32 {vr(AM+j,2)}, {vr(AC[0]+j,2)}, {vr(AC[2]+j,2)}')
    packs(((AF,AM),(AM,AF)))
    e('s_branch K2A_C2\nK2A_C1:')
    for j in range(0,16,2):
        e(f'v_pk_add_f32 {vr(AF+j,2)}, {vr(AC[0]+j,2)}, {vr(AC[3]+j,2)}{NEG}')
        e(f'v_pk_add_f32 {vr(AM+j,2)}, {vr(AC[0]+j,2)}, {vr(AC[3]+j,2)}')
        e(f'v_pk_add_f32 {vr(BF+j,2)}, {vr(AC[1]+j,2)}, {vr(AC[2]+j,2)}{NEG}')
        e(f'v_pk_add_f32 {vr(BM+j,2)}, {vr(AC[1]+j,2)}, {vr(AC[2]+j,2)}')
    packs(((AF,AM),(BF,BM)))
    e('K2A_C2:')
    def writes(tl,vf,vm_):
        p=PK+16*tl
        for i in range(2):
            e(f'ds_write_b64 v{vf}, {vr(p+4*i,2)} offset:{32*i}\nds_write_b64 v{vf}, {vr(p+4*i+2,2)} offset:{32*i+8}')
            o=32-32*i; r=p+8+4*i
            e(f'ds_write_b16 v{vm_}, v{r} offset:{o}\nds_write_b32 v{vm_}, v{r+1} offset:{o+2}\nds_write_b64 v{vm_}, {vr(r+2,2)} offset:{o+6}\nds_write_b16_d16_hi v{vm_}, v{r} offset:{o+14}')
    writes(0,12,13)
    e(f"""s_cmp_eq_u32 s{sWV}, 0
    s_cbranch_scc0 K2A_B2
    s_mov_b32 exec_hi, 0
    ds_write_b16 v12, v{PS} offset:448
    s_mov_b32 exec_hi, -1
    K2A_B2:
    s_waitcnt lgkmcnt(0)
    s_barrier""")
    stamp(A,5)
    for i in range(4): e(f'ds_read2_b64 {vr(24+4*i,4)}, v{(2,0)[i>>1]} offset0:{113*(i&1)} offset1:{113*(i&1)+1}')
    e(f's_cmp_eq_u32 s{sWV}, 7\ns_cbranch_scc1 K2A_W7')
    writes(1,20,21)
    e(f"""s_cmp_eq_u32 s{sWV}, 0
    s_cbranch_scc0 K2A_W7
    s_mov_b32 exec_hi, 0
    ds_write_b16_d16_hi v20, v{PS} offset:448
    K2A_W7:
    s_mov_b32 exec_hi, 0x00ffffff
    s_waitcnt lgkmcnt(0)""")
    for i in range(4):
        e(f'buffer_store_dwordx4 {vr(24+4*i,4)}, v15, s[{SO}:{SO+3}], s50 offen {st}\ns_add_u32 s50, s50, {32*1792}')
    e('s_barrier')
    for i in range(4): e(f'ds_read2_b64 {vr(40+4*i,4)}, v{4+(i>>1)} offset0:{113*(i&1)} offset1:{113*(i&1)+1}')
    for i in range(4):
        e(f's_waitcnt lgkmcnt({3-i})')
        e(f'buffer_store_dwordx4 {vr(40+4*i,4)}, v15, s[{SO}:{SO+3}], s58 offen {st}\ns_add_u32 s58, s58, s53')
    dump2(A,3)
    e('K2_END:\ns_endpgm')

def k3(A):
    e=A.e
    kk,si,role,stat,scale=[int(x) for x in OPT['x'].split(',')]
    e('k3_kernel:')
    e('s_cmp_ge_u32 s2, 1\ns_cbranch_scc1 K3_END')
    e('s_load_dwordx2 s[4:5], s[0:1], 88\nv_lshlrev_b32 v1, 6, v0\nv_mov_b32 v2, 0\nv_mov_b32 v3, -1\nv_mov_b32 v4, 0')
    e('ds_write_b32 v2, v3\nds_write_b32 v2, v4 offset:4\nds_write_b32 v2, v4 offset:8\ns_waitcnt lgkmcnt(0)\ns_barrier')
    e('s_add_u32 s8, s4, 0x800000\ns_addc_u32 s9, s5, 0\ns_mov_b32 s10, 0x20000\ns_mov_b32 s11, 0x20000')
    e(f'buffer_load_dword v5, v1, s[8:11], 0 offen\ns_mov_b32 s12, {0x10000*kk}')
    e(f'buffer_load_dword v6, v1, s[8:11], s12 offen offset:{4*si}\nbuffer_load_dword v7, v1, s[8:11], s12 offen offset:40\ns_waitcnt vmcnt(0)')
    e('ds_min_u32 v2, v5\ns_waitcnt lgkmcnt(0)\ns_barrier\nds_read_b32 v8, v2\ns_waitcnt lgkmcnt(0)\nv_sub_u32 v6, v6, v8')
    e(f'v_cmp_eq_u32 vcc, {role}, v7\nv_cndmask_b32 v6, 0, v6, vcc\nv_cndmask_b32 v9, 0, 1, vcc')
    e(('ds_max_u32 v2, v6 offset:4' if stat==0 else 'ds_add_u32 v2, v6 offset:4')+'\nds_add_u32 v2, v9 offset:8\ns_waitcnt lgkmcnt(0)\ns_barrier')
    e('ds_read_b32 v6, v2 offset:4\nds_read_b32 v9, v2 offset:8\ns_waitcnt lgkmcnt(0)')
    e(f'v_cvt_f32_u32 v6, v6\nv_mul_f32 v6, {f2u(float(scale))}, v6')
    if stat==1: e('v_cvt_f32_u32 v9, v9\nv_rcp_f32 v9, v9\nv_mul_f32 v6, v6, v9')
    e('v_cvt_u32_f32 v6, v6\nv_min_u32 v6, 100000, v6\nv_readfirstlane_b32 s14, v6')
    e('s_memrealtime s[16:17]\ns_waitcnt lgkmcnt(0)\nK3_L:\ns_memrealtime s[18:19]\ns_waitcnt lgkmcnt(0)\ns_sub_u32 s20, s18, s16\ns_cmp_lt_u32 s20, s14\ns_cbranch_scc1 K3_L')
    e('K3_END:\ns_endpgm')

def desc(name,vgpr,sgpr,acc):
    return f'''.amdhsa_kernel {name}
  .amdhsa_next_free_vgpr {vgpr}
  .amdhsa_next_free_sgpr {sgpr}
  .amdhsa_accum_offset {acc}
  .amdhsa_group_segment_fixed_size 0
  .amdhsa_kernarg_size 96
  .amdhsa_user_sgpr_count 2
  .amdhsa_user_sgpr_kernarg_segment_ptr 1
  .amdhsa_system_sgpr_workgroup_id_x 1
.end_amdhsa_kernel
'''
def main():
    A1=Asm(); k1(A1); A2=Asm(); k2(A2)
    assert A1.verify_branches()==0 and A2.verify_branches()==0
    v1=A1.maxreg('v')+1; v2=A2.maxreg('v')+1; a2=A2.maxreg('a')+1
    r4=lambda x:(x+3)//4*4
    hdr=open('concat_heads__spectral_fnet__linear_kernel_hedgehog__prompt.s.ref').read().split('; Override')[0]
    out=hdr+'; @launch kernel=k1_kernel grid=(256,1,1) block=(512,1,1) lds=163840\n; @launch kernel=k2_kernel grid=(256,1,1) block=(512,1,1) lds=163840\n'
    ks=[('k1_kernel',A1),('k2_kernel',A2)]
    if 'x' in OPT:
        A3=Asm(); k3(A3); ks.append(('k3_kernel',A3)); out+='; @launch kernel=k3_kernel grid=(1,1,1) block=(256,1,1) lds=64\n'
    out+='.amdgcn_target "amdgcn-amd-amdhsa--gfx950"\n.text\n'
    for n,A in ks:
        out+=f'.globl {n}\n.p2align 8\n.type {n},@function\n'+A.text()
    out+='.section .rodata,"a"\n.p2align 6\n'+desc('k1_kernel',v1,102,r4(v1))+'.p2align 6\n'+desc('k2_kernel',v2,102,r4(v2))
    if 'x' in OPT: out+='.p2align 6\n'+desc('k3_kernel',16,32,16)
    open(sys.argv[1],'w').write(out)
    print('k1 vgpr',v1,'k2 vgpr',v2,'agpr',a2, 'k1 sgpr',A1.maxreg('s')+1,'k2 sgpr',A2.maxreg('s')+1)
main()
```

```python
import sys, math
from asmlib import *

PHIQ_OFF=0; KV_OFF=0x400000; AINT_OFF=0x500000
LOG2E=1.4426950408889634
OPT=dict(st_phi='sc1', st_aint='sc1', st_out='sc1', prof=0, rot=1, ldx='', lda='', D=2, apf=1, wpf=1, cpf=1, bpf=1, ob=4, eb=1, xl=2, bl=4, i1=1)
for a in sys.argv[2:]:
    k,v=a.split('='); OPT[k]=int(v) if v.lstrip('-').isdigit() else v

def srd(A,d,base,nbytes,off=0):
    if off: A.e(f's_add_u32 s{d}, s{base}, {hex(off)}\ns_addc_u32 s{d+1}, s{base+1}, 0')
    else: A.e(f's_mov_b32 s{d}, s{base}\ns_mov_b32 s{d+1}, s{base+1}')
    A.e(f's_mov_b32 s{d+2}, {hex(nbytes)}\ns_mov_b32 s{d+3}, 0x20000')

NST=[0]
def stamp(A,i):
    if OPT.get('lp') and 1<=i<=6 and not OPT.get('k2'): return
    if OPT.get('kl') and 1<=i<=6 and OPT.get('k2'): return
    if OPT['prof']:
        A.e(f's_memrealtime s[{80+2*i}:{81+2*i}]')
        if i==0: A.e('s_memtime s[98:99]')
def dump(A,role,ws,ko):
    if not OPT['prof']: return
    NST[0]+=1; L=f'PD{NST[0]}'
    A.e(f's_memrealtime s[94:95]\ns_waitcnt vmcnt(0) lgkmcnt(0)\ns_memrealtime s[96:97]\ns_memtime s[78:79]\ns_waitcnt lgkmcnt(0)')
    A.e(f's_cmp_eq_u32 s40, {OPT.get("pw",0)}\ns_cbranch_scc0 {L}')
    A.e(f's_add_u32 s72, s{ws}, {ko}\ns_addc_u32 s73, s{ws+1}, 0\ns_mov_b32 s74, 0x10000\ns_mov_b32 s75, 0x20000\ns_mov_b64 exec, 1\ns_lshl_b32 s76, s2, 6\ns_sub_u32 s78, s78, s98')
    for i in range(9): A.e(f'v_mov_b32 v0, s{80+2*i}\nbuffer_store_dword v0, off, s[72:75], s76 offset:{4*i}')
    A.e(f'v_mov_b32 v0, s78\nbuffer_store_dword v0, off, s[72:75], s76 offset:36\nv_mov_b32 v0, {role}\nbuffer_store_dword v0, off, s[72:75], s76 offset:40')
    A.e(f'{L}:')
def dump1(A,role): dump(A,role,18,0x800000)
def dump2(A,role): dump(A,role,12,0x810000)

def MF(d,a,b,c=None):
    cc='0' if c is None else vr(c,16)
    return f'v_mfma_f32_32x32x16_bf16 {vr(d,16)}, {vr(a,4)}, {vr(b,4)}, {cc}'

def k1(A):
    e=A.e
    SX,SW,SP,SWS,SDB=20,24,28,32,36
    sWV=40
    e('k1_kernel:')
    e('s_cmp_ge_u32 s2, 256\ns_cbranch_scc1 K1_END')
    stamp(A,0)
    e('s_load_dwordx8 s[8:15], s[0:1], 40\ns_load_dwordx4 s[16:19], s[0:1], 80\ns_load_dwordx2 s[4:5], s[0:1], 0\ns_load_dwordx2 s[6:7], s[0:1], 72')
    e('v_and_b32 v1, 63, v0\nv_lshrrev_b32 v2, 6, v0')
    e('s_and_b32 s41, s2, 7\ns_lshr_b32 s42, s2, 3')
    e(f'v_readfirstlane_b32 s{sWV}, v2')
    e('s_cmp_ge_u32 s42, 24\ns_cbranch_scc1 K1_A')
    e('''s_and_b32 s43, s42, 1
    s_lshl_b32 s50, s41, 1
    s_add_u32 s43, s43, s50
    s_lshr_b32 s50, s42, 1
    s_and_b32 s50, s50, 7
    s_lshr_b32 s44, s42, 4
    s_add_u32 s53, s44, 1
    s_lshl_b32 s49, s50, s53''')
    vRX=10; vRW,vRB,vX0,vX1,vW,vP,vSA,vFL,vW0,vW1=14,15,16,17,18,19,20,21,22,23
    TM=24; WF=[32,48]; ACC0,ACC1=64,80; WPH=96; QB=112; EN=120; XF=144
    SLOT=24576; WBL=98304; WPL=155648
    e(f"""s_cmp_eq_u32 s44, 1
    s_cselect_b32 s46, 112, 896
    s_cselect_b32 s51, 224, 112
    s_cselect_b32 s52, 0, 896
    s_mul_i32 s45, s50, s51
    s_add_u32 s45, s45, s52
    v_lshrrev_b32 v3, 3, v1
    v_lshrrev_b32 v4, 4, v1
    v_and_b32 v5, 7, v1
    v_xor_b32 v6, v5, v4
    v_lshlrev_b32 v6, 4, v6
    v_mul_u32_u24 v7, 896, v3
    v_add_u32 v{vX0}, v7, v6
    v_xor_b32 v{vX1}, 64, v{vX0}
    v_add_u32 v{vX1}, {8*896}, v{vX1}
    v_and_b32 v4, 1, v4
    v_lshlrev_b32 v4, 2, v4
    v_xor_b32 v5, v5, v4
    v_min_u32 v5, 6, v5
    v_mul_u32_u24 v7, 2688, v3
    v_lshl_add_u32 v{vW}, v5, 4, v7
    v_lshlrev_b32 v3, 4, v0
    s_lshl_b32 s54, s43, 3
    s_add_u32 s54, s54, s{sWV}
    s_mul_i32 s54, s54, {16*896}
    s_mul_i32 s62, s{sWV}, {8*2688}
    s_add_u32 s62, s62, s45
    s_lshl_b32 s56, s{sWV}, 11
    s_lshl_b32 s61, s{sWV}, 10
    s_mul_i32 s57, s49, 1568
    s_add_u32 m0, s61, {WPL}""")
    if OPT['rot']:
        e(f"""s_min_u32 s58, s41, 6
        s_lshl_b32 s60, s58, 7
        s_add_u32 s54, s54, s60
        s_mul_i32 s55, s58, {64*2688}
        s_add_u32 s55, s55, s62""")
    else: e('s_mov_b32 s58, 0\ns_mov_b32 s55, s62')
    e('s_add_u32 s59, s55, s46\ns_mov_b32 s63, s58\ns_add_u32 s47, s62, s46')
    for d_,n_ in ((SX,2048*896),(SW,448*2688),(SP,16*1568)): e(f's_mov_b32 s{d_+2}, {hex(n_)}\ns_mov_b32 s{d_+3}, 0x20000')
    e('s_waitcnt lgkmcnt(0)')
    stamp(A,1)
    for d_,b_ in ((SX,8),(SW,10),(SP,12)): e(f's_mov_b64 s[{d_}:{d_+1}], s[{b_}:{b_+1}]')
    lx=OPT['ldx']
    def issue(st):
        sl=SLOT*(st%4)
        return [f's_add_u32 m0, s56, {sl}\ns_add_u32 s58, s58, 1\nbuffer_load_dwordx4 v{vX0}, s[{SX}:{SX+3}], s54 offen {lx} lds',
                f's_add_u32 m0, s61, {sl+16384}\ns_cmp_eq_u32 s58, 7\nbuffer_load_dwordx4 v{vW}, s[{SW}:{SW+3}], s55 offen lds\ns_cselect_b32 s60, {128-896+(1<<32)}, 128\ns_cselect_b32 s55, {-64*2688*6+(1<<32)}, {64*2688}'.replace('s_cselect_b32 s55','s_cselect_b32 s64'),
                f's_add_u32 m0, s56, {sl+1024}\ns_add_u32 s55, s55, s64\nbuffer_load_dwordx4 v{vX1}, s[{SX}:{SX+3}], s54 offen {lx} lds\ns_add_u32 s54, s54, s60']
    def issueB(t):
        return [f's_add_u32 m0, s61, {WBL+8192*t}\ns_add_u32 s63, s63, 1\nbuffer_load_dwordx4 v{vW}, s[{SW}:{SW+3}], s59 offen lds\ns_add_u32 s59, s59, {64*2688}\ns_cmp_eq_u32 s63, 7\ns_cselect_b32 s59, s47, s59']
    D=OPT['D']
    WL=OPT.get('wl',0)
    if not WL: e(f'buffer_load_dwordx4 v3, s[{SP}:{SP+3}], s57 offen lds')
    for st in range(D if not OPT.get('i1') else 1):
        for x in issue(st): e(x)
    if WL: e(f's_add_u32 m0, s61, {WPL}\ns_nop 0\nbuffer_load_dwordx4 v3, s[{SP}:{SP+3}], s57 offen lds')
    e(f"""v_and_b32 v3, 3, v2
    v_and_b32 v4, 31, v1
    v_lshl_add_u32 v8, v3, 5, v4
    v_lshrrev_b32 v9, 5, v1
    v_bfe_u32 v5, v8, 1, 3
    v_xor_b32 v5, v5, v9
    v_lshlrev_b32 v5, 4, v5
    v_lshl_add_u32 v{vRX}, v8, 7, v5
    v_bfe_u32 v3, v1, 4, 1
    v_and_b32 v4, 3, v1
    v_lshl_add_u32 v3, v3, 2, v4
    v_min_u32 v3, 6, v3
    v_lshlrev_b32 v7, 3, v3
    v_lshrrev_b32 v2, 2, v2
    v_mad_u32_u24 v3, v2, 56, v7
    v_bfe_u32 v0, v1, 2, 2
    v_lshl_add_u32 v5, v9, 3, v0
    v_lshlrev_b32 v5, 7, v5
    v_bfe_u32 v4, v1, 3, 1
    v_lshlrev_b32 v4, 6, v4
    v_xor_b32 v6, v3, v4
    v_add_u32 v5, v5, v6
    v_add_u32 v{vRW}, 16384, v5
    v_add_u32 v{vRB}, {WBL}, v5
    v_lshl_add_u32 v4, v9, 2, v0
    v_mul_u32_u24 v4, 56, v4
    v_mul_u32_u24 v5, 1568, v2
    v_add3_u32 v3, v7, v4, v5
    v_add_u32 v{vP}, {WPL}, v3""")
    for ks in range(1,4): e(f'v_xor_b32 v{vRX+ks}, {32*ks}, v{vRX}')
    srd(A,SDB,16,256)
    e(f"""s_cmp_eq_u32 s44, 1
    s_cselect_b32 s60, {PHIQ_OFF}, {KV_OFF}
    s_cselect_b32 s{SWS+2}, {64*16*3584}, {16*3584}
    s_add_u32 s{SWS}, s18, s60
    s_addc_u32 s{SWS+1}, s19, 0
    s_mov_b32 s{SWS+3}, 0x20000
    s_and_b32 s65, s{sWV}, 3
    s_lshl_b32 s66, s43, 2
    s_add_u32 s65, s65, s66
    s_lshl_b32 s65, s65, 4
    s_lshr_b32 s66, s{sWV}, 2
    s_lshl_b32 s67, s66, 1
    s_add_u32 s65, s65, s67
    s_add_u32 s65, s65, s49
    s_mul_i32 s65, s65, 3584
    v_lshlrev_b32 v{vSA}, 4, v1
    s_mul_i32 s67, s66, 24576
    v_mul_u32_u24 v3, 192, v8
    v_bfe_u32 v4, v8, 1, 2
    v_lshlrev_b32 v5, 1, v9
    v_xor_b32 v4, v4, v5
    v_lshl_add_u32 v3, v4, 4, v3
    v_add_u32 v{vW0}, s67, v3
    v_xor_b32 v{vW1}, 16, v{vW0}
    s_mov_b32 s68, {f2u(LOG2E)}
    s_lshr_b32 s66, s{sWV}, {2 if OPT.get('sub',1) else 1}
    s_and_b32 s67, s{sWV}, 1
    s_mul_i32 s71, s66, 24576
    s_lshl_b32 s69, s67, 6
    v_lshl_add_u32 v4, v9, 3, v0
    v_mul_u32_u24 v4, 192, v4
    v_and_b32 v5, 1, v1
    v_bfe_u32 v6, v1, 4, 1
    v_lshl_add_u32 v5, v5, 1, v6
    v_lshrrev_b32 v3, 1, v0
    v_xor_b32 v5, v5, v3
    v_lshl_add_u32 v4, v5, 4, v4
    v_bfe_u32 v5, v1, 1, 1
    v_lshl_add_u32 v4, v5, 3, v4
    v_add_u32 v4, s71, v4
    v_xor_b32 v5, 32, v4
    v_add_u32 v6, s69, v4
    v_add_u32 v7, s69, v5
    s_and_b32 s71, s50, 2
    s_add_u32 s71, s71, s66
    s_lshl_b32 s71, s71, 1
    s_lshr_b32 s69, s50, 2
    s_add_u32 s71, s71, s69
    s_lshl_b32 s71, s71, 1
    s_and_b32 s69, s50, 1
    s_add_u32 s71, s71, s69
    s_mul_i32 s71, s71, 3584
    s_lshl_b32 s69, s67, 11
    s_add_u32 s71, s71, s69
    v_lshlrev_b32 v3, 2, v1
    v_mov_b32 v2, 0x3f80""")
    if OPT.get('i1')==1:
        for st in range(1,D):
            for x in issue(st): e(x)
    def rdW(ad,buf,off):
        return [f'ds_read_b64_tr_b16 {vr(WF[buf]+4*ks+2*jj,2)}, v{ad} offset:{off+2048*ks+512*jj}' for ks in range(4) for jj in range(2)]
    def shift():
        e(('s_memtime' if OPT.get('cyc') else 's_memrealtime')+' s[76:77]\ns_waitcnt lgkmcnt(0)')
        for i in range(1,7): e(f's_mov_b32 s{80+2*i}, s{82+2*i}')
        e('s_mov_b32 s92, s76')
    stamp(A,2)
    issued=[('p',1)]+[(k,3) for k in range(D)] if not WL else [(k,3) for k in range(D)]+[('p',1)]
    def younger(tag):
        n=0
        for t,c in reversed(issued):
            if t==tag: return n
            n+=c
        raise
    nB=0
    if OPT.get('i1')==2: issued=issued[:2]
    for s_ in range(7):
        e(f's_waitcnt vmcnt({younger(s_)}) lgkmcnt(0)\ns_barrier')
        if s_==0: stamp(A,3)
        elif OPT.get('lp')==1: shift()
        I=[]
        if s_==0 and OPT.get('i1')==2:
            for k_ in range(1,D): I+=issue(k_); issued.append((k_,3))
        if s_+D<7: I+=issue(s_+D); issued.append((s_+D,3))
        k=int(str(OPT.get('bs','0000043')).zfill(7)[s_])
        for t in range(nB,nB+k): I+=issueB(t); issued.append((f'B{t}',1))
        nB+=k
        R=[]
        for ks in range(4): R+=[f'ds_read_b128 {vr(XF+16*s_+4*ks,4)}, v{vRX+ks}']+rdW(vRW,s_&1,0)[2*ks:2*ks+2]
        if s_==(D+1 if WL else 1) and OPT.get('sub',1): R+=[f'v_mov_b32 v{TM}, 163832\nv_mov_b64 {vr(TM+2,2)}, 0\nds_write_b64 v{TM}, {vr(TM+2,2)}']
        if s_==(D if WL else 0): R+=[f'ds_read_b64_tr_b16 {vr(WPH+8*u+2*q,2)}, v{vP} offset:{3136*u+448*q}' for u in range(2) for q in range(4)]
        M=[MF(ACC0,WF[(s_-1)&1]+4*ks,XF+16*(s_-1)+4*ks,ACC0 if (s_>1 or ks) else None) for ks in range(4)] if s_ else []
        d=SLOT if (s_+1)%4 else -3*SLOT
        V=[f'v_add_u32 v{r}, {d&0xffffffff}, v{r}' for r in (vRX,vRX+1,vRX+2,vRX+3,vRW)] if s_<6 else []
        for i in range(4):
            if M: e(M[i])
            for x in R[i*len(R)//4:(i+1)*len(R)//4]: e(x)
            if i<len(I): e(I[i])
        for x in I[4:]: e(x)
        for x in V: e(x)
    P=ACC0; EP=ACC0
    PHR=[112+j for j in range(8)]+[136+j for j in range(4)]
    def unit(P,EN,PH,pk=1):
        U=[]
        mx,nm,t0,t1=TM,TM+1,TM+2,TM+3; EP=P
        U+=[f'v_permlane32_swap_b32 v{P+12}, v{P+14}',f'v_permlane32_swap_b32 v{P+13}, v{P+15}']
        U+=[f'v_max3_f32 v{mx}, v{P}, v{P+1}, v{P+2}',f'v_min3_f32 v{nm}, v{P}, v{P+1}, v{P+2}']
        for j in range(3,13,2): U+=[f'v_max3_f32 v{mx}, v{mx}, v{P+j}, v{P+j+1}',f'v_min3_f32 v{nm}, v{nm}, v{P+j}, v{P+j+1}']
        U+=[f'v_max_f32 v{mx}, v{mx}, v{P+13}',f'v_min_f32 v{nm}, v{nm}, v{P+13}']
        U+=[f'v_mul_f32 v{mx}, s68, v{mx}',f'v_mul_f32 v{nm}, {f2u(-LOG2E)}, v{nm}']
        U+=[f'v_permlane32_swap_b32 v{mx}, v{nm}',f'v_max_f32 v{t0}, v{mx}, v{nm}',f'v_max_f32 v{t1}, v{mx}, v{nm}',f'v_permlane32_swap_b32 v{t0}, v{t1}']
        if pk:
            for j in range(0,14,2):
                U+=[f'v_pk_fma_f32 {vr(EN+j,2)}, {vr(P+j,2)}, s[68:69], {vr(t0,2)} op_sel:[0,0,1] op_sel_hi:[1,0,1] neg_lo:[0,1,1] neg_hi:[0,1,1]',
                    f'v_pk_fma_f32 {vr(EP+j,2)}, {vr(P+j,2)}, s[68:69], {vr(t0,2)} op_sel_hi:[1,0,0] neg_lo:[0,0,1] neg_hi:[0,0,1]']
        else:
            for j in range(14): U+=[f'v_fma_f32 v{EN+j}, -v{P+j}, s68, -v{t1}',f'v_fma_f32 v{EP+j}, v{P+j}, s68, -v{t0}']
        for j in range(14): U+=[f'v_exp_f32 v{EP+j}, v{EP+j}',f'v_exp_f32 v{EN+j}, v{EN+j}']
        sp,sn=TM+4,TM+6
        if pk:
            U+=[f'v_pk_add_f32 {vr(sp,2)}, {vr(EP,2)}, {vr(EP+2,2)}',f'v_pk_add_f32 {vr(sn,2)}, {vr(EN,2)}, {vr(EN+2,2)}']
            for j in range(4,14,2): U+=[f'v_pk_add_f32 {vr(sp,2)}, {vr(sp,2)}, {vr(EP+j,2)}',f'v_pk_add_f32 {vr(sn,2)}, {vr(sn,2)}, {vr(EN+j,2)}']
            U+=[f'v_add_f32 v{mx}, v{sp}, v{sp+1}',f'v_add_f32 v{nm}, v{sn}, v{sn+1}']
        else:
            U+=[f'v_add_f32 v{mx}, v{EP}, v{EP+1}',f'v_add_f32 v{nm}, v{EN}, v{EN+1}']
            for j in range(2,14): U+=[f'v_add_f32 v{mx}, v{mx}, v{EP+j}',f'v_add_f32 v{nm}, v{nm}, v{EN+j}']
        U+=[f'v_permlane32_swap_b32 v{mx}, v{nm}',f'v_add_f32 v{t0}, v{mx}, v{nm}',f'v_rcp_f32 v{t0}, v{t0}',f'v_mov_b32 v{t1}, v{t0}',f'v_permlane32_swap_b32 v{t0}, v{t1}']
        if pk: U+=[f'v_pk_mul_f32 {vr(EP+j,2)}, {vr(EP+j,2)}, {vr(t0,2)} op_sel_hi:[1,0]' for j in range(0,14,2)]
        else: U+=[f'v_mul_f32 v{EP+j}, v{t0}, v{EP+j}' for j in range(14)]
        U+=[f'v_cvt_pk_bf16_f32 v{PH[j]}, v{EP+2*j}, v{EP+2*j+1}' for j in range(7)]
        if pk: U+=[f'v_pk_mul_f32 {vr(EN+j,2)}, {vr(EN+j,2)}, {vr(t0,2)} op_sel:[0,1] op_sel_hi:[1,1]' for j in range(0,14,2)]
        else: U+=[f'v_mul_f32 v{EN+j}, v{t1}, v{EN+j}' for j in range(14)]
        U+=[f'v_cvt_pk_bf16_f32 v{PH[7+j]}, v{EN+2*j}, v{EN+2*j+1}' for j in range(7)]
        return U
    for _ in range(OPT.get('al1',0)): e('s_nop 0')
    e('s_waitcnt lgkmcnt(0)')
    for ks in range(4): e(MF(ACC0,WF[0]+4*ks,XF+96+4*ks,ACC0))
    e('v_cmp_gt_u32 vcc, 32, v1')
    for j in (6,7,14,15): e(f'v_cndmask_b32 v{WPH+j}, 0, v{WPH+j}, vcc')
    for j in range(8): e(f'v_cvt_pk_bf16_f32 v{QB+j}, v{ACC0+2*j}, v{ACC0+2*j+1}')
    e(MF(P,WPH,QB)); e(MF(P,WPH+4,QB+4,P))
    n1=OPT.get('n1',36)
    Ua=unit(P,EN,PHR+[140,141],1); Ub=unit(P,EN,PHR+[140,141],0)
    cutA=22+14; cutB=22+28
    U=Ua[:cutA]+Ub[cutB:]
    for x in U[:n1]: e(x)
    e(f's_waitcnt vmcnt({younger("B2")})\ns_barrier')
    stamp(A,4)
    if OPT.get('oc'): e('s_memtime s[82:83]')
    for x in rdW(vRB,1,0)+rdW(vRB,0,8192): e(x)
    gaps=[1]*24+[0]*4
    cost=lambda x: 2.0 if x.startswith(('v_exp','v_rcp')) else 1.0
    tot=sum(gaps); k=n1; acc=0; ctot=sum(cost(x) for x in U[n1:]); cdone=0
    for t in range(7):
        e('s_waitcnt lgkmcnt(%d)'%(8 if t<6 else 0))
        for ks in range(4):
            e(MF(ACC1,WF[(t+1)&1]+4*ks,XF+16*t+4*ks,ACC1 if (t or ks) else None))
            if t+2<7:
                if t==1 and ks==0: e('s_waitcnt vmcnt(0)\ns_barrier')
                if t==4 and ks==0: e(f'buffer_load_dword v{vFL}, off, s[{SDB}:{SDB+3}], 0 sc1')
                for x in rdW(vRB,(t+1)&1,8192*(t+2))[2*ks:2*ks+2]: e(x)
            if t==6 and ks==0:
                st=OPT['st_phi']
                e('s_cmp_eq_u32 s44, 0\ns_cbranch_scc1 K1_S1')
                for c,r in enumerate((112,116,136)): e(f'buffer_store_dwordx4 {vr(r,4)}, v{vSA}, s[{SWS}:{SWS+3}], s65 offen offset:{1024*c} {st}')
                e(f'''s_branch K1_S2
                K1_S1:
                ds_write_b128 v{vW0}, v[112:115]
                ds_write_b128 v{vW1}, v[116:119]
                ds_write_b128 v{vW0}, v[136:139] offset:64
                ds_write_b64 v{vW1}, v[140:141] offset:64
                K1_S2:''')
            acc+=gaps[4*t+ks]
            while k<len(U) and cdone<ctot*acc/tot-1e-9: e(U[k]); cdone+=cost(U[k]); k+=1
    assert k==len(U)
    stamp(A,5)
    if OPT.get('oc'): e('s_memtime s[84:85]')
    e('s_cmp_eq_u32 s44, 0\ns_cbranch_scc1 K1_KV')
    st=OPT['st_phi']
    e('s_add_u32 s65, s65, 3072')
    Q2=144; P2=160; E2=176; H2=192
    for j in range(8): e(f'v_cvt_pk_bf16_f32 v{Q2+j}, v{ACC1+2*j}, v{ACC1+2*j+1}')
    e(MF(P2,WPH+8,Q2)); e(MF(P2,WPH+12,Q2+4,P2))
    for x in unit(P2,E2,[H2+j for j in range(12)]+[142,143]): e(x)
    for c in range(3): e(f'buffer_store_dwordx4 {vr(H2+4*c,4)}, v{vSA}, s[{SWS}:{SWS+3}], s65 offen offset:{1024*c} {st}')
    e(f'buffer_store_dwordx4 v[140:143], v{vSA}, s[{SWS}:{SWS+3}], s65 offen offset:3072 {st}')
    if OPT.get('ppf'):
        e(f'''v_lshlrev_b32 v3, 7, v1
        s_sub_u32 s65, s65, 3072
        s_mov_b32 exec_hi, 0x00ffffff
        s_waitcnt vmcnt(0)
        buffer_load_dword v4, v3, s[{SWS}:{SWS+3}], s65 offen''')
    dump1(A,2)
    e('s_endpgm')
    e('K1_KV:')
    T2=144
    e('s_nop 7\ns_nop 1')
    for j in range(8): e(f'v_cvt_pk_bf16_f32 v{T2+j}, v{ACC1+2*j}, v{ACC1+2*j+1}')
    e(f"""v_cndmask_b32 v{T2+6}, v2, v{T2+6}, vcc
    v_cndmask_b32 v{T2+7}, v2, v{T2+7}, vcc
    ds_write_b128 v{vW0}, {vr(T2,4)} offset:128
    v_permlane32_swap_b32 v{T2+6}, v{T2+7}
    ds_write_b128 v{vW1}, {vr(T2+4,4)} offset:128
    s_mov_b32 s70, 0""")
    e(f's_waitcnt vmcnt(0)\nv_readfirstlane_b32 s69, v{vFL}')
    if OPT.get('sub',1):
        e(f'''s_lshl_b32 s64, s66, 2
        s_add_u32 s64, s64, 163832
        v_mov_b32 v{TM}, s64
        v_mov_b32 v{TM+1}, 1
        s_mov_b64 exec, 1
        s_waitcnt lgkmcnt(0)
        ds_add_u32 v{TM}, v{TM+1}
        s_mov_b64 exec, -1
        s_bitcmp1_b32 s{sWV}, 1
        s_cbranch_scc1 K1_END
        K1_SUB:
        ds_read_b32 v{TM+1}, v{TM}
        s_waitcnt lgkmcnt(0)
        v_readfirstlane_b32 s64, v{TM+1}
        s_cmp_lt_u32 s64, 4
        s_cbranch_scc1 K1_SUB''')
        stamp(A,6)
    else:
        e('s_waitcnt lgkmcnt(0)\ns_barrier')
        stamp(A,6)
        e(f's_cmp_ge_u32 s{sWV}, 4\ns_cbranch_scc1 K1_END')
    FA,FB,KA=160,192,224
    for ks in range(8):
        e(f'ds_read_b64_tr_b16 {vr(FA+4*ks,2)}, v6 offset:{3072*ks}')
        e(f'ds_read_b64_tr_b16 {vr(FA+4*ks+2,2)}, v7 offset:{3072*ks+768}')
        e(f'ds_read_b64_tr_b16 {vr(FB+4*ks,2)}, v4 offset:{3072*ks+128}')
        e(f'ds_read_b64_tr_b16 {vr(FB+4*ks+2,2)}, v5 offset:{3072*ks+768+128}')
        if ks>=2:
            e('s_waitcnt lgkmcnt(8)'); e(MF(KA,FA+4*(ks-2),FB+4*(ks-2),KA if ks>2 else None))
    e('s_waitcnt lgkmcnt(4)'); e(MF(KA,FA+24,FB+24,KA))
    e('s_waitcnt lgkmcnt(0)'); e(MF(KA,FA+28,FB+28,KA))
    e('K1_POLL:\ns_cmp_ge_u32 s69, 64\ns_cbranch_scc1 K1_GO\ns_add_u32 s70, s70, 1\ns_cmp_ge_u32 s70, 0x40000\ns_cbranch_scc1 K1_GO\ns_sleep 2')
    e(f'buffer_load_dword v{vFL}, off, s[{SDB}:{SDB+3}], 0 sc1\ns_waitcnt vmcnt(0)\nv_readfirstlane_b32 s69, v{vFL}')
    e('s_branch K1_POLL\nK1_GO:\ns_nop 7\ns_nop 1')
    for j in range(6):
        e(f'v_cvt_pk_bf16_f32 v{FA+j}, v{KA+2*j}, v{KA+2*j+1}')
        e(f'buffer_atomic_pk_add_bf16 v{FA+j}, v3, s[{SWS}:{SWS+3}], s71 offen offset:{256*j}')
    e('s_cmp_eq_u32 s67, 1\ns_cbranch_scc1 K1_END')
    for j in range(6,8):
        e(f'v_cvt_pk_bf16_f32 v{FA+j}, v{KA+2*j}, v{KA+2*j+1}')
        e(f'buffer_atomic_pk_add_bf16 v{FA+j}, v3, s[{SWS}:{SWS+3}], s71 offen offset:{256*j}')
    dump1(A,1)
    e('s_endpgm')
    e('K1_A:')
    e(f"""s_lshl_b32 s43, s41, 3
    s_add_u32 s43, s43, s42
    s_sub_u32 s43, s43, 24
    v_lshlrev_b32 v3, 4, v1
    v_lshlrev_b32 v17, 7, v1""")
    if OPT['cpf']:
        e(f"""s_cmp_eq_u32 s{sWV}, 6
        s_cbranch_scc0 K1A_H1
        s_getpc_b64 s[44:45]
        K1_PC:
        s_sub_u32 s44, s44, K1_PC-k1_kernel
        s_subb_u32 s45, s45, 0
        global_load_dword v18, v17, s[44:45]
        global_load_dword v18, v17, s[44:45] offset:4032
        K1A_H1:""".replace("global_load_dword v18, v17, s[44:45] offset:4032\n","s_add_u32 s44, s44, 8192\ns_addc_u32 s45, s45, 0\nglobal_load_dword v18, v17, s[44:45]\n"))
    e(f"""s_lshl_b32 s44, s{sWV}, 8
    s_add_u32 s44, s44, s43
    s_mul_i32 s44, s44, 896
    s_mul_i32 s45, s{sWV}, {4*960}
    s_lshl_b32 s46, s43, 3
    s_add_u32 s46, s46, s{sWV}
    s_mul_i32 s46, s46, {28*128}
    s_mul_i32 s47, s43, 896
    v_mul_u32_u24 v19, 37, v1
    v_lshrrev_b32 v19, 8, v19
    v_mul_u32_u24 v4, {2688-7*128}, v19
    v_add_u32 v19, v4, v17
    s_sub_u32 s49, s42, 24
    s_lshl_b32 s49, s49, 3
    s_add_u32 s49, s49, s{sWV}
    s_mul_i32 s50, s49, {7*2688}
    s_add_u32 s50, s50, 1792
    s_mul_i32 s49, s49, {49*128}
    s_mov_b32 m0, s45
    s_mov_b32 exec_hi, 0x00ffffff
    s_waitcnt lgkmcnt(0)""")
    stamp(A,1)
    srd(A,SDB,16,256)
    e(f's_cmp_eq_u32 s{sWV}, 7\ns_cbranch_scc0 K1A_H3')
    srd(A,SWS,18,16*3584,KV_OFF)
    e(f"""s_mov_b32 exec_hi, 0x00ffffff
    v_mov_b64 v[12:13], 0
    v_mov_b64 v[14:15], 0
    buffer_store_dwordx4 v[12:15], v3, s[{SWS}:{SWS+3}], s47 offen sc1
    K1A_H3:""")
    def apf(pos):
        if not OPT['apf'] or OPT.get('apl',0)!=pos: return
        srd(A,SW,8,2048*896)
        e(f's_mov_b64 exec, 0x0fffffff\nbuffer_load_dword v18, v17, s[{SW}:{SW+3}], s46 offen {lx}\ns_mov_b64 exec, -1')
    apf(0)
    def bpf(pos):
        if not OPT.get('bpf') or OPT.get('bl',0)!=pos: return
        srd(A,SW,10,448*2688)
        e(f's_mov_b32 exec_hi, 0x1ffff\nbuffer_load_dword v18, v19, s[{SW}:{SW+3}], s50 offen\ns_mov_b32 exec_hi, -1')
    def wapf(pos):
        if not OPT.get('wa') or OPT.get('wal',0)!=pos: return
        srd(A,SW,10,448*2688)
        e(f's_mov_b32 exec_lo, -1\ns_mov_b32 exec_hi, 0x1ffff\ns_sub_u32 s51, s50, 896\nbuffer_load_dword v18, v19, s[{SW}:{SW+3}], s51 offen')
        if OPT['wa']==2: e(f's_sub_u32 s51, s50, 1792\nbuffer_load_dword v18, v19, s[{SW}:{SW+3}], s51 offen')
        e('s_mov_b32 exec_hi, -1')
    wapf(0)
    bpf(0)
    srd(A,SX,4,2048*896)
    def xdma(pos):
        if OPT.get('xl',0)!=pos: return
        e('s_mov_b32 exec_hi, 0x00ffffff')
        for i in range(4):
            if i: e(f's_add_u32 m0, s45, {960*i}\ns_add_u32 s44, s44, {64*896}')
            e(f'buffer_load_dwordx4 v3, s[{SX}:{SX+3}], s44 offen {OPT["lda"]} lds')
        e('s_mov_b32 exec_hi, -1')
    xdma(0)
    VL=32768; OL=73728
    e('s_mov_b32 exec_hi, -1\nv_and_b32 v8, 31, v1\nv_lshrrev_b32 v9, 5, v1')
    e(f'''v_mul_u32_u24 v10, {8*2560}, v9
    v_mul_u32_u24 v16, 80, v8
    v_add_u32 v10, v16, v10
    v_lshl_add_u32 v10, v2, 3, v10
    v_add_u32 v10, {VL}, v10''')
    FF=20; HH=28; CP=32; SPn=40; A2=48; B2=56; TT=64
    e(f'''v_lshrrev_b32 v4, 1, v8
    v_and_b32 v5, 1, v8
    v_cvt_f32_u32 v5, v5
    v_mul_f32 v5, {f2u(-0.25)}, v5
    v_cmp_eq_u32 vcc, 1, v8
    v_cndmask_b32 v4, v4, 16, vcc
    v_cndmask_b32 v5, v5, 0, vcc
    v_cvt_f32_u32 v4, v4
    v_mul_f32 v4, {f2u(1/32)}, v4
    v_cvt_f32_u32 v11, v9
    v_mul_f32 v12, 4.0, v11
    v_add_f32 v11, v12, v12
    v_fma_f32 v5, v4, v11, v5''')
    for ks in range(2):
        for j in range(8): e(f'v_fmamk_f32 v{TT+8*ks+j}, v4, {f2u(16.*ks+j)}, v5')
    apf(1)
    for j in range(16): e(f'v_cos_f32 v{TT+j}, v{TT+j}')
    apf(2)
    for j in range(8): e(f'v_cvt_pk_bf16_f32 v{FF+j}, v{TT+2*j}, v{TT+2*j+1}')
    wapf(1)
    bpf(1)
    xdma(1)
    e(f'''v_bfe_u32 v4, v8, 2, 1
    v_bfe_u32 v5, v8, 3, 1
    v_lshl_add_u32 v4, v4, 1, v5
    v_bfe_u32 v5, v8, 1, 1
    v_lshl_add_u32 v4, v4, 1, v5
    v_and_b32 v5, 1, v8
    v_cvt_f32_u32 v5, v5
    v_mul_f32 v5, {f2u(-0.25)}, v5
    v_and_b32 v6, 15, v8
    v_cmp_eq_u32 vcc, 1, v6
    v_cndmask_b32 v4, v4, 8, vcc
    v_cndmask_b32 v5, v5, 0, vcc
    v_cvt_f32_u32 v4, v4
    v_mul_f32 v4, {f2u(1/16)}, v4
    v_fma_f32 v5, v4, v12, v5''')
    for j in range(8): e(f'v_fmamk_f32 v{TT+j}, v4, {f2u(8.*(j>>2)+(j&3))}, v5')
    for j in range(8): e(f'v_cos_f32 v{TT+j}, v{TT+j}')
    for j in range(4): e(f'v_cvt_pk_bf16_f32 v{HH+j}, v{TT+2*j}, v{TT+2*j+1}')
    e(f's_cmp_eq_u32 s{sWV}, 7\ns_cbranch_scc0 K1A_N7\nv_mov_b32 v7, 1\ns_waitcnt vmcnt({(1 if OPT["apf"] else 0)+OPT.get("wa",0)+(1 if OPT.get("bpf") and OPT.get("bl",0)<2 else 0)+(4 if OPT.get("xl",0)<2 else 0)})\ns_mov_b64 exec, 1')
    e(f'buffer_atomic_add v7, off, s[{SDB}:{SDB+3}], 0 sc1\ns_mov_b64 exec, -1\nK1A_N7:')
    bpf(2)
    xdma(2)
    e(f'''s_cmp_eq_u32 s{sWV}, 0
    s_cselect_b32 s47, 8, s{sWV}
    s_sub_u32 s48, 0, s47
    v_lshrrev_b32 v4, 2, v8
    v_lshlrev_b32 v4, 5, v4
    v_and_b32 v5, 3, v8
    v_add_u32 v5, 1, v5
    v_lshrrev_b32 v5, 1, v5
    v_lshl_add_u32 v4, v5, 4, v4
    v_and_b32 v5, 1, v8
    v_cmp_eq_u32 vcc, 1, v5
    v_mov_b32 v6, s48
    v_cndmask_b32 v6, v2, v6, vcc
    v_add_u32 v4, v4, v6
    v_cvt_f32_u32 v4, v4
    v_mul_f32 v4, {f2u(1/448)}, v4
    v_mul_f32 v5, v4, v11''')
    for ks in range(2):
        for j in range(8): e(f'v_fmamk_f32 v{TT+8*ks+j}, v4, {f2u(16.*ks+j)}, v5')
    for j in range(16): e(f'v_sin_f32 v{TT+16+j}, v{TT+j}\nv_cos_f32 v{TT+j}, v{TT+j}')
    for j in range(8): e(f'v_cvt_pk_bf16_f32 v{CP+j}, v{TT+2*j}, v{TT+2*j+1}\nv_cvt_pk_bf16_f32 v{SPn+j}, v{TT+16+2*j}, v{TT+16+2*j+1}')
    e(f's_cmp_eq_u32 s{sWV}, 0\ns_cbranch_scc1 K1A_SPEC')
    e('''v_mov_b32 v4, 0x80008000
    v_cndmask_b32 v5, v4, 0, vcc
    v_cndmask_b32 v6, 0, v4, vcc''')
    for j in range(8): e(f'v_xor_b32 v{A2+j}, v5, v{SPn+j}\nv_xor_b32 v{B2+j}, v6, v{CP+j}')
    e('s_branch K1A_ST1\nK1A_SPEC:')
    for j in range(8):
        e(f'''v_cndmask_b32 v{A2+j}, 0, v{CP+j}, vcc
        v_cndmask_b32 v{B2+j}, 0, v{SPn+j}, vcc
        v_cndmask_b32 v{CP+j}, v{CP+j}, 0, vcc
        v_cndmask_b32 v{SPn+j}, v{SPn+j}, 0, vcc''')
    e('v_mov_b32 v4, 0xbf803f80\nv_cmp_eq_u32 vcc, 0, v8')
    for j in range(8): e(f'v_cndmask_b32 v{SPn+j}, v{SPn+j}, v4, vcc')
    e('K1A_ST1:')
    bpf(3)
    xdma(3)
    bpf(4)
    XA=64; BO=80; U0=96; U1=112; VU=96
    e(f'''v_bfe_u32 v4, v1, 2, 2
    v_lshl_add_u32 v4, v9, 3, v4
    v_mul_u32_u24 v4, 960, v4
    v_and_b32 v5, 1, v1
    v_bfe_u32 v6, v1, 4, 1
    v_lshl_add_u32 v5, v5, 1, v6
    v_bfe_u32 v6, v1, 1, 1
    v_lshl_add_u32 v5, v5, 1, v6
    v_mad_u32_u24 v4, v5, 56, v4
    v_lshl_add_u32 v4, v2, 3, v4
    v_mul_u32_u24 v13, 5120, v2
    v_add_u32 v13, v16, v13
    v_lshl_add_u32 v13, v9, 4, v13
    v_add_u32 v13, {VL}, v13
    v_mul_u32_u24 v14, 1032, v8
    v_lshl_add_u32 v14, v9, 7, v14
    v_add_u32 v14, {OL}, v14
    s_lshl_b32 s48, s48, 1
    v_add_u32 v15, s48, v14
    v_lshl_add_u32 v14, v2, 1, v14''')
    for r in range(8): e(f'v_mov_b64 {vr(XA+2*r,2)}, 0')
    stamp(A,3)
    e(f's_waitcnt vmcnt({1 if OPT.get("bl",0)==4 else 0})\ns_barrier\ns_cmp_eq_u32 s{sWV}, 7\ns_cbranch_scc1 K1A_VW')
    stamp(A,4)
    for dh in range(2):
        for ks in range(2):
            for jj in range(2):
                e(f'ds_read_b64_tr_b16 {vr(XA+8*dh+4*ks+2*jj,2)}, v4 offset:{15360*ks+3840*jj+448*dh}')
    e('s_waitcnt lgkmcnt(4)')
    e(MF(U0,XA,FF)); e(MF(U0,XA+4,FF+4,U0))
    e('s_waitcnt lgkmcnt(0)')
    e(MF(U1,XA+8,FF)); e(MF(U1,XA+12,FF+4,U1))
    for u in range(4):
        e(f'v_cvt_pk_bf16_f32 v{BO+4*u}, v{U0+u}, v{U0+4+u}\nv_cvt_pk_bf16_f32 v{BO+4*u+1}, v{U0+8+u}, v{U0+12+u}')
    for u in range(4):
        e(f'v_cvt_pk_bf16_f32 v{BO+4*u+2}, v{U1+u}, v{U1+4+u}\nv_cvt_pk_bf16_f32 v{BO+4*u+3}, v{U1+8+u}, v{U1+12+u}')
    for u in range(4): e(MF(VU+16*u,HH,BO+4*u))
    for r in range(8): e(f'v_cvt_pk_bf16_f32 v{XA+2*r}, v{VU+r}, v{VU+16+r}')
    for r in range(8): e(f'v_cvt_pk_bf16_f32 v{XA+2*r+1}, v{VU+32+r}, v{VU+48+r}')
    e('K1A_VW:')
    for r in range(8): e(f'ds_write_b64 v10, {vr(XA+2*r,2)} offset:{2560*r}')
    e('s_waitcnt lgkmcnt(0)\ns_barrier')
    for ks in range(4): e(f'ds_read_b128 {vr(XA+4*ks,4)}, v13 offset:{32*(ks&1)+2560*(ks>>1)}')
    def wpf_blk():
            srd(A,SW,14,448*896)
            e(f'''buffer_load_dword v18, v17, s[{SW}:{SW+3}], s49 offen
            s_cmp_ge_u32 s{sWV}, 6
            s_cbranch_scc0 K1A_E
            s_getpc_b64 s[44:45]
            K1_PC2:
            s_add_u32 s44, s44, k2_kernel-K1_PC2
            s_addc_u32 s45, s45, 0
            s_sub_u32 s46, s{sWV}, 6
            s_lshl_b32 s46, s46, 13
            v_add_u32 v6, s46, v17
            v_min_u32 v6, K2_END-k2_kernel, v6
            global_load_dword v18, v6, s[44:45]
            K1A_E:''')
    if OPT['wpf']==1: wpf_blk()
    GA=[CP,CP+4,A2,A2+4]; GB=[SPn,SPn+4,B2,B2+4]
    for ks in range(4):
        e(f's_waitcnt lgkmcnt({3-ks})')
        e(MF(U0,GA[ks],XA+4*ks,U0 if ks else None)); e(MF(U1,GB[ks],XA+4*ks,U1 if ks else None))
    stamp(A,5)
    srd(A,SWS,18,2<<20,AINT_OFF)
    for (U,ab) in ((U0,0),(U1,64)):
        for j in range(8): e(f'v_cvt_pk_bf16_f32 v{BO+(ab>>3)+j}, v{U+2*j}, v{U+2*j+1}')
        for a in range(4):
            r=BO+(ab>>3)+2*a
            e(f'''ds_write_b16 v14, v{r} offset:{256*a+ab}
            ds_write_b16_d16_hi v15, v{r} offset:{256*a+32+ab}
            ds_write_b16 v14, v{r+1} offset:{256*a+32+ab}
            ds_write_b16_d16_hi v15, v{r+1} offset:{256*a+64+ab}''')
    if OPT['wpf']==2: wpf_blk()
    e(f'''s_mul_i32 s45, s{sWV}, {4*1032}
    s_add_u32 s45, s45, {OL}
    v_add_u32 v4, s45, v3
    v_add_u32 v5, 2064, v4
    s_lshl_b32 s44, s{sWV}, 8
    s_add_u32 s44, s44, s43
    s_lshl_b32 s44, s44, 10
    v_lshlrev_b32 v6, 7, v1
    s_waitcnt lgkmcnt(0)
    s_barrier
    s_mov_b32 exec_hi, 0x00ffffff''')
    for i in range(4): e(f'ds_read2_b64 {vr(XA+4*i,4)}, v{4+(i>>1)} offset0:{129*(i&1)} offset1:{129*(i&1)+1}')
    st=OPT['st_aint']
    for i in range(4):
        e(f's_waitcnt lgkmcnt({3-i})')
        e(f'buffer_store_dwordx4 {vr(XA+4*i,4)}, v3, s[{SWS}:{SWS+3}], s44 offen {st}')
        e(f's_add_u32 s44, s44, 65536')
    dump1(A,3)
    e('K1_END:\ns_endpgm')

def k2(A):
    e=A.e
    OPT['k2']=1
    SD,SPH,SO=20,24,28
    sWV=40
    e('k2_kernel:')
    e('s_cmp_ge_u32 s2, 256\ns_cbranch_scc1 K2_END')
    stamp(A,0)
    e('s_load_dwordx4 s[8:11], s[0:1], 64\ns_load_dwordx2 s[12:13], s[0:1], 88')
    e('v_and_b32 v1, 63, v0\nv_lshrrev_b32 v2, 6, v0')
    e('s_and_b32 s41, s2, 7\ns_lshr_b32 s42, s2, 3')
    e(f'v_readfirstlane_b32 s{sWV}, v2')
    e('''v_bfe_u32 v3, v1, 4, 1
    v_and_b32 v4, 7, v1
    v_lshlrev_b32 v5, 2, v3
    v_xor_b32 v4, v4, v5
    v_lshlrev_b32 v12, 4, v4
    v_lshrrev_b32 v13, 3, v1
    v_lshlrev_b32 v15, 4, v1''')
    LANE='''v_and_b32 v8, 31, v1
    v_lshrrev_b32 v9, 5, v1
    v_bfe_u32 v10, v1, 2, 2
    v_bfe_u32 v3, v1, 4, 1
    v_and_b32 v4, 1, v1
    v_lshl_add_u32 v4, v3, 1, v4
    v_bfe_u32 v5, v1, 1, 1
    v_lshl_add_u32 v4, v4, 1, v5
    v_lshlrev_b32 v11, 3, v4'''
    e('s_cmp_ge_u32 s42, 28\ns_cbranch_scc1 K2_A')
    e(f'''s_lshr_b32 s44, s42, 2
    s_and_b32 s45, s{sWV}, 1
    s_bfe_u32 s46, s{sWV}, 0x10001
    s_cmp_ge_u32 s{sWV}, 4
    s_cbranch_scc0 K2_C''')
    e(f"""v_mul_u32_u24 v3, 896, v13
    v_add_u32 v14, v3, v12
    v_lshrrev_b32 v4, 5, v1
    v_mul_u32_u24 v4, {28*896}, v4
    v_add_u32 v16, v14, v4
    s_and_b32 s50, s{sWV}, 3
    s_lshl_b32 s50, s50, 10
    s_mul_i32 s48, s45, {224*896}
    s_lshl_b32 s49, s44, 7
    s_add_u32 s48, s48, s49
    s_mul_i32 s49, s45, 28672
    s_add_u32 s49, s49, 57344
    s_mov_b32 m0, s50
    s_waitcnt lgkmcnt(0)""")
    if OPT.get('npf',0):
        srd(A,SO,12,2<<20,AINT_OFF)
        e(f'''s_cmp_eq_u32 s{sWV}, 7
        s_cbranch_scc0 K2_NP
        s_lshl_b32 s51, s42, 6
        v_add_u32 v3, s51, v1
        v_mul_u32_u24 v4, 9363, v3
        v_lshrrev_b32 v4, 16, v4
        v_lshlrev_b32 v3, 7, v3
        v_lshl_add_u32 v3, v4, 7, v3
        s_lshl_b32 s51, s41, 18
        buffer_load_dword v5, v3, s[{SO}:{SO+3}], s51 offen
        K2_NP:''')
    srd(A,SD,12,16*3584,KV_OFF)
    if OPT.get('kvrot'):
        e(f's_mul_i32 s51, s42, {OPT["kvrot"]*4096}\ns_add_u32 s50, s50, s51\nK2_RW:\ns_cmp_ge_u32 s50, 57344\ns_cbranch_scc0 K2_RX\ns_sub_u32 s50, s50, 57344\ns_branch K2_RW\nK2_RX:')
    for n in range(14 if not OPT.get('nokv') else 0):
        e(f'buffer_load_dwordx4 v15, s[{SD}:{SD+3}], s50 offen lds\ns_add_u32 m0, m0, 4096\ns_add_u32 s50, s50, 4096')
        if OPT.get('kvrot'): e('s_cmp_ge_u32 s50, 57344\ns_cselect_b32 s51, 57344, 0\ns_sub_u32 s50, s50, s51')
    srd(A,SPH,8,448*896)
    e('s_cmp_eq_u32 s46, 0\ns_cbranch_scc0 K2_L1')
    HYB=OPT.get('hyb',0); W0=OPT.get('w0',0); W1=OPT.get('w1',0)
    for par in range(2):
        js=(0,2,4,6) if par==0 else (1,3,5); nj=len(js)
        for st_ in range(5):
            if st_==W0: e(f's_waitcnt vmcnt({(0 if OPT.get("nob1") else 7)+W0*nj})\ns_barrier')
            if st_==W1 and not OPT.get('nob1'): e(f's_waitcnt vmcnt({W1*nj})\ns_barrier')
            if st_==4: break
            for j in (js if not OPT.get('nowo') else ()):
                row=112*(st_>>1)+28*(st_&1)+8*j+(28 if j>3 else 0)
                e(f's_add_u32 m0, s49, {7168*st_+1024*j}\ns_add_u32 s50, s48, {row*896}\nbuffer_load_dwordx4 v{16 if j==3 else 14}, s[{SPH}:{SPH+3}], s50 offen lds')
        OB=OPT.get('ob',4)
        for c in ((2,1,0) if HYB else {4:(3,2,1,0),2:(2,0),1:(0,)}[OB]): e(f's_waitcnt vmcnt({nj*c})\ns_barrier')
        e('s_endpgm')
        if par==0: e('K2_L1:')
    e('K2_C:')
    if OPT.get('prio'): e('s_setprio 3')
    e(f'''s_and_b32 s43, s42, 3
    s_lshl_b32 s41, s41, 2
    s_add_u32 s43, s43, s41
    s_lshl_b32 s51, s43, 1
    s_add_u32 s51, s51, s45
    s_lshl_b32 s52, s51, 4
    s_lshl_b32 s53, s46, 3
    s_add_u32 s52, s52, s53
    s_mul_i32 s52, s52, 3584
    s_add_u32 s57, s52, 4096
    s_waitcnt lgkmcnt(0)''')
    stamp(A,1)
    srd(A,SPH,12,64*16*3584,PHIQ_OFF)
    PHI=144; vF16=16
    e('v_mov_b32 v16, v15')
    def loads(s):
        L=[]
        for n in range(7):
            x=f'buffer_load_dwordx4 {vr(PHI+28*s+4*n,4)}, v{vF16}, s[{SPH}:{SPH+3}], s{52 if n<4 else 57} offen offset:{1024*(n&3)}'
            if n==6: x+='\ns_add_u32 s52, s52, 7168\ns_add_u32 s57, s57, 7168'
            L.append(x)
        return L
    NUP=OPT.get('nup',1)
    for s_ in range(NUP):
        for x in loads(s_): e(x)
    srd(A,SO,10,2048*1792)
    e(LANE)
    vK,vN0,vN1,vS0,vS1=17,18,19,20,21
    e(f"""s_mul_i32 s53, s46, 7168
    v_lshlrev_b32 v3, 2, v1
    v_add_u32 v{vK}, s53, v3
    s_mul_i32 s53, s46, 28672
    s_add_u32 s53, s53, 57344
    v_lshl_add_u32 v3, v9, 2, v10
    v_lshlrev_b32 v3, 7, v3
    v_lshrrev_b32 v4, 1, v10
    v_lshl_add_u32 v3, v4, 6, v3
    v_add3_u32 v{vN0}, v3, v11, s53
    s_lshl_b32 s55, s46, 6
    v_xor_b32 v{vN1}, s55, v{vN0}
    v_xor_b32 v{vN0}, 64, v{vN1}
    v_lshlrev_b32 v3, 1, v9
    v_xor_b32 v3, v3, v10
    v_lshrrev_b32 v4, 1, v3
    v_lshlrev_b32 v3, 7, v3
    v_lshl_add_u32 v3, v4, 6, v3
    v_add3_u32 v{vS0}, v3, v11, s53
    v_xor_b32 v{vS1}, s55, v{vS0}
    v_xor_b32 v{vS0}, 64, v{vS1}
    s_lshl_b32 s53, s{sWV}, 12
    s_add_u32 s53, s53, 114688
    v_add_u32 v6, s53, v{vF16}
    s_xor_b32 s53, s53, 8192
    v_add_u32 v7, s53, v{vF16}
    s_lshl_b32 s51, s51, 5""")
    if OPT.get('cst',1):
        e(f"""s_mul_i32 s53, s45, 4608
        s_lshl_b32 s55, s46, 6
        s_add_u32 s55, s55, s53
        v_mul_u32_u24 v2, 144, v8
        v_lshl_add_u32 v2, v9, 4, v2
        v_add_u32 v2, s55, v2
        s_mul_i32 s55, s46, {16*144}
        s_add_u32 s55, s55, s53
        v_mul_u32_u24 v3, 144, v13
        v_and_b32 v4, 7, v1
        v_lshl_add_u32 v3, v4, 4, v3
        v_add_u32 v3, s55, v3
        v_mul_u32_u24 v5, 1792, v13
        v_lshl_add_u32 v5, v4, 4, v5
        s_lshl_b32 s55, s46, 4
        s_add_u32 s51, s51, s55
        s_mul_i32 s54, s51, 1792
        s_lshl_b32 s55, s44, 7
        s_add_u32 s54, s54, s55
        s_add_u32 s54, s54, 896""")
    else:
        e(f"""v_add_u32 v5, s51, v8
        v_mul_u32_u24 v5, 1792, v5
        v_lshl_add_u32 v5, v9, 4, v5
        s_lshl_b32 s54, s44, 7
        s_lshl_b32 s55, s46, 6
        s_add_u32 s54, s54, s55
        s_add_u32 s54, s54, 896""")
    KF=[24,40]; NUM=[72,88]; OUT=[112,128]
    OPH=[104,8,PHI,PHI+8,PHI+16,PHI+28,PHI+36,PHI+44]
    WFB=[56,PHI+56,24,40]
    e(f'v_mov_b64 {vr(KF[0]+14,2)}, 0\nv_mov_b64 {vr(KF[1]+12,2)}, 0')
    e(f's_mov_b32 s56, {f2u(1e-6)}')
    def rdkv(hl):
        o=56*(hl>>1)+14*(hl&1)
        return [f'ds_read2st64_b32 {vr(KF[hl&1]+2*p+(2 if (p==6 and hl&1) else 0),2)}, v{vK} offset0:{o+2*p} offset1:{o+2*p+1}' for p in range(7)]
    def rdwo(hl):
        L=[]; WFR=WFB[hl&3] if (hl>=4 or not HYB) else 56
        for sp in range(2):
            for mt in range(2):
                for q in (2*sp,2*sp+1):
                    if q<3: L.append(f'ds_read_b64_tr_b16 {vr(WFR+8*mt+2*q,2)}, v{(vN0,vN1)[mt]} offset:{3584*hl+1024*q}')
                    else: L.append(f'ds_read_b64_tr_b16 {vr(WFR+8*mt+6,2)}, v{(vS0,vS1)[mt]} offset:{3584*hl+3072}')
        return L
    def num(hl):
        base=PHI+28*(hl>>1)
        ph=[base+12*(hl&1)+4*s for s in range(3)]+[base+24]
        return [MF(NUM[hl&1],KF[hl&1]+4*s,ph[s],NUM[hl&1] if s else None) for s in range(4)]
    def fin(hl):
        N=NUM[hl&1]; OP=OPH[hl]
        L=[f'v_add_f32 v22, s56, v{N+14}','v_rcp_f32 v22, v22',f'v_mov_b32 v{OP+7}, 0']
        for j in range(7): L+=[f'v_mul_f32 v{N+2*j}, v22, v{N+2*j}',f'v_mul_f32 v{N+2*j+1}, v22, v{N+2*j+1}']
        L+=[f'v_cvt_pk_bf16_f32 v{OP+j}, v{N+2*j}, v{N+2*j+1}' for j in range(7)]
        return L
    def outm(hl):
        OP=OPH[hl]; WFR=WFB[hl&3] if (hl>=4 or not HYB) else 56
        return [MF(OUT[mt],WFR+8*mt+4*sp,OP+4*sp,None if (hl==0 and sp==0) else OUT[mt]) for sp in range(2) for mt in range(2)]
    if OPT.get('ldonly'):
        stamp(A,3); e('s_waitcnt vmcnt(0)'); stamp(A,4); e('s_barrier\ns_barrier'); stamp(A,5); e('s_barrier\ns_barrier\ns_barrier\ns_barrier'); dump2(A,1); e('s_endpgm')
    for _ in range(OPT.get('al2',0)): e('s_nop 0')
    e('s_barrier')
    stamp(A,3)
    for x in rdkv(0)+rdkv(1): e(x)
    later=[(s_,x) for s_ in range(NUP,4) for x in loads(s_)]
    nld=[int(c) for c in str(OPT.get('nld','77700000' if NUP==1 else '77000000')).zfill(8)]
    vm=[s_ for s_ in range(NUP) for _ in range(7)]
    lg=['k0']*7+['k1']*7
    def lwait(tag):
        n=0
        for t in reversed(lg):
            if t==tag: break
            n+=1
        del lg[:len(lg)-n]
        return f'lgkmcnt({n})'
    for h in range(8):
        Ld=[later.pop(0) for _ in range(nld[h])]
        w='s_waitcnt '+lwait(f'k{h}')
        if h%2==0: w+=' vmcnt(%d)'%sum(1 for t in vm if t>h//2)
        e(w)
        N=num(h); Fv=fin(h-1) if h else []
        if h<6: K=rdkv(h+2); K=[K[0:2],K[2:4],K[4:6],K[6:]]; tag=f'k{h+2}'
        else:
            K=rdwo(h-6) if h==6 else rdwo(1); K=[K[2*i:2*i+2] for i in range(4)]; tag=f'w{h-6}'
        nF=len(Fv)
        for i in range(4):
            e(N[i])
            if i==0 and h in (2,6): e('s_barrier')
            for x in K[i]: e(x); lg.append(tag)
            for x in Fv[i*nF//4:(i+1)*nF//4]: e(x)
            for _ in range(2):
                if Ld: t,x=Ld.pop(0); e(x); vm.append(t)
    assert not later
    stamp(A,4)
    if OPT.get('oc'): e('s_memtime s[82:83]')
    F7=fin(7)
    for h in range(6):
        e('s_waitcnt '+lwait(f'w{h}'))
        O=outm(h); W=rdwo(h+2)
        for i in range(4):
            e(O[i])
            if i==0 and h%2==0: e('s_barrier')
            for x in W[2*i:2*i+2]: e(x); lg.append(f'w{h+2}')
            k_=(4*h+i)*2
            for x in F7[k_:k_+2]: e(x)
    O6=outm(6); O7=outm(7)
    e('s_waitcnt '+lwait('w6')); e(O6[0]); e(O6[2]); e(O6[1])
    e('s_waitcnt '+lwait('w7')); e(O7[0]); e(O7[2]); e(O6[3]); e(O7[1]); e(O7[3])
    stamp(A,5)
    if OPT.get('oc'): e('s_memtime s[84:85]')
    for q in range(4): e(f'ds_write_b128 v6, {vr(OUT[0]+4*q,4)} offset:{1024*q}')
    e('s_waitcnt lgkmcnt(0)\ns_barrier')
    OUT=[OUT[1]]
    for q in range(4): e(f'ds_read_b128 {vr(24+4*q,4)}, v7 offset:{1024*q}')
    st=OPT['st_out']
    for i in range(2):
        e(f's_waitcnt lgkmcnt({2-i if OPT.get("cst",1) else 2-2*i})')
        for j in range(0,8,2): e(f'v_pk_add_f32 {vr(OUT[0]+8*i+j,2)}, {vr(OUT[0]+8*i+j,2)}, {vr(24+8*i+j,2)}')
        for j in range(4): e(f'v_cvt_pk_bf16_f32 v{56+4*i+j}, v{OUT[0]+8*i+2*j}, v{OUT[0]+8*i+2*j+1}')
        if OPT.get('cst',1): e(f'ds_write_b128 v2, {vr(56+4*i,4)} offset:{32*i}')
        else: e(f'buffer_store_dwordx4 {vr(56+4*i,4)}, v5, s[{SO}:{SO+3}], s54 offen offset:{32*i} {st}')
    if OPT.get('cst',1):
        e(f'''s_waitcnt lgkmcnt(0)
        s_barrier
        ds_read_b128 v[24:27], v3
        ds_read_b128 v[28:31], v3 offset:{8*144}
        s_add_u32 s55, s54, {8*1792}
        s_waitcnt lgkmcnt(1)
        buffer_store_dwordx4 v[24:27], v5, s[{SO}:{SO+3}], s54 offen {st}
        s_waitcnt lgkmcnt(0)
        buffer_store_dwordx4 v[28:31], v5, s[{SO}:{SO+3}], s55 offen {st}''')
    dump2(A,1)
    e('s_endpgm')
    e('K2_A:')
    SP_=904; SA_=122880
    e(f'''s_lshl_b32 s43, s41, 2
    s_add_u32 s43, s43, s42
    s_sub_u32 s43, s43, 28
    s_and_b32 s44, s43, 1
    s_lshr_b32 s43, s43, 1
    s_and_b32 s45, s{sWV}, 1
    s_lshr_b32 s46, s{sWV}, 1
    v_lshl_add_u32 v14, v13, 10, v12
    s_lshl_b32 s47, s43, 17
    s_lshl_b32 s48, s{sWV}, 14
    s_add_u32 s47, s47, s48
    s_add_u32 s49, s47, 8192
    s_lshl_b32 s48, s{sWV}, 11
    s_mov_b32 m0, s48''')
    Ld=[]
    for j in range(7):
        Ld.append(f'buffer_load_dwordx4 v14, s[{SD}:{SD+3}], s47 offen lds\ns_add_u32 m0, m0, 1024\ns_add_u32 s47, s47, 128')
        Ld.append(f'buffer_load_dwordx4 v14, s[{SD}:{SD+3}], s49 offen lds\ns_add_u32 m0, m0, {16384-1024}\ns_add_u32 s49, s49, 128')
    G=f"""s_lshl_b32 s56, s44, 10
    s_add_u32 s57, s43, s56
    s_lshl_b32 s59, s44, 4
    s_lshl_b32 s54, s44, 13
    s_cmp_eq_u32 s43, 0
    s_cselect_b32 s57, s59, s57
    s_cselect_b32 s54, s54, 0
    s_cselect_b32 s55, s54, 8192
    s_sub_u32 s58, 2048, s57
    s_add_u32 s59, s57, 1024
    s_cmp_eq_u32 s43, 0
    s_cselect_b32 s58, s59, s58
    s_cselect_b32 s53, {32*1792}, {(-32*1792)&0xffffffff}""".split('\n')
    npre=len(G)
    G+=LANE.split('\n')
    G+=f"""v_lshlrev_b32 v3, 5, v8
    v_add_u32 v3, s57, v3
    v_cvt_f32_u32 v4, v3
    v_mul_f32 v4, {f2u(1/2048)}, v4
    v_cvt_f32_u32 v5, v9
    v_mul_f32 v5, {f2u(8.0)}, v5
    v_mul_f32 v5, v4, v5""".split('\n')
    C,S,M2,M3=24,40,56,72; TT=88; ML=114688
    G+=f"""s_lshr_b32 s60, s{sWV}, 1
    v_cvt_f32_u32 v6, s60
    v_mul_f32 v6, {f2u(16.0)}, v6
    v_fma_f32 v5, v4, v6, v5
    s_and_b32 s60, s{sWV}, 1
    v_cvt_f32_u32 v6, s60
    v_fmamk_f32 v5, v6, {f2u(-0.25)}, v5""".split('\n')
    for j in range(8): G.append(f'v_fmamk_f32 v{TT+j}, v4, {f2u(1.*j)}, v5')
    for j in range(8): G.append(f'v_cos_f32 v{TT+j}, v{TT+j}')
    for j in range(4): G.append(f'v_cvt_pk_bf16_f32 v{TT+8+j}, v{TT+2*j}, v{TT+2*j+1}')
    G+=[f's_lshl_b32 s60, s{sWV}, 10',f'v_add_u32 v7, {ML}, v15','v_add_u32 v6, s60, v7',f'ds_write_b128 v6, {vr(TT+8,4)}']
    for x in G: e(x)
    e('s_waitcnt lgkmcnt(0)')
    stamp(A,1)
    srd(A,SD,12,2<<20,AINT_OFF)
    for x in Ld: e(x)
    srd(A,SO,10,2048*1792)
    aR,aS,bS,bR=16,17,18,19
    e(f"""v_lshl_add_u32 v3, v9, 3, v10
    v_lshlrev_b32 v3, 7, v3
    v_lshrrev_b32 v4, 1, v10
    v_lshl_add_u32 v3, v4, 6, v3
    s_lshl_b32 s60, s{sWV}, 14
    v_add3_u32 v3, v3, v11, s60
    v_add_u32 v{aR}, s54, v3
    v_add_u32 v{aS}, s55, v3
    v_xor_b32 v{bR}, 64, v{aR}
    v_xor_b32 v{bS}, 64, v{aS}
    v_mul_u32_u24 v22, {SP_}, v8
    s_lshl_b32 s60, s{sWV}, 6
    v_lshl_add_u32 v3, v9, 4, s60
    v_add_u32 v20, v22, v3
    v_sub_u32 v21, v22, v3
    v_add_u32 v21, 850, v21
    v_add_u32 v12, {SA_}, v20
    v_add_u32 v13, {SA_}, v21
    s_mul_i32 s50, s57, 1792
    s_mul_i32 s58, s58, 1792
    s_lshl_b32 s56, s{sWV}, 2
    s_mul_i32 s59, s56, s53
    s_add_u32 s58, s58, s59
    s_mul_i32 s59, s56, {32*1792}
    s_add_u32 s50, s50, s59
    s_mul_i32 s56, s56, {SP_}
    v_add_u32 v4, s56, v15
    v_add_u32 v5, {2*SP_}, v4
    v_add_u32 v2, {SA_}, v4
    v_add_u32 v0, {SA_}, v5""")
    FR=88; AC=[152,168,184,200]; AX,AY=216,232; PS=22
    e('s_waitcnt lgkmcnt(0)\ns_barrier')
    for ks in range(4): e(f'ds_read_b128 {vr(C+4*ks,4)}, v7 offset:{2048*ks}\nds_read_b128 {vr(S+4*ks,4)}, v7 offset:{2048*ks+1024}')
    e('s_waitcnt lgkmcnt(0)\ns_cmp_eq_u32 s43, 0\ns_cbranch_scc1 K2A_G1')
    for j in range(0,16,2): e(f'v_mov_b64 {vr(M2+j,2)}, {vr(S+j,2)}\nv_mov_b64 {vr(M3+j,2)}, {vr(C+j,2)}')
    e('s_branch K2A_G2\nK2A_G1:')
    for j in range(16): e(f'v_xor_b32 v{M2+j}, 0x80000000, v{C+j}\nv_xor_b32 v{M3+j}, 0x80000000, v{S+j}')
    e('K2A_G2:')
    stamp(A,3)
    A2M=OPT.get('a2m',1)
    if A2M==0:
        e('s_waitcnt vmcnt(6)\ns_barrier')
        stamp(A,4)
        e(f's_cmp_lt_u32 s{sWV}, 4\ns_cbranch_scc1 K2A_GO\ns_waitcnt vmcnt(0)\ns_barrier\ns_cmp_eq_u32 s{sWV}, 7\ns_cbranch_scc1 K2A_OUT\nK2A_GO:')
    else:
        e('s_waitcnt vmcnt(0)\ns_barrier')
        stamp(A,4)
        e(f's_cmp_eq_u32 s{sWV}, 7\ns_cbranch_scc1 K2A_B2')
    srcs=[(aR,C),(aS,M2),(bS,M3),(bR,S)]
    def rdA(n):
        ks,q=n>>2,n&3
        for jj in range(2): e(f'ds_read_b64_tr_b16 {vr(FR+4*n+2*jj,2)}, v{srcs[q][0]} offset:{2048*ks+512*jj}')
    for n in range(6): rdA(n)
    for n in range(16):
        if n+6<16: rdA(n+6); e('s_waitcnt lgkmcnt(12)')
        else: e(f's_waitcnt lgkmcnt({2*(15-n)})')
        ks,q=n>>2,n&3
        e(MF(AC[q],FR+4*n,srcs[q][1]+4*ks,AC[q] if ks else None))
    e(f's_cmp_eq_u32 s{sWV}, 0\ns_cbranch_scc0 K2A_NS')
    for ks in range(4):
        e(MF(AX,FR+4*(4*ks+3),C+4*ks,AX if ks else None)); e(MF(AY,FR+4*(4*ks+2),M2+4*ks,AY if ks else None))
    e('s_mov_b32 exec_hi, 0')
    e(f'v_mov_b32 v{AC[2]}, 0\nv_mov_b32 v{AC[3]}, 0\nv_sub_f32 v3, v{AX}, v{AY}\nv_cvt_pk_bf16_f32 v{PS}, v{AX}, v{AY}\nv_cvt_pk_bf16_f32 v3, v3, v3')
    e(f's_cmp_eq_u32 s43, 0\ns_cselect_b64 vcc, -1, 0\nv_cndmask_b32 v{PS}, v3, v{PS}, vcc')
    e('s_mov_b32 exec_hi, -1')
    e('K2A_NS:\ns_nop 7\ns_nop 1\ns_cmp_eq_u32 s43, 0\ns_cbranch_scc1 K2A_C1')
    NEG=' neg_lo:[0,1] neg_hi:[0,1]'
    AF,AM,BF,BM=88,104,120,136
    for j in range(0,16,2):
        e(f'v_pk_add_f32 {vr(AC[0]+j,2)}, {vr(AC[0]+j,2)}, {vr(AC[1]+j,2)}{NEG}')
        e(f'v_pk_add_f32 {vr(AC[2]+j,2)}, {vr(AC[2]+j,2)}, {vr(AC[3]+j,2)}')
    PK=152
    def packs(tiles):
        for tl,(F_,M_) in enumerate(tiles):
            p=PK+16*tl
            for j in range(8): e(f'v_cvt_pk_bf16_f32 v{p+j}, v{F_+2*j}, v{F_+2*j+1}')
            for i in range(2):
                b_=M_+8*i
                e(f'v_cvt_pk_bf16_f32 v{p+8+4*i}, v{b_+7}, v{b_}\nv_cvt_pk_bf16_f32 v{p+9+4*i}, v{b_+6}, v{b_+5}\nv_cvt_pk_bf16_f32 v{p+10+4*i}, v{b_+4}, v{b_+3}\nv_cvt_pk_bf16_f32 v{p+11+4*i}, v{b_+2}, v{b_+1}')
    for j in range(0,16,2):
        e(f'v_pk_add_f32 {vr(AF+j,2)}, {vr(AC[0]+j,2)}, {vr(AC[2]+j,2)}{NEG}')
        e(f'v_pk_add_f32 {vr(AM+j,2)}, {vr(AC[0]+j,2)}, {vr(AC[2]+j,2)}')
    packs(((AF,AM),(AM,AF)))
    e('s_branch K2A_C2\nK2A_C1:')
    for j in range(0,16,2):
        e(f'v_pk_add_f32 {vr(AF+j,2)}, {vr(AC[0]+j,2)}, {vr(AC[3]+j,2)}{NEG}')
        e(f'v_pk_add_f32 {vr(AM+j,2)}, {vr(AC[0]+j,2)}, {vr(AC[3]+j,2)}')
        e(f'v_pk_add_f32 {vr(BF+j,2)}, {vr(AC[1]+j,2)}, {vr(AC[2]+j,2)}{NEG}')
        e(f'v_pk_add_f32 {vr(BM+j,2)}, {vr(AC[1]+j,2)}, {vr(AC[2]+j,2)}')
    packs(((AF,AM),(BF,BM)))
    e('K2A_C2:')
    def writes(tl,vf,vm_):
        p=PK+16*tl
        for i in range(2):
            e(f'ds_write_b64 v{vf}, {vr(p+4*i,2)} offset:{32*i}\nds_write_b64 v{vf}, {vr(p+4*i+2,2)} offset:{32*i+8}')
            o=32-32*i; r=p+8+4*i
            e(f'ds_write_b16 v{vm_}, v{r} offset:{o}\nds_write_b32 v{vm_}, v{r+1} offset:{o+2}\nds_write_b64 v{vm_}, {vr(r+2,2)} offset:{o+6}\nds_write_b16_d16_hi v{vm_}, v{r} offset:{o+14}')
    writes(0,12,13)
    e(f"""s_cmp_eq_u32 s{sWV}, 0
    s_cbranch_scc0 K2A_B2
    s_mov_b32 exec_hi, 0
    ds_write_b16 v12, v{PS} offset:448
    s_mov_b32 exec_hi, -1
    K2A_B2:
    s_waitcnt lgkmcnt(0)
    s_barrier""")
    stamp(A,5)
    for i in range(4): e(f'ds_read2_b64 {vr(24+4*i,4)}, v{(2,0)[i>>1]} offset0:{113*(i&1)} offset1:{113*(i&1)+1}')
    e(f's_cmp_eq_u32 s{sWV}, 7\ns_cbranch_scc1 K2A_W7')
    writes(1,20,21)
    e(f"""s_cmp_eq_u32 s{sWV}, 0
    s_cbranch_scc0 K2A_W7
    s_mov_b32 exec_hi, 0
    ds_write_b16_d16_hi v20, v{PS} offset:448
    K2A_W7:
    s_mov_b32 exec_hi, 0x00ffffff
    s_waitcnt lgkmcnt(0)""")
    for i in range(4):
        e(f'buffer_store_dwordx4 {vr(24+4*i,4)}, v15, s[{SO}:{SO+3}], s50 offen {st}\ns_add_u32 s50, s50, {32*1792}')
    e('s_barrier')
    for i in range(4): e(f'ds_read2_b64 {vr(40+4*i,4)}, v{4+(i>>1)} offset0:{113*(i&1)} offset1:{113*(i&1)+1}')
    for i in range(4):
        e(f's_waitcnt lgkmcnt({3-i})')
        e(f'buffer_store_dwordx4 {vr(40+4*i,4)}, v15, s[{SO}:{SO+3}], s58 offen {st}\ns_add_u32 s58, s58, s53')
    dump2(A,3)
    e('K2_END:\ns_endpgm')

def k3(A):
    e=A.e
    kk,si,role,stat,scale=[int(x) for x in OPT['x'].split(',')]
    e('k3_kernel:')
    e('s_cmp_ge_u32 s2, 1\ns_cbranch_scc1 K3_END')
    e('s_load_dwordx2 s[4:5], s[0:1], 88\nv_lshlrev_b32 v1, 6, v0\nv_mov_b32 v2, 0\nv_mov_b32 v3, -1\nv_mov_b32 v4, 0')
    e('ds_write_b32 v2, v3\nds_write_b32 v2, v4 offset:4\nds_write_b32 v2, v4 offset:8\ns_waitcnt lgkmcnt(0)\ns_barrier')
    e('s_add_u32 s8, s4, 0x800000\ns_addc_u32 s9, s5, 0\ns_mov_b32 s10, 0x20000\ns_mov_b32 s11, 0x20000')
    e(f'buffer_load_dword v5, v1, s[8:11], 0 offen\ns_mov_b32 s12, {0x10000*kk}')
    e(f'buffer_load_dword v6, v1, s[8:11], s12 offen offset:{4*si}\nbuffer_load_dword v7, v1, s[8:11], s12 offen offset:40\ns_waitcnt vmcnt(0)')
    e('ds_min_u32 v2, v5\ns_waitcnt lgkmcnt(0)\ns_barrier\nds_read_b32 v8, v2\ns_waitcnt lgkmcnt(0)\nv_sub_u32 v6, v6, v8')
    e(f'v_cmp_eq_u32 vcc, {role}, v7\nv_cndmask_b32 v6, 0, v6, vcc\nv_cndmask_b32 v9, 0, 1, vcc')
    e(('ds_max_u32 v2, v6 offset:4' if stat==0 else 'ds_add_u32 v2, v6 offset:4')+'\nds_add_u32 v2, v9 offset:8\ns_waitcnt lgkmcnt(0)\ns_barrier')
    e('ds_read_b32 v6, v2 offset:4\nds_read_b32 v9, v2 offset:8\ns_waitcnt lgkmcnt(0)')
    e(f'v_cvt_f32_u32 v6, v6\nv_mul_f32 v6, {f2u(float(scale))}, v6')
    if stat==1: e('v_cvt_f32_u32 v9, v9\nv_rcp_f32 v9, v9\nv_mul_f32 v6, v6, v9')
    e('v_cvt_u32_f32 v6, v6\nv_min_u32 v6, 100000, v6\nv_readfirstlane_b32 s14, v6')
    e('s_memrealtime s[16:17]\ns_waitcnt lgkmcnt(0)\nK3_L:\ns_memrealtime s[18:19]\ns_waitcnt lgkmcnt(0)\ns_sub_u32 s20, s18, s16\ns_cmp_lt_u32 s20, s14\ns_cbranch_scc1 K3_L')
    e('K3_END:\ns_endpgm')

def desc(name,vgpr,sgpr,acc):
    return f'''.amdhsa_kernel {name}
  .amdhsa_next_free_vgpr {vgpr}
  .amdhsa_next_free_sgpr {sgpr}
  .amdhsa_accum_offset {acc}
  .amdhsa_group_segment_fixed_size 0
  .amdhsa_kernarg_size 96
  .amdhsa_user_sgpr_count 2
  .amdhsa_user_sgpr_kernarg_segment_ptr 1
  .amdhsa_system_sgpr_workgroup_id_x 1
.end_amdhsa_kernel
'''
def main():
    A1=Asm(); k1(A1); A2=Asm(); k2(A2)
    assert A1.verify_branches()==0 and A2.verify_branches()==0
    v1=A1.maxreg('v')+1; v2=A2.maxreg('v')+1; a2=A2.maxreg('a')+1
    r4=lambda x:(x+3)//4*4
    hdr=open('concat_heads__spectral_fnet__linear_kernel_hedgehog__prompt.s.ref').read().split('; Override')[0]
    out=hdr+'; @launch kernel=k1_kernel grid=(256,1,1) block=(512,1,1) lds=163840\n; @launch kernel=k2_kernel grid=(256,1,1) block=(512,1,1) lds=163840\n'
    ks=[('k1_kernel',A1),('k2_kernel',A2)]
    if 'x' in OPT:
        A3=Asm(); k3(A3); ks.append(('k3_kernel',A3)); out+='; @launch kernel=k3_kernel grid=(1,1,1) block=(256,1,1) lds=64\n'
    out+='.amdgcn_target "amdgcn-amd-amdhsa--gfx950"\n.text\n'
    for n,A in ks:
        out+=f'.globl {n}\n.p2align 8\n.type {n},@function\n'+A.text()
    out+='.section .rodata,"a"\n.p2align 6\n'+desc('k1_kernel',v1,102,r4(v1))+'.p2align 6\n'+desc('k2_kernel',v2,102,r4(v2))
    if 'x' in OPT: out+='.p2align 6\n'+desc('k3_kernel',16,32,16)
    open(sys.argv[1],'w').write(out)
    print('k1 vgpr',v1,'k2 vgpr',v2,'agpr',a2, 'k1 sgpr',A1.maxreg('s')+1,'k2 sgpr',A2.maxreg('s')+1)
main()
```
